```python
import torch

def _softmax(x, axis=-1):
    return torch.softmax(x, dim=axis)
def _gelu(x):
    return torch.nn.functional.gelu(x, approximate="tanh")
def _silu(x):
    return torch.nn.functional.silu(x)
def _sigmoid(x):
    return torch.sigmoid(x)
def _layernorm(x, axis=-1, eps=1e-5):
    m = x.mean(dim=axis, keepdim=True)
    v = x.var(dim=axis, keepdim=True, unbiased=False)
    return (x - m) / torch.sqrt(v + eps)
def _scatter_add(tgt, idx, src, axis=0):
    return tgt.clone().index_add_(axis, idx, src)
def _segment_sum(src, seg, n):
    out = torch.zeros((n,) + src.shape[1:], dtype=src.dtype)
    return out.index_add_(0, seg, src)
def _pad(x, pw):
    flat = tuple(v for pair in reversed(pw) for v in pair)
    return torch.nn.functional.pad(x, flat)

kernel_name = 'standalone__sliding_block_cached__decode'

def setup_inputs():

    _w = (lambda a: (lambda t: t.to(torch.bfloat16) if t.is_floating_point() else t)(torch.as_tensor(a)))
    B, Sq, D = 4, 1, 448
    Hq, Hkv, Sk, Dh = 16, 8, 4096, 256
    assert Hq % Hkv == 0, (Hq, Hkv)
    return {
        "x": _w((lambda *s: torch.randn(*s, dtype=torch.bfloat16) * 0.8)(B, Sq, D)),
        "k_cache": _w((lambda *s: torch.randn(*s, dtype=torch.bfloat16) * 0.8)(B, Hkv, Sk, Dh)),
        "v_cache": _w((lambda *s: torch.randn(*s, dtype=torch.bfloat16) * 0.05)(B, Hkv, Sk, Dh)),
        "wq": _w((lambda *s: torch.randn(*s, dtype=torch.bfloat16) * 0.8)(D, Hq * Dh) * (D ** -0.5)),
        "wo": _w((lambda *s: torch.randn(*s, dtype=torch.bfloat16) * 0.05)(Hq * Dh, D) * ((Hq * Dh) ** -0.5)),
    }

def reference(x, k_cache, v_cache, wq, wo):
    B, Sq, D = x.shape
    Hq, Dh = 16, 256
    Hkv, Sk = k_cache.shape[1], k_cache.shape[2]
    W = min(4096, max(256, Sk // 4))
    rep = Hq // Hkv
    q = (lambda x, *d: x.permute(*d))((x @ wq).reshape(B, Sq, Hq, Dh), 0, 2, 1, 3)
    k = (lambda x, n, axis: torch.repeat_interleave(x, n, dim=axis))(k_cache[:, :, Sk - W:, :], rep, axis=1)
    v = (lambda x, n, axis: torch.repeat_interleave(x, n, dim=axis))(v_cache[:, :, Sk - W:, :], rep, axis=1)
    scores = torch.einsum("bhqd,bhkd->bhqk", q, k) * (Dh ** -0.5)
    p = _softmax(scores, axis=-1)
    o = torch.einsum("bhqk,bhkd->bhqd", p, v)
    return (lambda x, *d: x.permute(*d))(o, 0, 2, 1, 3).reshape(B, Sq, Hq * Dh) @ wo
```

```python
import sys

NAME = "standalone__sliding_block_cached__decode_kernel"

HEADER = """; Kernarg layout for this problem (64 bytes, ptrs only, base s[0:1]):
"""

WS_E = 0
WS_Q1 = 0x1000
WS_S1 = 0x11000
WS_O1 = 0x20000
WS_P2 = 0xA0000
WS_ST = 0x200000

L_WQ = 0
L_X = 14336
L_Q = 18432
L_STAT = 19712
L_OX = 19968
L_RED = 20480
L_WO = 28672
L_END = 45056

BUF = dict(x=4, k=6, v=8, wq=10, wo=12, out=14, dbg=16, ws=18)
SIZE = dict(x=3584, k=67108864, v=67108864, wq=3670016, wo=3670016, out=3584, dbg=256, ws=268435456)
SRD = dict(x=64, k=68, v=72, wq=76, wo=80, out=84, ws=88)

SPIN = 200000


def gen(safe=False, stamps=False, order="kkvv", kvflags="nt", wqflags="nt", woflags="nt", b0=True,
        outflags="", sleep=0):
    L = []
    A = L.append

    def vr(r, n=1):
        return f"v{r}" if n == 1 else f"v[{r}:{r+n-1}]"

    W = {1: "dword", 2: "dwordx2", 3: "dwordx3", 4: "dwordx4"}

    def gload(dst, n, voff, buf, imm=0, fl=""):
        if safe:
            A(f"buffer_load_{W[n]} {vr(dst,n)}, v{voff}, s[{SRD[buf]}:{SRD[buf]+3}], 0 offen offset:{imm} {fl}")
        else:
            A(f"global_load_{W[n]} {vr(dst,n)}, v{voff}, s[{BUF[buf]}:{BUF[buf]+1}] offset:{imm} {fl}")

    def gdma(voff, buf, imm=0, fl=""):
        if safe:
            A(f"buffer_load_dwordx4 v{voff}, s[{SRD[buf]}:{SRD[buf]+3}], 0 offen offset:{imm} {fl} lds")
        else:
            A(f"global_load_lds_dwordx4 v{voff}, s[{BUF[buf]}:{BUF[buf]+1}] offset:{imm} {fl}")

    def gstore(src, n, voff, buf, imm=0, fl=""):
        w = "short" if n == 0 else W[n]
        n = max(n, 1)
        if safe:
            A(f"buffer_store_{w} {vr(src,n)}, v{voff}, s[{SRD[buf]}:{SRD[buf]+3}], 0 offen offset:{imm} {fl}")
        else:
            A(f"global_store_{w} v{voff}, {vr(src,n)}, s[{BUF[buf]}:{BUF[buf]+1}] offset:{imm} {fl}")

    def srds():
        if safe:
            for b, s in SRD.items():
                A(f"s_mov_b32 s{s}, s{BUF[b]}"); A(f"s_mov_b32 s{s+1}, s{BUF[b]+1}")
                A(f"s_mov_b32 s{s+2}, {SIZE[b]}"); A(f"s_mov_b32 s{s+3}, 0x20000")

    nst = [0]
    STB = 200
    def stamp(i):
        if stamps:
            A("s_memrealtime s[40:41]")
            A("s_waitcnt lgkmcnt(0)")
            A(f"v_writelane_b32 v{STB}, s40, {i}")

    def stamp_flush():
        if stamps:
            A("s_mov_b64 exec, -1")
            A("s_mul_i32 s40, s2, 5"); A("s_add_u32 s40, s40, s3"); A("s_lshl_b32 s40, s40, 7")
            A(f"s_add_u32 s40, s40, {WS_ST}")
            A(f"v_lshl_add_u32 v{STB+1}, v2, 2, s40")
            A("s_mov_b32 exec_hi, 0")
            gstore(STB, 1, STB + 1, "ws")

    def mfma(d, a, b, c=None):
        cs = "0" if c is None else vr(c, 4)
        A(f"v_mfma_f32_16x16x32_bf16 {vr(d,4)}, {vr(a,4)}, {vr(b,4)}, {cs}")

    A(f"; @launch grid=(256,1,1) block=(320,1,1) lds={L_END}")
    A('.amdgcn_target "amdgcn-amd-amdhsa--gfx950"')
    A(".text"); A(f".globl {NAME}"); A(".p2align 8"); A(f".type {NAME},@function"); A(f"{NAME}:")
    if stamps:
        A("s_memrealtime s[42:43]")
    A("s_cmpk_ge_u32 s2, 0x100")
    A("s_cbranch_scc1 L_end")
    A("s_load_dwordx16 s[4:19], s[0:1], 0")
    A("v_readfirstlane_b32 s3, v0")
    A("v_and_b32 v2, 63, v0              ; lane")
    A("v_and_b32 v3, 15, v0              ; n")
    A("v_bfe_u32 v4, v0, 4, 2            ; g")
    A("s_and_b32 s20, s2, 7              ; hkv")
    A("s_lshr_b32 s21, s2, 3             ; r")
    A("s_lshr_b32 s3, s3, 6              ; wave")
    A("s_cmp_eq_u32 s3, 4")
    A("s_cbranch_scc0 L_stream")

    A("s_setprio 3")
    A("s_getpc_b64 s[22:23]")
    A("L_pc:")
    A("v_lshlrev_b32 v5, 7, v2")
    A("v_min_u32 v5, L_codeend-L_pc-4, v5")
    A("global_load_dword v6, v5, s[22:23]")
    A("v_lshlrev_b32 v5, 4, v2           ; x offset")
    A("v_lshrrev_b32 v7, 1, v2")
    A("v_lshlrev_b32 v7, 13, v7")
    A("v_and_b32 v8, 16, v5")
    A("s_lshl_b32 s24, s20, 10")
    A("s_lshl_b32 s25, s21, 5")
    A("s_add_u32 s24, s24, s25")
    A("v_add3_u32 v7, v7, v8, s24")
    A(f"v_add_u32 v8, {262144-1024}, v7")
    A(f"s_movk_i32 m0, {L_X}")
    A("s_mov_b32 s25, 0x80000")
    A("s_waitcnt lgkmcnt(0)")
    srds()
    A(f"s_load_dword s26, s[18:19], {WS_E}")
    gdma(5, "x", 0); gdma(5, "x", 1024); gdma(5, "x", 2048)
    A("s_mov_b32 exec_hi, 0")
    gdma(5, "x", 3072)
    A("s_mov_b32 exec_hi, -1")
    A(f"s_mov_b32 m0, {L_WQ}")
    A("s_nop 0")
    A("L_wq:")
    gdma(7, "wq", 0, wqflags)
    gdma(8, "wq", 1024, wqflags)
    A("s_addk_i32 m0, 0x800")
    A("v_add_u32 v7, s25, v7")
    A("v_add_u32 v8, s25, v8")
    A(f"s_cmpk_lt_u32 m0, {L_WQ+14336}")
    A("s_cbranch_scc1 L_wq")
    if b0:
        A("s_barrier                         ; B0")
    A("s_branch L_help2")

    A("L_stream:")
    VK = 72; VV = 136
    A("s_lshr_b32 s22, s2, 6             ; b")
    A("s_lshl3_add_u32 s23, s22, s20     ; b*8+hkv")
    A("s_lshl_b32 s23, s23, 21")
    A("s_and_b32 s24, s21, 7             ; c / dd")
    A("s_lshl3_add_u32 s25, s24, s3      ; c*8+w")
    A("s_lshl_b32 s25, s25, 13")
    A("s_add_u32 s23, s23, s25")
    A("s_add_u32 s23, s23, 0x180000")
    A("v_lshlrev_b32 v5, 9, v3")
    A("v_lshlrev_b32 v6, 4, v4")
    A("v_add3_u32 v5, v5, v6, s23        ; K tile0")
    A("v_add_u32 v6, 0x8000, v5          ; K tile1")
    A("v_lshlrev_b32 v7, 4, v3")
    A("v_lshlrev_b32 v8, 11, v4")
    A("v_add3_u32 v7, v7, v8, s23        ; V tile0")
    A("v_add_u32 v8, 0x8000, v7          ; V tile1")
    A("s_waitcnt lgkmcnt(0)")
    srds()
    if stamps:
        A(f"v_writelane_b32 v{STB}, s42, 0")
    if b0:
        A("s_barrier                         ; B0")
    stamp(1)
    seq = []
    def kt(T): return [("k", T, j) for j in range(8)]
    def vt(T): return [("v", T, j) for j in range(8)]
    if order == "kkvv": seq = kt(0) + kt(1) + vt(0) + vt(1)
    elif order == "kvkv": seq = kt(0) + vt(0) + kt(1) + vt(1)
    for (b, T, j) in seq:
        if b == "k": gload(VK + T*32 + j*4, 4, 5 + T, "k", j*64, kvflags)
        else: gload(VV + T*32 + j*4, 4, 7 + T, "v", (j >> 1)*512 + (j & 1)*256, kvflags)
    NWO = 4
    def after(item):
        return len(seq) - 1 - seq.index(item) + NWO
    A(f"s_load_dword s26, s[18:19], {WS_E}")
    A("s_lshr_b32 s27, s24, 1")
    A("s_lshl2_add_u32 s27, s20, s27")
    A("s_lshl_b32 s27, s27, 5")
    A("s_and_b32 s28, s24, 1")
    A("s_add_u32 s27, s27, s28           ; row0/4")
    A("s_mul_i32 s27, s27, 3584          ; row0*896")
    A("s_lshl2_add_u32 s28, s22, s3")
    A("s_cmp_ge_u32 s28, 14")
    A("s_cselect_b32 s29, 2, 0")
    A("s_cselect_b64 s[30:31], 1, -1")
    A("s_sub_u32 s29, s28, s29")
    A("s_lshl_b32 s29, s29, 6")
    A("s_add_u32 s27, s27, s29")
    A("v_bfe_u32 v9, v2, 2, 2")
    A("v_lshl_add_u32 v9, v4, 3, v9")
    A("v_mul_u32_u24 v9, 896, v9")
    A("v_and_b32 v10, 3, v2")
    A("v_lshlrev_b32 v11, 4, v10")
    A("v_add3_u32 v9, v9, v11, s27")
    A("s_lshl_b32 s29, s3, 12")
    A(f"s_add_u32 s29, s29, {L_WO}")
    A("s_mov_b32 m0, s29")
    A("s_mov_b64 exec, s[30:31]")
    for u in range(4):
        gdma(9, "wo", u*1024, woflags)
        if u < 3: A(f"v_add_u32 v9, {28672-1024}, v9")
    A("s_mov_b64 exec, -1")
    stamp(2)
    A("v_and_b32 v16, 1, v2")
    A("v_lshlrev_b32 v16, 4, v16")
    A("v_mov_b32 v17, 0xffff")
    A("v_lshlrev_b32 v16, v16, v17")
    A("v_bfe_u32 v17, v2, 1, 2")
    for j in range(4):
        A(f"v_cmp_eq_u32 vcc, {j}, v17")
        A("s_nop 1")
        A(f"v_cndmask_b32 v{12+j}, 0, v16, vcc")
    A("v_bfe_u32 v16, v2, 3, 1           ; h")
    A("v_mul_u32_u24 v17, 576, v16")
    A("v_lshl_add_u32 v17, v4, 4, v17")
    A("v_lshlrev_b32 v18, 5, v16")
    A("s_lshl_b32 s27, s3, 3")
    A("v_add_u32 v19, s27, v18")
    A("s_lshl_b32 s27, s3, 11")
    A("v_lshl_add_u32 v20, v2, 4, s27")
    A("s_and_b32 s27, s3, 1"); A("s_lshl_b32 s27, s27, 10")
    A("s_lshr_b32 s29, s3, 1"); A("s_lshl_b32 s29, s29, 9"); A("s_add_u32 s27, s27, s29")
    A("v_lshl_add_u32 v21, v2, 4, s27")
    A("s_lshl_b32 s32, s20, 5            ; hkv*32")
    A("s_add_u32 s27, s32, s21"); A("s_lshl2_add_u32 s27, s27, s3"); A("s_lshl_b32 s27, s27, 9")
    A(f"s_add_u32 s27, s27, {WS_O1}")
    A("v_lshl_add_u32 v22, v2, 4, s27")
    A("s_lshl3_add_u32 s33, s3, s32      ; hkv*32 + w*8")
    A("s_lshl_b32 s27, s33, 11"); A("s_lshl_b32 s29, s24, 8"); A("s_add_u32 s27, s27, s29")
    A(f"s_add_u32 s27, s27, {WS_O1}")
    A("v_lshlrev_b32 v23, 12, v4"); A("v_lshlrev_b32 v24, 4, v3")
    A("v_add3_u32 v23, v23, v24, s27")
    A("s_lshl_b32 s27, s33, 7"); A("s_lshr_b32 s29, s24, 2"); A("s_lshl_b32 s29, s29, 4"); A("s_add_u32 s27, s27, s29")
    A(f"s_add_u32 s27, s27, {WS_S1}")
    A("v_lshl_add_u32 v24, v4, 8, s27")
    A("v_bfe_u32 v25, v2, 2, 2"); A("v_lshlrev_b32 v25, 6, v25")
    A("v_lshl_add_u32 v25, v4, 9, v25"); A("v_lshl_add_u32 v25, v10, 3, v25")
    A("v_add_u32 v25, m0, v25")
    A("s_lshl_b32 s27, s3, 7")
    A("v_lshlrev_b32 v26, 1, v4"); A("v_lshl_add_u32 v26, v3, 3, v26"); A("v_add_u32 v26, s27, v26")
    A("v_lshlrev_b32 v27, 4, v4"); A("v_lshl_add_u32 v27, v10, 7, v27")
    A("s_lshl3_add_u32 s34, s20, s24     ; p")
    A("s_lshl_b32 s27, s28, 6"); A("s_add_u32 s27, s27, s34"); A("s_lshl_b32 s27, s27, 9")
    A(f"s_add_u32 s27, s27, {WS_P2}")
    A("v_lshlrev_b32 v28, 4, v4"); A("v_lshl_add_u32 v28, v10, 6, v28"); A("v_add_u32 v28, s27, v28")
    A("v_mov_b32 v29, 0xffffff00")
    A("s_mov_b32 s35, 0x3db8aa3b         ; log2(e)/16")
    A("s_waitcnt lgkmcnt(0)")
    A("s_add_u32 s26, s26, 0x01010101    ; tag")
    A("s_and_b32 s36, s26, 0xff"); A("s_bfe_u32 s37, s26, 0x80008"); A("s_bfe_u32 s38, s26, 0x80010"); A("s_lshr_b32 s39, s26, 24")
    A("s_barrier")
    stamp(3)
    VQ = 40
    for j in range(8):
        A(f"ds_read_b128 {vr(VQ+4*j,4)}, v17 offset:{L_Q + 64*j}")
    S = 32
    A(f"s_waitcnt vmcnt({after(('k',1,7))})")
    stamp(4)
    for j in range(8):
        A(f"s_waitcnt lgkmcnt({7-j})")
        mfma(S, VK + 4*j, VQ + 4*j, None if j == 0 else S)
        mfma(S+4, VK + 32 + 4*j, VQ + 4*j, None if j == 0 else S+4)
    A("s_nop 6")
    T0 = 72
    for i in range(4):
        A(f"v_cvt_pk_bf16_f32 v{T0+i}, v{S+2*i}, v{S+2*i+1}")
    for i in range(4):
        A(f"v_lshlrev_b32 v{S+2*i}, 16, v{T0+i}")
        A(f"v_and_b32 v{S+2*i+1}, 0xffff0000, v{T0+i}")
    M = 76; Lr = 77; TT = 78
    A(f"v_max3_f32 v{M}, v{S}, v{S+1}, v{S+2}")
    A(f"v_max3_f32 v{M}, v{M}, v{S+3}, v{S+4}")
    A(f"v_max3_f32 v{M}, v{M}, v{S+5}, v{S+6}")
    A(f"v_max_f32 v{M}, v{M}, v{S+7}")
    def xred(reg, tmp, op):
        for sw in ("v_permlane32_swap_b32", "v_permlane16_swap_b32"):
            A(f"v_mov_b32 v{tmp}, v{reg}")
            A("s_nop 1")
            A(f"{sw} v{reg}, v{tmp}")
            A(f"{op} v{reg}, v{reg}, v{tmp}")
    xred(M, TT, "v_max_f32")
    for i in range(8): A(f"v_sub_f32 v{S+i}, v{S+i}, v{M}")
    for i in range(8): A(f"v_mul_f32 v{S+i}, s35, v{S+i}")
    for i in range(8): A(f"v_exp_f32 v{S+i}, v{S+i}")
    A(f"v_add_f32 v{Lr}, v{S}, v{S+1}")
    for i in range(2, 8): A(f"v_add_f32 v{Lr}, v{Lr}, v{S+i}")
    xred(Lr, TT, "v_add_f32")
    A(f"ds_write_b64 v19, {vr(M,2)} offset:{L_STAT}")
    A("s_waitcnt lgkmcnt(0)")
    A("s_barrier")
    A(f"ds_read_b128 v[80:83], v18 offset:{L_STAT}")
    A(f"ds_read_b128 v[84:87], v18 offset:{L_STAT+16}")
    A("s_waitcnt lgkmcnt(0)")
    A(f"v_max3_f32 v{TT}, v80, v82, v84")
    A(f"v_max_f32 v{TT}, v{TT}, v86")
    A(f"v_sub_f32 v{TT}, v{M}, v{TT}")
    A(f"v_mul_f32 v{TT}, s35, v{TT}")
    A(f"v_exp_f32 v{TT}, v{TT}")
    A("s_nop 0")
    for i in range(8): A(f"v_mul_f32 v{S+i}, v{S+i}, v{TT}")
    for i in range(8): A(f"v_cvt_pk_bf16_f32 v{S+i}, v{S+i}, v{S+i}")
    VA = 40
    for i in range(8):
        for j in range(4): A(f"v_and_b32 v{VA+4*i+j}, v{S+i}, v{12+j}")
    stamp(5)
    ACC = 88
    first = True
    last_wait = None
    for T in range(2):
        for t in range(4):
            for h in range(2):
                wv = after(("v", T, 2*t + h))
                if T == 0:
                    wv = after(("v", 0, 7))
                if wv != last_wait:
                    A(f"s_waitcnt vmcnt({wv})"); last_wait = wv
                mfma(ACC + 4*h, VA + 16*T + 4*t, VV + 32*T + 8*t + 4*h, None if (T == 0 and t == 0) else ACC + 4*h)
    GS = 96
    gload(GS, 4, 24, "ws", 0, "sc1")
    gload(GS+4, 4, 24, "ws", 128, "sc1")
    A("s_nop 4")
    A(f"ds_write_b128 v20, {vr(ACC,4)} offset:{L_RED}")
    A(f"ds_write_b128 v20, {vr(ACC+4,4)} offset:{L_RED+1024}")
    A("s_waitcnt lgkmcnt(0)")
    stamp(6)
    A("s_barrier")
    A("s_mov_b32 exec_hi, 0")
    R = 104
    for i in range(4): A(f"ds_read_b128 {vr(R+4*i,4)}, v21 offset:{L_RED + 2048*i}")
    A("s_waitcnt lgkmcnt(2)")
    A(f"v_pk_add_f32 {vr(R,2)}, {vr(R,2)}, {vr(R+4,2)}")
    A(f"v_pk_add_f32 {vr(R+2,2)}, {vr(R+2,2)}, {vr(R+6,2)}")
    A("s_waitcnt lgkmcnt(0)")
    A(f"v_pk_add_f32 {vr(R+8,2)}, {vr(R+8,2)}, {vr(R+12,2)}")
    A(f"v_pk_add_f32 {vr(R+10,2)}, {vr(R+10,2)}, {vr(R+14,2)}")
    A(f"v_pk_add_f32 {vr(R,2)}, {vr(R,2)}, {vr(R+8,2)}")
    A(f"v_pk_add_f32 {vr(R+2,2)}, {vr(R+2,2)}, {vr(R+10,2)}")
    for j in range(4): A(f"v_and_or_b32 v{R+j}, v{R+j}, v29, s{36+j}")
    gstore(R, 4, 22, "ws", 0, "sc1")
    A("s_mov_b32 exec_hi, -1")
    GO = 120
    gload(GO, 4, 23, "ws", 0, "sc1")
    gload(GO+4, 4, 23, "ws", 2048, "sc1")
    stamp(7)
    A(f"s_mov_b32 s27, {SPIN}")
    A("s_waitcnt vmcnt(3)")
    WA = 136
    for tau in range(2):
        for s in range(2):
            for e in range(2):
                A(f"ds_read_b64_tr_b16 {vr(WA + 8*tau + 4*s + 2*e, 2)}, v25 offset:{s*2048 + e*256 + tau*32}")
    A("L_spoll:")
    A(f"v_cmp_ne_u32 vcc, s26, v{GS+2}")
    A(f"v_cmp_ne_u32 s[30:31], s26, v{GS+6}")
    A("s_or_b64 vcc, vcc, s[30:31]")
    A("s_cbranch_vccz L_sok")
    gload(GS, 4, 24, "ws", 0, "sc1")
    gload(GS+4, 4, 24, "ws", 128, "sc1")
    A("s_sub_u32 s27, s27, 1")
    A("s_waitcnt vmcnt(0)")
    A("s_cbranch_scc0 L_spoll")
    A("L_sok:")
    A(f"v_max_f32 v{M}, v{GS}, v{GS+4}")
    xred(M, TT, "v_max_f32")
    A(f"v_sub_f32 v{GS}, v{GS}, v{M}"); A(f"v_sub_f32 v{GS+4}, v{GS+4}, v{M}")
    A(f"v_mul_f32 v{GS}, s35, v{GS}"); A(f"v_mul_f32 v{GS+4}, s35, v{GS+4}")
    A(f"v_exp_f32 v{GS}, v{GS}"); A(f"v_exp_f32 v{GS+4}, v{GS+4}")
    A("s_nop 0")
    A(f"v_mul_f32 v{Lr}, v{GS}, v{GS+1}")
    A(f"v_fmac_f32 v{Lr}, v{GS+4}, v{GS+5}")
    xred(Lr, TT, "v_add_f32")
    A(f"v_rcp_f32 v{Lr}, v{Lr}")
    A("s_nop 0")
    A(f"v_mul_f32 v{GS}, v{GS}, v{Lr}"); A(f"v_mul_f32 v{GS+4}, v{GS+4}, v{Lr}")
    stamp(8)
    A(f"s_mov_b32 s27, {SPIN}")
    A("L_opoll:")
    A("s_waitcnt vmcnt(0)")
    for i in range(8): A(f"v_xor_b32 v{GO+i}, s{36 + (i & 3)}, v{GO+i}")
    A(f"v_or3_b32 v{TT}, v{GO}, v{GO+1}, v{GO+2}")
    A(f"v_or3_b32 v{TT}, v{TT}, v{GO+3}, v{GO+4}")
    A(f"v_or3_b32 v{TT}, v{TT}, v{GO+5}, v{GO+6}")
    A(f"v_or_b32 v{TT}, v{TT}, v{GO+7}")
    A(f"v_lshlrev_b32 v{TT}, 24, v{TT}")
    A(f"v_cmp_ne_u32 vcc, 0, v{TT}")
    A("s_cbranch_vccz L_ook")
    if sleep: A(f"s_sleep {sleep}")
    gload(GO, 4, 23, "ws", 0, "sc1")
    gload(GO+4, 4, 23, "ws", 2048, "sc1")
    A("s_sub_u32 s27, s27, 1")
    A("s_cbranch_scc0 L_opoll")
    A("s_waitcnt vmcnt(0)")
    A("L_ook:")
    stamp(9)
    for i in range(4): A(f"v_mul_f32 v{GO+i}, v{GO+i}, v{GS}")
    for i in range(4): A(f"v_fmac_f32 v{GO+i}, v{GO+4+i}, v{GS+4}")
    def tred(r):
        A("s_nop 0")
        A(f"v_permlane32_swap_b32 v{r}, v{r+2}")
        A(f"v_permlane32_swap_b32 v{r+1}, v{r+3}")
        A(f"v_add_f32 v{r}, v{r}, v{r+2}")
        A(f"v_add_f32 v{r+1}, v{r+1}, v{r+3}")
        A("s_nop 1")
        A(f"v_permlane16_swap_b32 v{r}, v{r+1}")
        A(f"v_add_f32 v{r}, v{r}, v{r+1}")
    tred(GO)
    A(f"v_cvt_pk_bf16_f32 v{GO}, v{GO}, v{GO}")
    A(f"ds_write_b16 v26, v{GO} offset:{L_OX}")
    A("s_waitcnt lgkmcnt(0)")
    A("s_barrier")
    A("s_cmp_ge_u32 s28, 14")
    A("s_cbranch_scc1 L_final")
    OB = 152
    A(f"ds_read_b128 {vr(OB,4)}, v27 offset:{L_OX}")
    A(f"ds_read_b128 {vr(OB+4,4)}, v27 offset:{L_OX+64}")
    D = 160
    A("s_waitcnt lgkmcnt(1)")
    mfma(D, WA, OB)
    mfma(D+4, WA+8, OB)
    A("s_waitcnt lgkmcnt(0)")
    mfma(D, WA+4, OB+4, D)
    mfma(D+4, WA+12, OB+4, D+4)
    A("s_mov_b32 exec_lo, 0x000f000f")
    A("s_mov_b32 exec_hi, 0x000f000f")
    A("s_nop 4")
    for j in range(4): A(f"v_and_or_b32 v{D+j}, v{D+j}, v29, s{36+j}")
    gstore(D, 4, 28, "ws", 0, "sc1")
    for j in range(4): A(f"v_and_or_b32 v{D+4+j}, v{D+4+j}, v29, s{36+j}")
    gstore(D+4, 4, 28, "ws", 256, "sc1")
    stamp(10)
    stamp_flush()
    A("s_endpgm")

    A("L_final:")
    A("s_cmp_eq_u32 s24, 7")
    A("s_cbranch_scc1 L_end2")
    A("s_lshl3_add_u32 s27, s24, s20")
    A("s_lshr_b32 s29, s27, 2"); A("s_lshl_b32 s29, s29, 15")
    A("s_and_b32 s30, s27, 3"); A("s_lshl_b32 s30, s30, 7"); A("s_add_u32 s29, s29, s30")
    A("s_and_b32 s31, s3, 1"); A("s_lshl_b32 s30, s31, 6"); A("s_add_u32 s29, s29, s30")
    A(f"s_add_u32 s29, s29, {WS_P2}")
    A("v_lshrrev_b32 v30, 2, v2"); A("v_lshlrev_b32 v30, 11, v30")
    A("v_add3_u32 v30, v30, v11, s29")
    F = 160
    for j in range(4): gload(F + 4*j, 4, 30, "ws", 512*j, "sc1")
    A("s_and_b32 s29, s27, 1"); A("s_lshl1_add_u32 s29, s29, s31"); A("s_mul_i32 s29, s29, 896")
    A("s_lshr_b32 s30, s27, 1"); A("s_lshl_b32 s30, s30, 5"); A("s_add_u32 s29, s29, s30")
    A("v_lshlrev_b32 v31, 1, v4"); A("v_lshl_add_u32 v31, v10, 3, v31"); A("v_add_u32 v31, s29, v31")
    A("s_lshl1_add_u32 s33, s27, s31")
    A(f"s_mov_b32 s27, {SPIN}")
    A("L_fpoll:")
    for j in range(4):
        A(f"s_waitcnt vmcnt({3-j})")
        for i in range(4): A(f"v_xor_b32 v{F+4*j+i}, s{36+i}, v{F+4*j+i}")
        if j == 0:
            A(f"v_or_b32 v{TT}, v{F}, v{F+1}")
            A(f"v_or3_b32 v{TT}, v{TT}, v{F+2}, v{F+3}")
        else:
            A(f"v_or3_b32 v{TT}, v{TT}, v{F+4*j}, v{F+4*j+1}")
            A(f"v_or3_b32 v{TT}, v{TT}, v{F+4*j+2}, v{F+4*j+3}")
            A(f"v_pk_add_f32 {vr(F,2)}, {vr(F,2)}, {vr(F+4*j,2)}")
            A(f"v_pk_add_f32 {vr(F+2,2)}, {vr(F+2,2)}, {vr(F+4*j+2,2)}")
    A(f"v_lshlrev_b32 v{TT}, 24, v{TT}")
    A(f"v_cmp_ne_u32 vcc, 0, v{TT}")
    A("s_cbranch_vccz L_fok")
    if sleep: A(f"s_sleep {sleep}")
    for j in range(4): gload(F + 4*j, 4, 30, "ws", 512*j, "sc1")
    A("s_sub_u32 s27, s27, 1")
    A("s_cbranch_scc0 L_fpoll")
    A("s_waitcnt vmcnt(0)")
    A("L_fok:")
    stamp(10)
    tred(F)
    A("s_nop 1")
    A(f"v_add_f32_dpp v{F}, v{F}, v{F} row_ror:8 row_mask:0xf bank_mask:0xf")
    A("s_nop 1")
    A(f"v_add_f32_dpp v{F}, v{F}, v{F} row_ror:4 row_mask:0xf bank_mask:0xf")
    A("s_mov_b32 exec_lo, 0x000f000f")
    A("s_mov_b32 exec_hi, 0x000f000f")
    A(f"v_cvt_pk_bf16_f32 v{F}, v{F}, v{F}")
    gstore(F, 0, 31, "out", 0, outflags)
    A("s_cmp_eq_u32 s33, 0")
    A("s_cbranch_scc0 L_end2")
    A("s_mov_b64 exec, 1")
    A("v_mov_b32 v30, 0"); A("v_mov_b32 v31, s26")
    gstore(31, 1, 30, "ws", WS_E, "sc1")
    A("L_end2:")
    if stamps:
        A("s_waitcnt vmcnt(0)")
        stamp(11)
        stamp_flush()
    A("L_end:")
    A("s_endpgm")

    A("L_help2:")
    if stamps:
        A(f"v_writelane_b32 v{STB}, s42, 0")
    stamp(1)
    A("v_and_b32 v10, 3, v2")
    A("v_mul_u32_u24 v5, 896, v10")
    A("v_lshl_add_u32 v5, v4, 4, v5")
    A("v_lshlrev_b32 v7, 3, v3")
    A("v_lshl_add_u32 v7, v4, 8, v7")
    A("s_lshl_b32 s32, s20, 5")
    A("s_add_u32 s33, s32, s21           ; hkv*32 + r")
    A("s_lshl_b32 s27, s33, 8"); A(f"s_add_u32 s27, s27, {WS_Q1}")
    A("v_lshlrev_b32 v8, 4, v4"); A("v_lshl_add_u32 v8, v10, 6, v8"); A("v_add_u32 v8, s27, v8")
    A("s_lshr_b32 s22, s2, 6")
    A("s_lshl_b32 s27, s20, 13"); A("s_lshl_b32 s29, s22, 6"); A("s_add_u32 s27, s27, s29"); A(f"s_add_u32 s27, s27, {WS_Q1}")
    A("v_lshrrev_b32 v9, 2, v2"); A("v_lshlrev_b32 v9, 8, v9"); A("v_lshlrev_b32 v11, 4, v10")
    A("v_add3_u32 v9, v9, v11, s27")
    A("v_add_u32 v11, 0x1000, v9")
    A("v_lshlrev_b32 v12, 3, v2")
    A("s_waitcnt lgkmcnt(0)")
    A("s_add_u32 s26, s26, 0x01010101    ; tag")
    A("v_mov_b32 v18, s26"); A("v_mov_b32 v19, s26")
    XB = 24; WQA = 80
    A("s_waitcnt vmcnt(14)")
    stamp(2)
    for s in range(14): A(f"ds_read_b128 {vr(XB+4*s,4)}, v5 offset:{L_X + 64*s}")
    A("s_waitcnt lgkmcnt(0)")
    QD = 20
    pend = []
    groups = [(0, 4), (4, 8), (8, 11), (11, 13), (13, 14)]
    for gi, (a, b) in enumerate(groups):
        A(f"s_waitcnt vmcnt({14-b})")
        for s in range(a, b):
            A(f"ds_read_b64_tr_b16 {vr(WQA+4*s,2)}, v7 offset:{L_WQ + 1024*s}")
            A(f"ds_read_b64_tr_b16 {vr(WQA+4*s+2,2)}, v7 offset:{L_WQ + 1024*s + 128}")
        for s in range(a, b):
            A(f"s_waitcnt lgkmcnt({2*(b-1-s)})")
            mfma(QD, WQA + 4*s, XB + 4*s, None if s == 0 else QD)
    A("s_mov_b32 exec_lo, 0x000f000f")
    A("s_mov_b32 exec_hi, 0x000f000f")
    A("s_nop 5")
    A(f"v_cvt_pk_bf16_f32 v16, v{QD}, v{QD+1}")
    A(f"v_cvt_pk_bf16_f32 v17, v{QD+2}, v{QD+3}")
    gstore(16, 4, 8, "ws", 0, "sc1")
    A("s_mov_b64 exec, -1")
    stamp(3)
    A("v_mov_b32 v13, 0")
    gload(6, 1, 13, "out")
    A(f"s_mov_b32 s27, {SPIN}")
    A("L_qpoll:")
    gload(24, 4, 9, "ws", 0, "sc1")
    gload(28, 4, 11, "ws", 0, "sc1")
    A("s_waitcnt vmcnt(0)")
    A("v_cmp_ne_u32 vcc, s26, v26")
    A("v_cmp_ne_u32 s[30:31], s26, v30")
    A("s_or_b64 vcc, vcc, s[30:31]")
    A("s_cbranch_vccz L_qok")
    A("s_sub_u32 s27, s27, 1")
    A("s_cbranch_scc0 L_qpoll")
    A("L_qok:")
    A(f"ds_write_b64 v12, v[24:25] offset:{L_Q}")
    A(f"ds_write_b64 v12, v[28:29] offset:{L_Q+576}")
    if stamps:
        A(f"v_writelane_b32 v{STB}, s27, 12")
    A("s_waitcnt lgkmcnt(0)")
    stamp(4)
    A("s_barrier                         ; B1")
    A("v_lshlrev_b32 v5, 5, v2")
    A("s_lshl_b32 s27, s33, 7"); A(f"s_add_u32 s27, s27, {WS_S1}")
    A("v_lshl_add_u32 v7, v2, 4, s27")
    A("s_mov_b32 s35, 0x3db8aa3b")
    A("s_mov_b64 exec, 3")
    A("s_barrier                         ; B2")
    A(f"ds_read_b128 v[24:27], v5 offset:{L_STAT}")
    A(f"ds_read_b128 v[28:31], v5 offset:{L_STAT+16}")
    A("s_waitcnt lgkmcnt(0)")
    A("v_max3_f32 v16, v24, v26, v28")
    A("v_max_f32 v16, v16, v30")
    for i in range(4): A(f"v_sub_f32 v{24+2*i}, v{24+2*i}, v16")
    for i in range(4): A(f"v_mul_f32 v{24+2*i}, s35, v{24+2*i}")
    for i in range(4): A(f"v_exp_f32 v{24+2*i}, v{24+2*i}")
    A("v_mul_f32 v17, v24, v25")
    for i in range(1, 4): A(f"v_fmac_f32 v17, v{24+2*i}, v{25+2*i}")
    gstore(16, 4, 7, "ws", 0, "sc1")
    stamp(5)
    stamp_flush()
    A("s_endpgm")
    A("L_codeend:")

    nv = 204 if stamps else 200
    A('.section .rodata,"a"'); A(".p2align 6"); A(f".amdhsa_kernel {NAME}")
    A(f"  .amdhsa_next_free_vgpr {nv}"); A(f"  .amdhsa_next_free_sgpr {96 if safe else 48}"); A(f"  .amdhsa_accum_offset {nv}")
    A("  .amdhsa_group_segment_fixed_size 0"); A("  .amdhsa_kernarg_size 64"); A("  .amdhsa_user_sgpr_count 2")
    A("  .amdhsa_user_sgpr_kernarg_segment_ptr 1"); A("  .amdhsa_system_sgpr_workgroup_id_x 1")
    A("  .amdhsa_float_denorm_mode_32 3")
    A(".end_amdhsa_kernel")
    out = []
    for l in L:
        if l.endswith(":") or l.startswith(".") or l.startswith(";") or l.startswith("  ."):
            out.append(l)
        else:
            out.append("    " + l.rstrip())
    return HEADER + "\n".join(out) + "\n"


if __name__ == "__main__":
    kw = {}
    for a in sys.argv[2:]:
        k, v = a.split("=")
        kw[k] = eval(v) if v in ("True", "False") or v.isdigit() else v
    open(sys.argv[1], "w").write(gen(**kw))
```

```python
import sys

NAME = "standalone__sliding_block_cached__decode_kernel"

HEADER = """; Kernarg layout for this problem (64 bytes, ptrs only, base s[0:1]):
"""

WS_E = 0
WS_Q1 = 0x1000
WS_S1 = 0x11000
WS_O1 = 0x20000
WS_P2 = 0xA0000
WS_ST = 0x200000

L_WQ = 0
L_X = 14336
L_Q = 18432
L_STAT = 19712
L_OX = 19968
L_RED = 20480
L_WO = 28672
L_END = 45056

BUF = dict(x=4, k=6, v=8, wq=10, wo=12, out=14, dbg=16, ws=18)
SIZE = dict(x=3584, k=67108864, v=67108864, wq=3670016, wo=3670016, out=3584, dbg=256, ws=268435456)
SRD = dict(x=64, k=68, v=72, wq=76, wo=80, out=84, ws=88)

SPIN = 200000


def gen(safe=False, stamps=False, order="kkvv", kvflags="nt", wqflags="nt", woflags="nt", b0=True,
        outflags="", sleep=0, probe="", pmask=0, pval=0):
    L = []
    A = L.append

    def vr(r, n=1):
        return f"v{r}" if n == 1 else f"v[{r}:{r+n-1}]"

    W = {1: "dword", 2: "dwordx2", 3: "dwordx3", 4: "dwordx4"}

    def gload(dst, n, voff, buf, imm=0, fl=""):
        if safe:
            A(f"buffer_load_{W[n]} {vr(dst,n)}, v{voff}, s[{SRD[buf]}:{SRD[buf]+3}], 0 offen offset:{imm} {fl}")
        else:
            A(f"global_load_{W[n]} {vr(dst,n)}, v{voff}, s[{BUF[buf]}:{BUF[buf]+1}] offset:{imm} {fl}")

    def gdma(voff, buf, imm=0, fl=""):
        if safe:
            A(f"buffer_load_dwordx4 v{voff}, s[{SRD[buf]}:{SRD[buf]+3}], 0 offen offset:{imm} {fl} lds")
        else:
            A(f"global_load_lds_dwordx4 v{voff}, s[{BUF[buf]}:{BUF[buf]+1}] offset:{imm} {fl}")

    def gstore(src, n, voff, buf, imm=0, fl=""):
        w = "short" if n == 0 else W[n]
        n = max(n, 1)
        if safe:
            A(f"buffer_store_{w} {vr(src,n)}, v{voff}, s[{SRD[buf]}:{SRD[buf]+3}], 0 offen offset:{imm} {fl}")
        else:
            A(f"global_store_{w} v{voff}, {vr(src,n)}, s[{BUF[buf]}:{BUF[buf]+1}] offset:{imm} {fl}")

    def srds():
        if safe:
            for b, s in SRD.items():
                A(f"s_mov_b32 s{s}, s{BUF[b]}"); A(f"s_mov_b32 s{s+1}, s{BUF[b]+1}")
                A(f"s_mov_b32 s{s+2}, {SIZE[b]}"); A(f"s_mov_b32 s{s+3}, 0x20000")

    nst = [0]
    STB = 200
    role = ["s"]
    def probe_spin():
        if probe and probe[0] == role[0]:
            if role[0] == "h":
                A("s_barrier"); A("s_barrier")
            nst[0] += 1
            A(f"s_and_b32 s40, s2, {pmask}"); A(f"s_cmp_eq_u32 s40, {pval}"); A(f"s_cbranch_scc0 L_probx{nst[0]}")
            A(f"L_probe{nst[0]}:")
            A("s_memrealtime s[40:41]"); A("s_waitcnt lgkmcnt(0)")
            A("s_sub_u32 s40, s40, s42"); A("s_cmpk_lt_u32 s40, 4000"); A(f"s_cbranch_scc1 L_probe{nst[0]}")
            A(f"L_probx{nst[0]}:")
    def stamp(i):
        if probe == f"{role[0]}{i}":
            A("s_memrealtime s[42:43]")
            A("s_waitcnt lgkmcnt(0)")
        if stamps:
            A("s_memrealtime s[40:41]")
            A("s_waitcnt lgkmcnt(0)")
            A(f"v_writelane_b32 v{STB}, s40, {i}")

    def stamp_flush():
        if stamps:
            A("s_mov_b64 exec, -1")
            A("s_mul_i32 s40, s2, 5"); A("s_add_u32 s40, s40, s3"); A("s_lshl_b32 s40, s40, 7")
            A(f"s_add_u32 s40, s40, {WS_ST}")
            A(f"v_lshl_add_u32 v{STB+1}, v2, 2, s40")
            A("s_mov_b32 exec_hi, 0")
            gstore(STB, 1, STB + 1, "ws")

    def mfma(d, a, b, c=None):
        cs = "0" if c is None else vr(c, 4)
        A(f"v_mfma_f32_16x16x32_bf16 {vr(d,4)}, {vr(a,4)}, {vr(b,4)}, {cs}")

    A(f"; @launch grid=(256,1,1) block=(320,1,1) lds={L_END}")
    A('.amdgcn_target "amdgcn-amd-amdhsa--gfx950"')
    A(".text"); A(f".globl {NAME}"); A(".p2align 8"); A(f".type {NAME},@function"); A(f"{NAME}:")
    if stamps or probe:
        A("s_memrealtime s[42:43]")
    A("s_cmpk_ge_u32 s2, 0x100")
    A("s_cbranch_scc1 L_end")
    A("s_load_dwordx16 s[4:19], s[0:1], 0")
    A("v_readfirstlane_b32 s3, v0")
    A("v_and_b32 v2, 63, v0              ; lane")
    A("v_and_b32 v3, 15, v0              ; n")
    A("v_bfe_u32 v4, v0, 4, 2            ; g")
    A("s_and_b32 s20, s2, 7              ; hkv")
    A("s_lshr_b32 s21, s2, 3             ; r")
    A("s_lshr_b32 s3, s3, 6              ; wave")
    A("s_cmp_eq_u32 s3, 4")
    A("s_cbranch_scc0 L_stream")

    A("s_setprio 3")
    A("s_getpc_b64 s[22:23]")
    A("L_pc:")
    A("v_lshlrev_b32 v5, 7, v2")
    A("v_min_u32 v5, L_codeend-L_pc-4, v5")
    A("global_load_dword v6, v5, s[22:23]")
    A("v_lshlrev_b32 v5, 4, v2           ; x offset")
    A("v_lshrrev_b32 v7, 1, v2")
    A("v_lshlrev_b32 v7, 13, v7")
    A("v_and_b32 v8, 16, v5")
    A("s_lshl_b32 s24, s20, 10")
    A("s_lshl_b32 s25, s21, 5")
    A("s_add_u32 s24, s24, s25")
    A("v_add3_u32 v7, v7, v8, s24")
    A(f"v_add_u32 v8, {262144-1024}, v7")
    A(f"s_movk_i32 m0, {L_X}")
    A("s_mov_b32 s25, 0x80000")
    A("s_waitcnt lgkmcnt(0)")
    srds()
    A(f"s_load_dword s26, s[18:19], {WS_E}")
    gdma(5, "x", 0); gdma(5, "x", 1024); gdma(5, "x", 2048)
    A("s_mov_b32 exec_hi, 0")
    gdma(5, "x", 3072)
    A("s_mov_b32 exec_hi, -1")
    A(f"s_mov_b32 m0, {L_WQ}")
    A("s_nop 0")
    A("L_wq:")
    gdma(7, "wq", 0, wqflags)
    gdma(8, "wq", 1024, wqflags)
    A("s_addk_i32 m0, 0x800")
    A("v_add_u32 v7, s25, v7")
    A("v_add_u32 v8, s25, v8")
    A(f"s_cmpk_lt_u32 m0, {L_WQ+14336}")
    A("s_cbranch_scc1 L_wq")
    if b0:
        A("s_barrier                         ; B0")
    A("s_branch L_help2")

    A("L_stream:")
    VK = 72; VV = 136
    A("s_lshr_b32 s22, s2, 6             ; b")
    A("s_lshl3_add_u32 s23, s22, s20     ; b*8+hkv")
    A("s_lshl_b32 s23, s23, 21")
    A("s_and_b32 s24, s21, 7             ; c / dd")
    A("s_lshl3_add_u32 s25, s24, s3      ; c*8+w")
    A("s_lshl_b32 s25, s25, 13")
    A("s_add_u32 s23, s23, s25")
    A("s_add_u32 s23, s23, 0x180000")
    A("v_lshlrev_b32 v5, 9, v3")
    A("v_lshlrev_b32 v6, 4, v4")
    A("v_add3_u32 v5, v5, v6, s23        ; K tile0")
    A("v_add_u32 v6, 0x8000, v5          ; K tile1")
    A("v_lshlrev_b32 v7, 4, v3")
    A("v_lshlrev_b32 v8, 11, v4")
    A("v_add3_u32 v7, v7, v8, s23        ; V tile0")
    A("v_add_u32 v8, 0x8000, v7          ; V tile1")
    A("s_waitcnt lgkmcnt(0)")
    srds()
    if stamps:
        A(f"v_writelane_b32 v{STB}, s42, 0")
    if b0:
        A("s_barrier                         ; B0")
    stamp(1)
    seq = []
    def kt(T): return [("k", T, j) for j in range(8)]
    def vt(T): return [("v", T, j) for j in range(8)]
    if order == "kkvv": seq = kt(0) + kt(1) + vt(0) + vt(1)
    elif order == "kvkv": seq = kt(0) + vt(0) + kt(1) + vt(1)
    for (b, T, j) in seq:
        if b == "k": gload(VK + T*32 + j*4, 4, 5 + T, "k", j*64, kvflags)
        else: gload(VV + T*32 + j*4, 4, 7 + T, "v", (j >> 1)*512 + (j & 1)*256, kvflags)
    NWO = 4
    def after(item):
        return len(seq) - 1 - seq.index(item) + NWO
    A(f"s_load_dword s26, s[18:19], {WS_E}")
    A("s_lshr_b32 s27, s24, 1")
    A("s_lshl2_add_u32 s27, s20, s27")
    A("s_lshl_b32 s27, s27, 5")
    A("s_and_b32 s28, s24, 1")
    A("s_add_u32 s27, s27, s28           ; row0/4")
    A("s_mul_i32 s27, s27, 3584          ; row0*896")
    A("s_lshl2_add_u32 s28, s22, s3")
    A("s_cmp_ge_u32 s28, 14")
    A("s_cselect_b32 s29, 2, 0")
    A("s_cselect_b64 s[30:31], 1, -1")
    A("s_sub_u32 s29, s28, s29")
    A("s_lshl_b32 s29, s29, 6")
    A("s_add_u32 s27, s27, s29")
    A("v_bfe_u32 v9, v2, 2, 2")
    A("v_lshl_add_u32 v9, v4, 3, v9")
    A("v_mul_u32_u24 v9, 896, v9")
    A("v_and_b32 v10, 3, v2")
    A("v_lshlrev_b32 v11, 4, v10")
    A("v_add3_u32 v9, v9, v11, s27")
    A("s_lshl_b32 s29, s3, 12")
    A(f"s_add_u32 s29, s29, {L_WO}")
    A("s_mov_b32 m0, s29")
    A("s_mov_b64 exec, s[30:31]")
    for u in range(4):
        gdma(9, "wo", u*1024, woflags)
        if u < 3: A(f"v_add_u32 v9, {28672-1024}, v9")
    A("s_mov_b64 exec, -1")
    stamp(2)
    A("v_and_b32 v16, 1, v2")
    A("v_lshlrev_b32 v16, 4, v16")
    A("v_mov_b32 v17, 0xffff")
    A("v_lshlrev_b32 v16, v16, v17")
    A("v_bfe_u32 v17, v2, 1, 2")
    for j in range(4):
        A(f"v_cmp_eq_u32 vcc, {j}, v17")
        A("s_nop 1")
        A(f"v_cndmask_b32 v{12+j}, 0, v16, vcc")
    A("v_bfe_u32 v16, v2, 3, 1           ; h")
    A("v_mul_u32_u24 v17, 576, v16")
    A("v_lshl_add_u32 v17, v4, 4, v17")
    A("v_lshlrev_b32 v18, 5, v16")
    A("s_lshl_b32 s27, s3, 3")
    A("v_add_u32 v19, s27, v18")
    A("s_lshl_b32 s27, s3, 11")
    A("v_lshl_add_u32 v20, v2, 4, s27")
    A("s_and_b32 s27, s3, 1"); A("s_lshl_b32 s27, s27, 10")
    A("s_lshr_b32 s29, s3, 1"); A("s_lshl_b32 s29, s29, 9"); A("s_add_u32 s27, s27, s29")
    A("v_lshl_add_u32 v21, v2, 4, s27")
    A("s_lshl_b32 s32, s20, 5            ; hkv*32")
    A("s_add_u32 s27, s32, s21"); A("s_lshl2_add_u32 s27, s27, s3"); A("s_lshl_b32 s27, s27, 9")
    A(f"s_add_u32 s27, s27, {WS_O1}")
    A("v_lshl_add_u32 v22, v2, 4, s27")
    A("s_lshl3_add_u32 s33, s3, s32      ; hkv*32 + w*8")
    A("s_lshl_b32 s27, s33, 11"); A("s_lshl_b32 s29, s24, 8"); A("s_add_u32 s27, s27, s29")
    A(f"s_add_u32 s27, s27, {WS_O1}")
    A("v_lshlrev_b32 v23, 12, v4"); A("v_lshlrev_b32 v24, 4, v3")
    A("v_add3_u32 v23, v23, v24, s27")
    A("s_lshl_b32 s27, s33, 7"); A("s_lshr_b32 s29, s24, 2"); A("s_lshl_b32 s29, s29, 4"); A("s_add_u32 s27, s27, s29")
    A(f"s_add_u32 s27, s27, {WS_S1}")
    A("v_lshl_add_u32 v24, v4, 8, s27")
    A("v_bfe_u32 v25, v2, 2, 2"); A("v_lshlrev_b32 v25, 6, v25")
    A("v_lshl_add_u32 v25, v4, 9, v25"); A("v_lshl_add_u32 v25, v10, 3, v25")
    A("v_add_u32 v25, m0, v25")
    A("s_lshl_b32 s27, s3, 7")
    A("v_lshlrev_b32 v26, 1, v4"); A("v_lshl_add_u32 v26, v3, 3, v26"); A("v_add_u32 v26, s27, v26")
    A("v_lshlrev_b32 v27, 4, v4"); A("v_lshl_add_u32 v27, v10, 7, v27")
    A("s_lshl3_add_u32 s34, s20, s24     ; p")
    A("s_lshl_b32 s27, s28, 6"); A("s_add_u32 s27, s27, s34"); A("s_lshl_b32 s27, s27, 9")
    A(f"s_add_u32 s27, s27, {WS_P2}")
    A("v_lshlrev_b32 v28, 4, v4"); A("v_lshl_add_u32 v28, v10, 6, v28"); A("v_add_u32 v28, s27, v28")
    A("v_mov_b32 v29, 0xffffff00")
    A("s_mov_b32 s35, 0x3db8aa3b         ; log2(e)/16")
    A("s_waitcnt lgkmcnt(0)")
    A("s_add_u32 s26, s26, 0x01010101    ; tag")
    A("s_and_b32 s36, s26, 0xff"); A("s_bfe_u32 s37, s26, 0x80008"); A("s_bfe_u32 s38, s26, 0x80010"); A("s_lshr_b32 s39, s26, 24")
    A("s_barrier")
    stamp(3)
    VQ = 40
    for j in range(8):
        A(f"ds_read_b128 {vr(VQ+4*j,4)}, v17 offset:{L_Q + 64*j}")
    S = 32
    A(f"s_waitcnt vmcnt({after(('k',1,7))})")
    stamp(4)
    for j in range(8):
        A(f"s_waitcnt lgkmcnt({7-j})")
        mfma(S, VK + 4*j, VQ + 4*j, None if j == 0 else S)
        mfma(S+4, VK + 32 + 4*j, VQ + 4*j, None if j == 0 else S+4)
    A("s_nop 6")
    T0 = 72
    for i in range(4):
        A(f"v_cvt_pk_bf16_f32 v{T0+i}, v{S+2*i}, v{S+2*i+1}")
    for i in range(4):
        A(f"v_lshlrev_b32 v{S+2*i}, 16, v{T0+i}")
        A(f"v_and_b32 v{S+2*i+1}, 0xffff0000, v{T0+i}")
    M = 76; Lr = 77; TT = 78
    A(f"v_max3_f32 v{M}, v{S}, v{S+1}, v{S+2}")
    A(f"v_max3_f32 v{M}, v{M}, v{S+3}, v{S+4}")
    A(f"v_max3_f32 v{M}, v{M}, v{S+5}, v{S+6}")
    A(f"v_max_f32 v{M}, v{M}, v{S+7}")
    def xred(reg, tmp, op):
        for sw in ("v_permlane32_swap_b32", "v_permlane16_swap_b32"):
            A(f"v_mov_b32 v{tmp}, v{reg}")
            A("s_nop 1")
            A(f"{sw} v{reg}, v{tmp}")
            A(f"{op} v{reg}, v{reg}, v{tmp}")
    xred(M, TT, "v_max_f32")
    for i in range(8): A(f"v_sub_f32 v{S+i}, v{S+i}, v{M}")
    for i in range(8): A(f"v_mul_f32 v{S+i}, s35, v{S+i}")
    for i in range(8): A(f"v_exp_f32 v{S+i}, v{S+i}")
    A(f"v_add_f32 v{Lr}, v{S}, v{S+1}")
    for i in range(2, 8): A(f"v_add_f32 v{Lr}, v{Lr}, v{S+i}")
    xred(Lr, TT, "v_add_f32")
    A(f"ds_write_b64 v19, {vr(M,2)} offset:{L_STAT}")
    A("s_waitcnt lgkmcnt(0)")
    A("s_barrier")
    A(f"ds_read_b128 v[80:83], v18 offset:{L_STAT}")
    A(f"ds_read_b128 v[84:87], v18 offset:{L_STAT+16}")
    A("s_waitcnt lgkmcnt(0)")
    A(f"v_max3_f32 v{TT}, v80, v82, v84")
    A(f"v_max_f32 v{TT}, v{TT}, v86")
    A(f"v_sub_f32 v{TT}, v{M}, v{TT}")
    A(f"v_mul_f32 v{TT}, s35, v{TT}")
    A(f"v_exp_f32 v{TT}, v{TT}")
    A("s_nop 0")
    for i in range(8): A(f"v_mul_f32 v{S+i}, v{S+i}, v{TT}")
    for i in range(8): A(f"v_cvt_pk_bf16_f32 v{S+i}, v{S+i}, v{S+i}")
    VA = 40
    for i in range(8):
        for j in range(4): A(f"v_and_b32 v{VA+4*i+j}, v{S+i}, v{12+j}")
    stamp(5)
    ACC = 88
    first = True
    last_wait = None
    for T in range(2):
        for t in range(4):
            for h in range(2):
                wv = after(("v", T, 2*t + h))
                if T == 0:
                    wv = after(("v", 0, 7))
                if wv != last_wait:
                    A(f"s_waitcnt vmcnt({wv})"); last_wait = wv
                mfma(ACC + 4*h, VA + 16*T + 4*t, VV + 32*T + 8*t + 4*h, None if (T == 0 and t == 0) else ACC + 4*h)
    GS = 96
    gload(GS, 4, 24, "ws", 0, "sc1")
    gload(GS+4, 4, 24, "ws", 128, "sc1")
    A("s_nop 4")
    A(f"ds_write_b128 v20, {vr(ACC,4)} offset:{L_RED}")
    A(f"ds_write_b128 v20, {vr(ACC+4,4)} offset:{L_RED+1024}")
    A("s_waitcnt lgkmcnt(0)")
    stamp(6)
    A("s_barrier")
    A("s_mov_b32 exec_hi, 0")
    R = 104
    for i in range(4): A(f"ds_read_b128 {vr(R+4*i,4)}, v21 offset:{L_RED + 2048*i}")
    A("s_waitcnt lgkmcnt(2)")
    A(f"v_pk_add_f32 {vr(R,2)}, {vr(R,2)}, {vr(R+4,2)}")
    A(f"v_pk_add_f32 {vr(R+2,2)}, {vr(R+2,2)}, {vr(R+6,2)}")
    A("s_waitcnt lgkmcnt(0)")
    A(f"v_pk_add_f32 {vr(R+8,2)}, {vr(R+8,2)}, {vr(R+12,2)}")
    A(f"v_pk_add_f32 {vr(R+10,2)}, {vr(R+10,2)}, {vr(R+14,2)}")
    A(f"v_pk_add_f32 {vr(R,2)}, {vr(R,2)}, {vr(R+8,2)}")
    A(f"v_pk_add_f32 {vr(R+2,2)}, {vr(R+2,2)}, {vr(R+10,2)}")
    for j in range(4): A(f"v_and_or_b32 v{R+j}, v{R+j}, v29, s{36+j}")
    gstore(R, 4, 22, "ws", 0, "sc1")
    A("s_mov_b32 exec_hi, -1")
    GO = 120
    gload(GO, 4, 23, "ws", 0, "sc1")
    gload(GO+4, 4, 23, "ws", 2048, "sc1")
    stamp(7)
    A(f"s_mov_b32 s27, {SPIN}")
    A("s_waitcnt vmcnt(3)")
    WA = 136
    for tau in range(2):
        for s in range(2):
            for e in range(2):
                A(f"ds_read_b64_tr_b16 {vr(WA + 8*tau + 4*s + 2*e, 2)}, v25 offset:{s*2048 + e*256 + tau*32}")
    A("L_spoll:")
    A(f"v_cmp_ne_u32 vcc, s26, v{GS+2}")
    A(f"v_cmp_ne_u32 s[30:31], s26, v{GS+6}")
    A("s_or_b64 vcc, vcc, s[30:31]")
    A("s_cbranch_vccz L_sok")
    gload(GS, 4, 24, "ws", 0, "sc1")
    gload(GS+4, 4, 24, "ws", 128, "sc1")
    A("s_sub_u32 s27, s27, 1")
    A("s_waitcnt vmcnt(0)")
    A("s_cbranch_scc0 L_spoll")
    A("L_sok:")
    A(f"v_max_f32 v{M}, v{GS}, v{GS+4}")
    xred(M, TT, "v_max_f32")
    A(f"v_sub_f32 v{GS}, v{GS}, v{M}"); A(f"v_sub_f32 v{GS+4}, v{GS+4}, v{M}")
    A(f"v_mul_f32 v{GS}, s35, v{GS}"); A(f"v_mul_f32 v{GS+4}, s35, v{GS+4}")
    A(f"v_exp_f32 v{GS}, v{GS}"); A(f"v_exp_f32 v{GS+4}, v{GS+4}")
    A("s_nop 0")
    A(f"v_mul_f32 v{Lr}, v{GS}, v{GS+1}")
    A(f"v_fmac_f32 v{Lr}, v{GS+4}, v{GS+5}")
    xred(Lr, TT, "v_add_f32")
    A(f"v_rcp_f32 v{Lr}, v{Lr}")
    A("s_nop 0")
    A(f"v_mul_f32 v{GS}, v{GS}, v{Lr}"); A(f"v_mul_f32 v{GS+4}, v{GS+4}, v{Lr}")
    stamp(8)
    A(f"s_mov_b32 s27, {SPIN}")
    A("L_opoll:")
    A("s_waitcnt vmcnt(0)")
    for i in range(8): A(f"v_xor_b32 v{GO+i}, s{36 + (i & 3)}, v{GO+i}")
    A(f"v_or3_b32 v{TT}, v{GO}, v{GO+1}, v{GO+2}")
    A(f"v_or3_b32 v{TT}, v{TT}, v{GO+3}, v{GO+4}")
    A(f"v_or3_b32 v{TT}, v{TT}, v{GO+5}, v{GO+6}")
    A(f"v_or_b32 v{TT}, v{TT}, v{GO+7}")
    A(f"v_lshlrev_b32 v{TT}, 24, v{TT}")
    A(f"v_cmp_ne_u32 vcc, 0, v{TT}")
    A("s_cbranch_vccz L_ook")
    if sleep: A(f"s_sleep {sleep}")
    gload(GO, 4, 23, "ws", 0, "sc1")
    gload(GO+4, 4, 23, "ws", 2048, "sc1")
    A("s_sub_u32 s27, s27, 1")
    A("s_cbranch_scc0 L_opoll")
    A("s_waitcnt vmcnt(0)")
    A("L_ook:")
    stamp(9)
    for i in range(4): A(f"v_mul_f32 v{GO+i}, v{GO+i}, v{GS}")
    for i in range(4): A(f"v_fmac_f32 v{GO+i}, v{GO+4+i}, v{GS+4}")
    def tred(r):
        A("s_nop 0")
        A(f"v_permlane32_swap_b32 v{r}, v{r+2}")
        A(f"v_permlane32_swap_b32 v{r+1}, v{r+3}")
        A(f"v_add_f32 v{r}, v{r}, v{r+2}")
        A(f"v_add_f32 v{r+1}, v{r+1}, v{r+3}")
        A("s_nop 1")
        A(f"v_permlane16_swap_b32 v{r}, v{r+1}")
        A(f"v_add_f32 v{r}, v{r}, v{r+1}")
    tred(GO)
    A(f"v_cvt_pk_bf16_f32 v{GO}, v{GO}, v{GO}")
    A(f"ds_write_b16 v26, v{GO} offset:{L_OX}")
    A("s_waitcnt lgkmcnt(0)")
    A("s_barrier")
    A("s_cmp_ge_u32 s28, 14")
    A("s_cbranch_scc1 L_final")
    OB = 152
    A(f"ds_read_b128 {vr(OB,4)}, v27 offset:{L_OX}")
    A(f"ds_read_b128 {vr(OB+4,4)}, v27 offset:{L_OX+64}")
    D = 160
    A("s_waitcnt lgkmcnt(1)")
    mfma(D, WA, OB)
    mfma(D+4, WA+8, OB)
    A("s_waitcnt lgkmcnt(0)")
    mfma(D, WA+4, OB+4, D)
    mfma(D+4, WA+12, OB+4, D+4)
    A("s_mov_b32 exec_lo, 0x000f000f")
    A("s_mov_b32 exec_hi, 0x000f000f")
    A("s_nop 4")
    for j in range(4): A(f"v_and_or_b32 v{D+j}, v{D+j}, v29, s{36+j}")
    gstore(D, 4, 28, "ws", 0, "sc1")
    for j in range(4): A(f"v_and_or_b32 v{D+4+j}, v{D+4+j}, v29, s{36+j}")
    gstore(D+4, 4, 28, "ws", 256, "sc1")
    stamp(10)
    stamp_flush()
    probe_spin()
    A("s_endpgm")

    A("L_final:")
    A("s_cmp_eq_u32 s24, 7")
    A("s_cbranch_scc1 L_end2")
    A("s_lshl3_add_u32 s27, s24, s20")
    A("s_lshr_b32 s29, s27, 2"); A("s_lshl_b32 s29, s29, 15")
    A("s_and_b32 s30, s27, 3"); A("s_lshl_b32 s30, s30, 7"); A("s_add_u32 s29, s29, s30")
    A("s_and_b32 s31, s3, 1"); A("s_lshl_b32 s30, s31, 6"); A("s_add_u32 s29, s29, s30")
    A(f"s_add_u32 s29, s29, {WS_P2}")
    A("v_lshrrev_b32 v30, 2, v2"); A("v_lshlrev_b32 v30, 11, v30")
    A("v_add3_u32 v30, v30, v11, s29")
    F = 160
    for j in range(4): gload(F + 4*j, 4, 30, "ws", 512*j, "sc1")
    A("s_and_b32 s29, s27, 1"); A("s_lshl1_add_u32 s29, s29, s31"); A("s_mul_i32 s29, s29, 896")
    A("s_lshr_b32 s30, s27, 1"); A("s_lshl_b32 s30, s30, 5"); A("s_add_u32 s29, s29, s30")
    A("v_lshlrev_b32 v31, 1, v4"); A("v_lshl_add_u32 v31, v10, 3, v31"); A("v_add_u32 v31, s29, v31")
    A("s_lshl1_add_u32 s33, s27, s31")
    A(f"s_mov_b32 s27, {SPIN}")
    A("L_fpoll:")
    for j in range(4):
        A(f"s_waitcnt vmcnt({3-j})")
        for i in range(4): A(f"v_xor_b32 v{F+4*j+i}, s{36+i}, v{F+4*j+i}")
        if j == 0:
            A(f"v_or_b32 v{TT}, v{F}, v{F+1}")
            A(f"v_or3_b32 v{TT}, v{TT}, v{F+2}, v{F+3}")
        else:
            A(f"v_or3_b32 v{TT}, v{TT}, v{F+4*j}, v{F+4*j+1}")
            A(f"v_or3_b32 v{TT}, v{TT}, v{F+4*j+2}, v{F+4*j+3}")
            A(f"v_pk_add_f32 {vr(F,2)}, {vr(F,2)}, {vr(F+4*j,2)}")
            A(f"v_pk_add_f32 {vr(F+2,2)}, {vr(F+2,2)}, {vr(F+4*j+2,2)}")
    A(f"v_lshlrev_b32 v{TT}, 24, v{TT}")
    A(f"v_cmp_ne_u32 vcc, 0, v{TT}")
    A("s_cbranch_vccz L_fok")
    if sleep: A(f"s_sleep {sleep}")
    for j in range(4): gload(F + 4*j, 4, 30, "ws", 512*j, "sc1")
    A("s_sub_u32 s27, s27, 1")
    A("s_cbranch_scc0 L_fpoll")
    A("s_waitcnt vmcnt(0)")
    A("L_fok:")
    stamp(12 if probe else 10)
    tred(F)
    A("s_nop 1")
    A(f"v_add_f32_dpp v{F}, v{F}, v{F} row_ror:8 row_mask:0xf bank_mask:0xf")
    A("s_nop 1")
    A(f"v_add_f32_dpp v{F}, v{F}, v{F} row_ror:4 row_mask:0xf bank_mask:0xf")
    A("s_mov_b32 exec_lo, 0x000f000f")
    A("s_mov_b32 exec_hi, 0x000f000f")
    A(f"v_cvt_pk_bf16_f32 v{F}, v{F}, v{F}")
    gstore(F, 0, 31, "out", 0, outflags)
    A("s_cmp_eq_u32 s33, 0")
    A("s_cbranch_scc0 L_end2")
    A("s_mov_b64 exec, 1")
    A("v_mov_b32 v30, 0"); A("v_mov_b32 v31, s26")
    gstore(31, 1, 30, "ws", WS_E, "sc1")
    A("L_end2:")
    if stamps or probe == "s11":
        A("s_waitcnt vmcnt(0)")
        stamp(11)
        stamp_flush()
    probe_spin()
    A("L_end:")
    A("s_endpgm")

    A("L_help2:")
    role[0] = "h"
    if stamps:
        A(f"v_writelane_b32 v{STB}, s42, 0")
    stamp(1)
    A("v_and_b32 v10, 3, v2")
    A("v_mul_u32_u24 v5, 896, v10")
    A("v_lshl_add_u32 v5, v4, 4, v5")
    A("v_lshlrev_b32 v7, 3, v3")
    A("v_lshl_add_u32 v7, v4, 8, v7")
    A("s_lshl_b32 s32, s20, 5")
    A("s_add_u32 s33, s32, s21           ; hkv*32 + r")
    A("s_lshl_b32 s27, s33, 8"); A(f"s_add_u32 s27, s27, {WS_Q1}")
    A("v_lshlrev_b32 v8, 4, v4"); A("v_lshl_add_u32 v8, v10, 6, v8"); A("v_add_u32 v8, s27, v8")
    A("s_lshr_b32 s22, s2, 6")
    A("s_lshl_b32 s27, s20, 13"); A("s_lshl_b32 s29, s22, 6"); A("s_add_u32 s27, s27, s29"); A(f"s_add_u32 s27, s27, {WS_Q1}")
    A("v_lshrrev_b32 v9, 2, v2"); A("v_lshlrev_b32 v9, 8, v9"); A("v_lshlrev_b32 v11, 4, v10")
    A("v_add3_u32 v9, v9, v11, s27")
    A("v_add_u32 v11, 0x1000, v9")
    A("v_lshlrev_b32 v12, 3, v2")
    A("s_waitcnt lgkmcnt(0)")
    A("s_add_u32 s26, s26, 0x01010101    ; tag")
    A("v_mov_b32 v18, s26"); A("v_mov_b32 v19, s26")
    XB = 24; WQA = 80
    A("s_waitcnt vmcnt(14)")
    stamp(2)
    for s in range(14): A(f"ds_read_b128 {vr(XB+4*s,4)}, v5 offset:{L_X + 64*s}")
    A("s_waitcnt lgkmcnt(0)")
    QD = 20
    pend = []
    groups = [(0, 4), (4, 8), (8, 11), (11, 13), (13, 14)]
    for gi, (a, b) in enumerate(groups):
        A(f"s_waitcnt vmcnt({14-b})")
        for s in range(a, b):
            A(f"ds_read_b64_tr_b16 {vr(WQA+4*s,2)}, v7 offset:{L_WQ + 1024*s}")
            A(f"ds_read_b64_tr_b16 {vr(WQA+4*s+2,2)}, v7 offset:{L_WQ + 1024*s + 128}")
        for s in range(a, b):
            A(f"s_waitcnt lgkmcnt({2*(b-1-s)})")
            mfma(QD, WQA + 4*s, XB + 4*s, None if s == 0 else QD)
    A("s_mov_b32 exec_lo, 0x000f000f")
    A("s_mov_b32 exec_hi, 0x000f000f")
    A("s_nop 5")
    A(f"v_cvt_pk_bf16_f32 v16, v{QD}, v{QD+1}")
    A(f"v_cvt_pk_bf16_f32 v17, v{QD+2}, v{QD+3}")
    gstore(16, 4, 8, "ws", 0, "sc1")
    A("s_mov_b64 exec, -1")
    stamp(3)
    A("v_mov_b32 v13, 0")
    gload(6, 1, 13, "out")
    A(f"s_mov_b32 s27, {SPIN}")
    A("L_qpoll:")
    gload(24, 4, 9, "ws", 0, "sc1")
    gload(28, 4, 11, "ws", 0, "sc1")
    A("s_waitcnt vmcnt(0)")
    A("v_cmp_ne_u32 vcc, s26, v26")
    A("v_cmp_ne_u32 s[30:31], s26, v30")
    A("s_or_b64 vcc, vcc, s[30:31]")
    A("s_cbranch_vccz L_qok")
    A("s_sub_u32 s27, s27, 1")
    A("s_cbranch_scc0 L_qpoll")
    A("L_qok:")
    A(f"ds_write_b64 v12, v[24:25] offset:{L_Q}")
    A(f"ds_write_b64 v12, v[28:29] offset:{L_Q+576}")
    if stamps:
        A(f"v_writelane_b32 v{STB}, s27, 12")
    A("s_waitcnt lgkmcnt(0)")
    stamp(4)
    A("s_barrier                         ; B1")
    A("v_lshlrev_b32 v5, 5, v2")
    A("s_lshl_b32 s27, s33, 7"); A(f"s_add_u32 s27, s27, {WS_S1}")
    A("v_lshl_add_u32 v7, v2, 4, s27")
    A("s_mov_b32 s35, 0x3db8aa3b")
    A("s_mov_b64 exec, 3")
    A("s_barrier                         ; B2")
    A(f"ds_read_b128 v[24:27], v5 offset:{L_STAT}")
    A(f"ds_read_b128 v[28:31], v5 offset:{L_STAT+16}")
    A("s_waitcnt lgkmcnt(0)")
    A("v_max3_f32 v16, v24, v26, v28")
    A("v_max_f32 v16, v16, v30")
    for i in range(4): A(f"v_sub_f32 v{24+2*i}, v{24+2*i}, v16")
    for i in range(4): A(f"v_mul_f32 v{24+2*i}, s35, v{24+2*i}")
    for i in range(4): A(f"v_exp_f32 v{24+2*i}, v{24+2*i}")
    A("v_mul_f32 v17, v24, v25")
    for i in range(1, 4): A(f"v_fmac_f32 v17, v{24+2*i}, v{25+2*i}")
    gstore(16, 4, 7, "ws", 0, "sc1")
    stamp(5)
    stamp_flush()
    probe_spin()
    A("s_endpgm")
    A("L_codeend:")

    nv = 204 if stamps else 200
    A('.section .rodata,"a"'); A(".p2align 6"); A(f".amdhsa_kernel {NAME}")
    A(f"  .amdhsa_next_free_vgpr {nv}"); A(f"  .amdhsa_next_free_sgpr {96 if safe else 48}"); A(f"  .amdhsa_accum_offset {nv}")
    A("  .amdhsa_group_segment_fixed_size 0"); A("  .amdhsa_kernarg_size 64"); A("  .amdhsa_user_sgpr_count 2")
    A("  .amdhsa_user_sgpr_kernarg_segment_ptr 1"); A("  .amdhsa_system_sgpr_workgroup_id_x 1")
    A("  .amdhsa_float_denorm_mode_32 3")
    A(".end_amdhsa_kernel")
    out = []
    for l in L:
        if l.endswith(":") or l.startswith(".") or l.startswith(";") or l.startswith("  ."):
            out.append(l)
        else:
            out.append("    " + l.rstrip())
    return HEADER + "\n".join(out) + "\n"


if __name__ == "__main__":
    kw = {}
    for a in sys.argv[2:]:
        k, v = a.split("=")
        kw[k] = eval(v) if v in ("True", "False") or v.isdigit() else v
    open(sys.argv[1], "w").write(gen(**kw))
```

```python
import sys

NAME = "standalone__sliding_block_cached__decode_kernel"

HEADER = """; Kernarg layout for this problem (64 bytes, ptrs only, base s[0:1]):
"""

WS_E = 0
WS_Q1 = 0x1000
WS_S1 = 0x11000
WS_O1 = 0x20000
WS_P2 = 0xA0000
WS_ST = 0x200000

L_WQ = 0
L_X = 14336
L_Q = 18432
L_STAT = 19712
L_OX = 19968
L_RED = 20480
L_WO = 28672
L_END = 45056

BUF = dict(x=4, k=6, v=8, wq=10, wo=12, out=14, dbg=16, ws=18)
SIZE = dict(x=3584, k=67108864, v=67108864, wq=3670016, wo=3670016, out=3584, dbg=256, ws=268435456)
SRD = dict(x=64, k=68, v=72, wq=76, wo=80, out=84, ws=88)

SPIN = 200000


def gen(safe=False, stamps=False, order="kkvv", kvflags="nt", wqflags="nt", woflags="nt", b0=True,
        outflags="", sleep=0, probe="", pmask=0, pval=0, wqpat=32, b0late=False, qdiag=0, qst="sc1", qld="sc1", thr=0, thrn=32, wolate=False, tsync=False, only="", pre="", hst="sc1", hld="sc1", pd1=0, pd2=0, ack=False):
    L = []
    A = L.append

    def vr(r, n=1):
        return f"v{r}" if n == 1 else f"v[{r}:{r+n-1}]"

    W = {1: "dword", 2: "dwordx2", 3: "dwordx3", 4: "dwordx4"}

    def gload(dst, n, voff, buf, imm=0, fl=""):
        if safe:
            A(f"buffer_load_{W[n]} {vr(dst,n)}, v{voff}, s[{SRD[buf]}:{SRD[buf]+3}], 0 offen offset:{imm} {fl}")
        else:
            A(f"global_load_{W[n]} {vr(dst,n)}, v{voff}, s[{BUF[buf]}:{BUF[buf]+1}] offset:{imm} {fl}")

    def gdma(voff, buf, imm=0, fl=""):
        if safe:
            A(f"buffer_load_dwordx4 v{voff}, s[{SRD[buf]}:{SRD[buf]+3}], 0 offen offset:{imm} {fl} lds")
        else:
            A(f"global_load_lds_dwordx4 v{voff}, s[{BUF[buf]}:{BUF[buf]+1}] offset:{imm} {fl}")

    def gstore(src, n, voff, buf, imm=0, fl=""):
        w = "short" if n == 0 else W[n]
        n = max(n, 1)
        if safe:
            A(f"buffer_store_{w} {vr(src,n)}, v{voff}, s[{SRD[buf]}:{SRD[buf]+3}], 0 offen offset:{imm} {fl}")
        else:
            A(f"global_store_{w} v{voff}, {vr(src,n)}, s[{BUF[buf]}:{BUF[buf]+1}] offset:{imm} {fl}")

    def srds():
        if safe:
            for b, s in SRD.items():
                A(f"s_mov_b32 s{s}, s{BUF[b]}"); A(f"s_mov_b32 s{s+1}, s{BUF[b]+1}")
                A(f"s_mov_b32 s{s+2}, {SIZE[b]}"); A(f"s_mov_b32 s{s+3}, 0x20000")

    nst = [0]
    STB = 200
    role = ["s"]
    def probe_spin():
        if probe and probe[0] == role[0]:
            if role[0] == "h":
                A("s_barrier"); A("s_barrier")
            nst[0] += 1
            A(f"s_and_b32 s40, s2, {pmask}"); A(f"s_cmp_eq_u32 s40, {pval}"); A(f"s_cbranch_scc0 L_probx{nst[0]}")
            A(f"L_probe{nst[0]}:")
            A("s_memrealtime s[40:41]"); A("s_waitcnt lgkmcnt(0)")
            A("s_sub_u32 s40, s40, s42"); A("s_cmpk_lt_u32 s40, 4000"); A(f"s_cbranch_scc1 L_probe{nst[0]}")
            A(f"L_probx{nst[0]}:")
    def stamp(i):
        if probe == f"{role[0]}{i}":
            A("s_memrealtime s[42:43]")
            A("s_waitcnt lgkmcnt(0)")
        if stamps and (not only or str(i) in str(only).split(",")):
            A("s_memrealtime s[40:41]")
            A("s_waitcnt lgkmcnt(0)")
            A(f"v_writelane_b32 v{STB}, s40, {i}")

    def stamp_flush():
        if stamps:
            A("s_mov_b64 exec, -1")
            A("s_mul_i32 s40, s2, 5"); A("s_add_u32 s40, s40, s3"); A("s_lshl_b32 s40, s40, 7")
            A(f"s_add_u32 s40, s40, {WS_ST}")
            A(f"v_lshl_add_u32 v{STB+1}, v2, 2, s40")
            A("s_mov_b32 exec_hi, 0")
            gstore(STB, 1, STB + 1, "ws")

    def mfma(d, a, b, c=None):
        cs = "0" if c is None else vr(c, 4)
        A(f"v_mfma_f32_16x16x32_bf16 {vr(d,4)}, {vr(a,4)}, {vr(b,4)}, {cs}")

    A(f"; @launch grid=(256,1,1) block=(320,1,1) lds={L_END}")
    A('.amdgcn_target "amdgcn-amd-amdhsa--gfx950"')
    A(".text"); A(f".globl {NAME}"); A(".p2align 8"); A(f".type {NAME},@function"); A(f"{NAME}:")
    if stamps or probe:
        A("s_memrealtime s[42:43]")
    A("s_cmpk_ge_u32 s2, 0x100")
    A("s_cbranch_scc1 L_end")
    A("s_load_dwordx16 s[4:19], s[0:1], 0")
    A("v_readfirstlane_b32 s3, v0")
    A("v_and_b32 v2, 63, v0              ; lane")
    A("v_and_b32 v3, 15, v0              ; n")
    A("v_bfe_u32 v4, v0, 4, 2            ; g")
    A("s_and_b32 s20, s2, 7              ; hkv")
    A("s_lshr_b32 s21, s2, 3             ; r")
    A("s_lshr_b32 s3, s3, 6              ; wave")
    A("s_cmp_eq_u32 s3, 4")
    A("s_cbranch_scc0 L_stream")

    A("s_setprio 3")
    A("s_getpc_b64 s[22:23]")
    A("L_pc:")
    A("v_lshlrev_b32 v5, 7, v2")
    A("v_min_u32 v5, L_codeend-L_pc-4, v5")
    A("global_load_dword v6, v5, s[22:23]")
    A("v_lshlrev_b32 v5, 4, v2           ; x offset")
    sh = {32: 1, 64: 2, 128: 3}[wqpat]
    A(f"v_lshrrev_b32 v7, {sh}, v2")
    A("v_lshlrev_b32 v7, 13, v7")
    A(f"v_and_b32 v8, {wqpat-16}, v5")
    A("s_lshl_b32 s24, s20, 10")
    if wqpat == 32:
        A("s_lshl_b32 s25, s21, 5")
    else:
        ncol = 1024 // wqpat
        A(f"s_and_b32 s25, s21, {ncol-1}"); A(f"s_lshl_b32 s25, s25, {sh+4}"); A("s_add_u32 s24, s24, s25")
        A(f"s_lshr_b32 s25, s21, {6-sh}"); A(f"s_mul_i32 s25, s25, {(448 >> (sh-1))*8192}")
    A("s_add_u32 s24, s24, s25")
    A("v_add3_u32 v7, v7, v8, s24")
    A(f"v_add_u32 v8, {(524288>>sh)-1024}, v7")
    A(f"s_movk_i32 m0, {L_X}")
    A(f"s_mov_b32 s25, {0x100000>>sh}")
    A("s_waitcnt lgkmcnt(0)")
    srds()
    A(f"s_load_dword s26, s[18:19], {WS_E}")
    gdma(5, "x", 0); gdma(5, "x", 1024); gdma(5, "x", 2048)
    A("s_mov_b32 exec_hi, 0")
    gdma(5, "x", 3072)
    A("s_mov_b32 exec_hi, -1")
    A(f"s_mov_b32 m0, {L_WQ}")
    A("s_nop 0")
    A("L_wq:")
    gdma(7, "wq", 0, wqflags)
    gdma(8, "wq", 1024, wqflags)
    A("s_addk_i32 m0, 0x800")
    A("v_add_u32 v7, s25, v7")
    A("v_add_u32 v8, s25, v8")
    A(f"s_cmpk_lt_u32 m0, {L_WQ+14336}")
    A("s_cbranch_scc1 L_wq")
    if b0late is not False:
        A(f"s_waitcnt vmcnt({b0late})")
    if b0:
        A("s_barrier                         ; B0")
    A("s_branch L_help2")

    A("L_stream:")
    VK = 72; VV = 136
    A("s_lshr_b32 s22, s2, 6             ; b")
    A("s_lshl3_add_u32 s23, s22, s20     ; b*8+hkv")
    A("s_lshl_b32 s23, s23, 21")
    A("s_and_b32 s24, s21, 7             ; c / dd")
    A("s_lshl3_add_u32 s25, s24, s3      ; c*8+w")
    A("s_lshl_b32 s25, s25, 13")
    A("s_add_u32 s23, s23, s25")
    A("s_add_u32 s23, s23, 0x180000")
    A("v_lshlrev_b32 v5, 9, v3")
    A("v_lshlrev_b32 v6, 4, v4")
    A("v_add3_u32 v5, v5, v6, s23        ; K tile0")
    A("v_add_u32 v6, 0x8000, v5          ; K tile1")
    A("v_lshlrev_b32 v7, 4, v3")
    A("v_lshlrev_b32 v8, 11, v4")
    A("v_add3_u32 v7, v7, v8, s23        ; V tile0")
    A("v_add_u32 v8, 0x8000, v7          ; V tile1")
    A("s_waitcnt lgkmcnt(0)")
    if probe == "s20": stamp(20)
    srds()
    if stamps:
        A(f"v_writelane_b32 v{STB}, s42, 0")
    if b0:
        A("s_barrier                         ; B0")
    stamp(1)
    seq = []
    def kt(T): return [("k", T, j) for j in range(8)]
    def vt(T): return [("v", T, j) for j in range(8)]
    if order == "kkvv": seq = kt(0) + kt(1) + vt(0) + vt(1)
    elif order == "kvkv": seq = kt(0) + vt(0) + kt(1) + vt(1)
    for idx, (b, T, j) in enumerate(seq):
        if thr and thr <= idx < thrn: A(f"s_waitcnt vmcnt({thr-1})")
        if b == "k": gload(VK + T*32 + j*4, 4, 5 + T, "k", j*64, kvflags)
        else: gload(VV + T*32 + j*4, 4, 7 + T, "v", (j >> 1)*512 + (j & 1)*256, kvflags)
    NWO = 4
    def after(item):
        return len(seq) - 1 - seq.index(item) + NWO
    A(f"s_load_dword s26, s[18:19], {WS_E}")
    A("s_lshr_b32 s27, s24, 1")
    A("s_lshl2_add_u32 s27, s20, s27")
    A("s_lshl_b32 s27, s27, 5")
    A("s_and_b32 s28, s24, 1")
    A("s_add_u32 s27, s27, s28           ; row0/4")
    A("s_mul_i32 s27, s27, 3584          ; row0*896")
    A("s_lshl2_add_u32 s28, s22, s3")
    A("s_cmp_ge_u32 s28, 14")
    A("s_cselect_b32 s29, 2, 0")
    A("s_cselect_b64 s[30:31], 1, -1")
    A("s_sub_u32 s29, s28, s29")
    A("s_lshl_b32 s29, s29, 6")
    A("s_add_u32 s27, s27, s29")
    A("v_bfe_u32 v9, v2, 2, 2")
    A("v_lshl_add_u32 v9, v4, 3, v9")
    A("v_mul_u32_u24 v9, 896, v9")
    A("v_and_b32 v10, 3, v2")
    A("v_lshlrev_b32 v11, 4, v10")
    A("v_add3_u32 v9, v9, v11, s27")
    A("s_lshl_b32 s29, s3, 12")
    A(f"s_add_u32 s29, s29, {L_WO}")
    A("s_mov_b32 m0, s29")
    def wo_issue():
        A("s_mov_b64 exec, s[30:31]")
        for u in range(4):
            gdma(9, "wo", u*1024, woflags)
            if u < 3: A(f"v_add_u32 v9, {28672-1024}, v9")
        A("s_mov_b64 exec, -1")
    if not wolate: wo_issue()
    stamp(2)
    A("v_and_b32 v16, 1, v2")
    A("v_lshlrev_b32 v16, 4, v16")
    A("v_mov_b32 v17, 0xffff")
    A("v_lshlrev_b32 v16, v16, v17")
    A("v_bfe_u32 v17, v2, 1, 2")
    for j in range(4):
        A(f"v_cmp_eq_u32 vcc, {j}, v17")
        A("s_nop 1")
        A(f"v_cndmask_b32 v{12+j}, 0, v16, vcc")
    A("v_bfe_u32 v16, v2, 3, 1           ; h")
    A("v_mul_u32_u24 v17, 576, v16")
    A("v_lshl_add_u32 v17, v4, 4, v17")
    A("v_lshlrev_b32 v18, 5, v16")
    A("s_lshl_b32 s27, s3, 3")
    A("v_add_u32 v19, s27, v18")
    A("s_lshl_b32 s27, s3, 11")
    A("v_lshl_add_u32 v20, v2, 4, s27")
    A("s_and_b32 s27, s3, 1"); A("s_lshl_b32 s27, s27, 10")
    A("s_lshr_b32 s29, s3, 1"); A("s_lshl_b32 s29, s29, 9"); A("s_add_u32 s27, s27, s29")
    A("v_lshl_add_u32 v21, v2, 4, s27")
    A("s_lshl_b32 s32, s20, 5            ; hkv*32")
    A("s_add_u32 s27, s32, s21"); A("s_lshl2_add_u32 s27, s27, s3"); A("s_lshl_b32 s27, s27, 9")
    A(f"s_add_u32 s27, s27, {WS_O1}")
    A("v_lshl_add_u32 v22, v2, 4, s27")
    A("s_lshl3_add_u32 s33, s3, s32      ; hkv*32 + w*8")
    A("s_lshl_b32 s27, s33, 11"); A("s_lshl_b32 s29, s24, 8"); A("s_add_u32 s27, s27, s29")
    A(f"s_add_u32 s27, s27, {WS_O1}")
    A("v_lshlrev_b32 v23, 12, v4"); A("v_lshlrev_b32 v24, 4, v3")
    A("v_add3_u32 v23, v23, v24, s27")
    A("s_lshl_b32 s27, s33, 7"); A("s_lshr_b32 s29, s24, 2"); A("s_lshl_b32 s29, s29, 4"); A("s_add_u32 s27, s27, s29")
    A(f"s_add_u32 s27, s27, {WS_S1}")
    A("v_lshl_add_u32 v24, v4, 8, s27")
    A("v_bfe_u32 v25, v2, 2, 2"); A("v_lshlrev_b32 v25, 6, v25")
    A("v_lshl_add_u32 v25, v4, 9, v25"); A("v_lshl_add_u32 v25, v10, 3, v25")
    A("v_add_u32 v25, m0, v25")
    A("s_lshl_b32 s27, s3, 7")
    A("v_lshlrev_b32 v26, 1, v4"); A("v_lshl_add_u32 v26, v3, 3, v26"); A("v_add_u32 v26, s27, v26")
    A("v_lshlrev_b32 v27, 4, v4"); A("v_lshl_add_u32 v27, v10, 7, v27")
    A("s_lshl3_add_u32 s34, s20, s24     ; p")
    A("s_lshl_b32 s27, s28, 6"); A("s_add_u32 s27, s27, s34"); A("s_lshl_b32 s27, s27, 9")
    A(f"s_add_u32 s27, s27, {WS_P2}")
    A("v_lshlrev_b32 v28, 4, v4"); A("v_lshl_add_u32 v28, v10, 6, v28"); A("v_add_u32 v28, s27, v28")
    A("v_mov_b32 v29, 0xffffff00")
    A("s_mov_b32 s35, 0x3db8aa3b         ; log2(e)/16")
    A("s_waitcnt lgkmcnt(0)")
    A("s_add_u32 s26, s26, 0x01010101    ; tag")
    A("s_and_b32 s36, s26, 0xff"); A("s_bfe_u32 s37, s26, 0x80008"); A("s_bfe_u32 s38, s26, 0x80010"); A("s_lshr_b32 s39, s26, 24")
    A("s_barrier")
    stamp(3)
    VQ = 40
    for j in range(8):
        A(f"ds_read_b128 {vr(VQ+4*j,4)}, v17 offset:{L_Q + 64*j}")
    S = 32
    A(f"s_waitcnt vmcnt({after(('k',1,7)) - (NWO if wolate else 0)})")
    stamp(4)
    for j in range(8):
        A(f"s_waitcnt lgkmcnt({7-j})")
        mfma(S, VK + 4*j, VQ + 4*j, None if j == 0 else S)
        mfma(S+4, VK + 32 + 4*j, VQ + 4*j, None if j == 0 else S+4)
    A("s_nop 6")
    T0 = 72
    for i in range(4):
        A(f"v_cvt_pk_bf16_f32 v{T0+i}, v{S+2*i}, v{S+2*i+1}")
    for i in range(4):
        A(f"v_lshlrev_b32 v{S+2*i}, 16, v{T0+i}")
        A(f"v_and_b32 v{S+2*i+1}, 0xffff0000, v{T0+i}")
    M = 76; Lr = 77; TT = 78
    A(f"v_max3_f32 v{M}, v{S}, v{S+1}, v{S+2}")
    A(f"v_max3_f32 v{M}, v{M}, v{S+3}, v{S+4}")
    A(f"v_max3_f32 v{M}, v{M}, v{S+5}, v{S+6}")
    A(f"v_max_f32 v{M}, v{M}, v{S+7}")
    def xred(reg, tmp, op):
        for sw in ("v_permlane32_swap_b32", "v_permlane16_swap_b32"):
            A(f"v_mov_b32 v{tmp}, v{reg}")
            A("s_nop 1")
            A(f"{sw} v{reg}, v{tmp}")
            A(f"{op} v{reg}, v{reg}, v{tmp}")
    xred(M, TT, "v_max_f32")
    for i in range(8): A(f"v_sub_f32 v{S+i}, v{S+i}, v{M}")
    for i in range(8): A(f"v_mul_f32 v{S+i}, s35, v{S+i}")
    for i in range(8): A(f"v_exp_f32 v{S+i}, v{S+i}")
    A(f"v_add_f32 v{Lr}, v{S}, v{S+1}")
    for i in range(2, 8): A(f"v_add_f32 v{Lr}, v{Lr}, v{S+i}")
    xred(Lr, TT, "v_add_f32")
    A(f"ds_write_b64 v19, {vr(M,2)} offset:{L_STAT}")
    A("s_waitcnt lgkmcnt(0)")
    A("s_barrier")
    A(f"ds_read_b128 v[80:83], v18 offset:{L_STAT}")
    A(f"ds_read_b128 v[84:87], v18 offset:{L_STAT+16}")
    A("s_waitcnt lgkmcnt(0)")
    A(f"v_max3_f32 v{TT}, v80, v82, v84")
    A(f"v_max_f32 v{TT}, v{TT}, v86")
    A(f"v_sub_f32 v{TT}, v{M}, v{TT}")
    A(f"v_mul_f32 v{TT}, s35, v{TT}")
    A(f"v_exp_f32 v{TT}, v{TT}")
    A("s_nop 0")
    for i in range(8): A(f"v_mul_f32 v{S+i}, v{S+i}, v{TT}")
    for i in range(8): A(f"v_cvt_pk_bf16_f32 v{S+i}, v{S+i}, v{S+i}")
    VA = 40
    for i in range(8):
        for j in range(4): A(f"v_and_b32 v{VA+4*i+j}, v{S+i}, v{12+j}")
    if wolate: wo_issue()
    stamp(5)
    ACC = 88
    first = True
    last_wait = None
    for T in range(2):
        for t in range(4):
            for h in range(2):
                wv = after(("v", T, 2*t + h))
                if T == 0:
                    wv = after(("v", 0, 7))
                if wv != last_wait:
                    A(f"s_waitcnt vmcnt({wv})"); last_wait = wv
                mfma(ACC + 4*h, VA + 16*T + 4*t, VV + 32*T + 8*t + 4*h, None if (T == 0 and t == 0) else ACC + 4*h)
    GS = 96
    if tsync:
        if "s" in pre:
            A("s_mov_b32 exec_hi, 0")
            gstore(12, 4, 22, "ws", 0, hst)
            A("s_mov_b32 exec_lo, 0x000f000f"); A("s_mov_b32 exec_hi, 0x000f000f")
            gstore(12, 4, 28, "ws", 0, hst); gstore(12, 4, 28, "ws", 256, hst)
            A("s_mov_b64 exec, -1")
        if "l" in pre:
            A("s_mov_b32 exec_hi, 0")
            gload(GS, 4, 22, "ws", 0, "sc1")
            A("s_mov_b32 exec_lo, 0x000f000f"); A("s_mov_b32 exec_hi, 0x000f000f")
            gload(GS, 4, 28, "ws", 0, "sc1"); gload(GS, 4, 28, "ws", 256, "sc1")
            A("s_mov_b64 exec, -1")
        A("s_waitcnt vmcnt(0)")
        A("s_add_u32 s44, s42, 1500"); A("s_or_b32 s44, s44, 0x3ff"); A("s_add_u32 s44, s44, 1")
        A("L_tsync:")
        A("s_memrealtime s[40:41]"); A("s_waitcnt lgkmcnt(0)")
        A("s_sub_u32 s45, s40, s44"); A("s_cmp_lt_i32 s45, 0"); A("s_cbranch_scc1 L_tsync")
        A(f"v_writelane_b32 v{STB}, s44, 13")
    gload(GS, 4, 24, "ws", 0, "sc1")
    gload(GS+4, 4, 24, "ws", 128, "sc1")
    A("s_nop 4")
    A(f"ds_write_b128 v20, {vr(ACC,4)} offset:{L_RED}")
    A(f"ds_write_b128 v20, {vr(ACC+4,4)} offset:{L_RED+1024}")
    A("s_waitcnt lgkmcnt(0)")
    stamp(6)
    A("s_barrier")
    A("s_mov_b32 exec_hi, 0")
    R = 104
    for i in range(4): A(f"ds_read_b128 {vr(R+4*i,4)}, v21 offset:{L_RED + 2048*i}")
    A("s_waitcnt lgkmcnt(2)")
    A(f"v_pk_add_f32 {vr(R,2)}, {vr(R,2)}, {vr(R+4,2)}")
    A(f"v_pk_add_f32 {vr(R+2,2)}, {vr(R+2,2)}, {vr(R+6,2)}")
    A("s_waitcnt lgkmcnt(0)")
    A(f"v_pk_add_f32 {vr(R+8,2)}, {vr(R+8,2)}, {vr(R+12,2)}")
    A(f"v_pk_add_f32 {vr(R+10,2)}, {vr(R+10,2)}, {vr(R+14,2)}")
    A(f"v_pk_add_f32 {vr(R,2)}, {vr(R,2)}, {vr(R+8,2)}")
    A(f"v_pk_add_f32 {vr(R+2,2)}, {vr(R+2,2)}, {vr(R+10,2)}")
    for j in range(4): A(f"v_and_or_b32 v{R+j}, v{R+j}, v29, s{36+j}")
    gstore(R, 4, 22, "ws", 0, hst)
    A("s_mov_b32 exec_hi, -1")
    GO = 120
    def until(d, lab):
        A(f"{lab}:")
        A("s_memrealtime s[40:41]"); A("s_waitcnt lgkmcnt(0)")
        A("s_sub_u32 s45, s40, s44"); A(f"s_cmp_lt_i32 s45, {d}"); A(f"s_cbranch_scc1 {lab}")
    if ack:
        A("s_waitcnt vmcnt(0)")
        stamp(6)
    if pd1: until(pd1, "L_pd1")
    gload(GO, 4, 23, "ws", 0, hld)
    gload(GO+4, 4, 23, "ws", 2048, hld)
    stamp(7)
    A(f"s_mov_b32 s27, {SPIN}")
    A("s_waitcnt vmcnt(3)")
    WA = 136
    for tau in range(2):
        for s in range(2):
            for e in range(2):
                A(f"ds_read_b64_tr_b16 {vr(WA + 8*tau + 4*s + 2*e, 2)}, v25 offset:{s*2048 + e*256 + tau*32}")
    A("L_spoll:")
    A(f"v_cmp_ne_u32 vcc, s26, v{GS+2}")
    A(f"v_cmp_ne_u32 s[30:31], s26, v{GS+6}")
    A("s_or_b64 vcc, vcc, s[30:31]")
    A("s_cbranch_vccz L_sok")
    gload(GS, 4, 24, "ws", 0, "sc1")
    gload(GS+4, 4, 24, "ws", 128, "sc1")
    A("s_sub_u32 s27, s27, 1")
    A("s_waitcnt vmcnt(0)")
    A("s_cbranch_scc0 L_spoll")
    A("L_sok:")
    A(f"v_max_f32 v{M}, v{GS}, v{GS+4}")
    xred(M, TT, "v_max_f32")
    A(f"v_sub_f32 v{GS}, v{GS}, v{M}"); A(f"v_sub_f32 v{GS+4}, v{GS+4}, v{M}")
    A(f"v_mul_f32 v{GS}, s35, v{GS}"); A(f"v_mul_f32 v{GS+4}, s35, v{GS+4}")
    A(f"v_exp_f32 v{GS}, v{GS}"); A(f"v_exp_f32 v{GS+4}, v{GS+4}")
    A("s_nop 0")
    A(f"v_mul_f32 v{Lr}, v{GS}, v{GS+1}")
    A(f"v_fmac_f32 v{Lr}, v{GS+4}, v{GS+5}")
    xred(Lr, TT, "v_add_f32")
    A(f"v_rcp_f32 v{Lr}, v{Lr}")
    A("s_nop 0")
    A(f"v_mul_f32 v{GS}, v{GS}, v{Lr}"); A(f"v_mul_f32 v{GS+4}, v{GS+4}, v{Lr}")
    stamp(8)
    A(f"s_mov_b32 s27, {SPIN}")
    A("L_opoll:")
    A("s_waitcnt vmcnt(0)")
    for i in range(8): A(f"v_xor_b32 v{GO+i}, s{36 + (i & 3)}, v{GO+i}")
    A(f"v_or3_b32 v{TT}, v{GO}, v{GO+1}, v{GO+2}")
    A(f"v_or3_b32 v{TT}, v{TT}, v{GO+3}, v{GO+4}")
    A(f"v_or3_b32 v{TT}, v{TT}, v{GO+5}, v{GO+6}")
    A(f"v_or_b32 v{TT}, v{TT}, v{GO+7}")
    A(f"v_lshlrev_b32 v{TT}, 24, v{TT}")
    A(f"v_cmp_ne_u32 vcc, 0, v{TT}")
    A("s_cbranch_vccz L_ook")
    if sleep: A(f"s_sleep {sleep}")
    gload(GO, 4, 23, "ws", 0, hld)
    gload(GO+4, 4, 23, "ws", 2048, hld)
    A("s_sub_u32 s27, s27, 1")
    A("s_cbranch_scc0 L_opoll")
    A("s_waitcnt vmcnt(0)")
    A("L_ook:")
    if stamps: A(f"v_writelane_b32 v{STB}, s27, 14")
    stamp(9)
    for i in range(4): A(f"v_mul_f32 v{GO+i}, v{GO+i}, v{GS}")
    for i in range(4): A(f"v_fmac_f32 v{GO+i}, v{GO+4+i}, v{GS+4}")
    def tred(r):
        A("s_nop 0")
        A(f"v_permlane32_swap_b32 v{r}, v{r+2}")
        A(f"v_permlane32_swap_b32 v{r+1}, v{r+3}")
        A(f"v_add_f32 v{r}, v{r}, v{r+2}")
        A(f"v_add_f32 v{r+1}, v{r+1}, v{r+3}")
        A("s_nop 1")
        A(f"v_permlane16_swap_b32 v{r}, v{r+1}")
        A(f"v_add_f32 v{r}, v{r}, v{r+1}")
    tred(GO)
    A(f"v_cvt_pk_bf16_f32 v{GO}, v{GO}, v{GO}")
    A(f"ds_write_b16 v26, v{GO} offset:{L_OX}")
    A("s_waitcnt lgkmcnt(0)")
    A("s_barrier")
    A("s_cmp_ge_u32 s28, 14")
    A("s_cbranch_scc1 L_final")
    OB = 152
    A(f"ds_read_b128 {vr(OB,4)}, v27 offset:{L_OX}")
    A(f"ds_read_b128 {vr(OB+4,4)}, v27 offset:{L_OX+64}")
    D = 160
    A("s_waitcnt lgkmcnt(1)")
    mfma(D, WA, OB)
    mfma(D+4, WA+8, OB)
    A("s_waitcnt lgkmcnt(0)")
    mfma(D, WA+4, OB+4, D)
    mfma(D+4, WA+12, OB+4, D+4)
    A("s_mov_b32 exec_lo, 0x000f000f")
    A("s_mov_b32 exec_hi, 0x000f000f")
    A("s_nop 4")
    for j in range(4): A(f"v_and_or_b32 v{D+j}, v{D+j}, v29, s{36+j}")
    gstore(D, 4, 28, "ws", 0, hst)
    for j in range(4): A(f"v_and_or_b32 v{D+4+j}, v{D+4+j}, v29, s{36+j}")
    gstore(D+4, 4, 28, "ws", 256, hst)
    if ack: A("s_waitcnt vmcnt(0)")
    stamp(10)
    stamp_flush()
    probe_spin()
    A("s_endpgm")

    A("L_final:")
    A("s_cmp_eq_u32 s24, 7")
    A("s_cbranch_scc1 L_end2")
    A("s_lshl3_add_u32 s27, s24, s20")
    A("s_lshr_b32 s29, s27, 2"); A("s_lshl_b32 s29, s29, 15")
    A("s_and_b32 s30, s27, 3"); A("s_lshl_b32 s30, s30, 7"); A("s_add_u32 s29, s29, s30")
    A("s_and_b32 s31, s3, 1"); A("s_lshl_b32 s30, s31, 6"); A("s_add_u32 s29, s29, s30")
    A(f"s_add_u32 s29, s29, {WS_P2}")
    A("v_lshrrev_b32 v30, 2, v2"); A("v_lshlrev_b32 v30, 11, v30")
    A("v_add3_u32 v30, v30, v11, s29")
    F = 160
    if pd2: until(pd2, "L_pd2")
    for j in range(4): gload(F + 4*j, 4, 30, "ws", 512*j, hld)
    A("s_and_b32 s29, s27, 1"); A("s_lshl1_add_u32 s29, s29, s31"); A("s_mul_i32 s29, s29, 896")
    A("s_lshr_b32 s30, s27, 1"); A("s_lshl_b32 s30, s30, 5"); A("s_add_u32 s29, s29, s30")
    A("v_lshlrev_b32 v31, 1, v4"); A("v_lshl_add_u32 v31, v10, 3, v31"); A("v_add_u32 v31, s29, v31")
    A("s_lshl1_add_u32 s33, s27, s31")
    A(f"s_mov_b32 s27, {SPIN}")
    A("L_fpoll:")
    for j in range(4):
        A(f"s_waitcnt vmcnt({3-j})")
        for i in range(4): A(f"v_xor_b32 v{F+4*j+i}, s{36+i}, v{F+4*j+i}")
        if j == 0:
            A(f"v_or_b32 v{TT}, v{F}, v{F+1}")
            A(f"v_or3_b32 v{TT}, v{TT}, v{F+2}, v{F+3}")
        else:
            A(f"v_or3_b32 v{TT}, v{TT}, v{F+4*j}, v{F+4*j+1}")
            A(f"v_or3_b32 v{TT}, v{TT}, v{F+4*j+2}, v{F+4*j+3}")
            A(f"v_pk_add_f32 {vr(F,2)}, {vr(F,2)}, {vr(F+4*j,2)}")
            A(f"v_pk_add_f32 {vr(F+2,2)}, {vr(F+2,2)}, {vr(F+4*j+2,2)}")
    A(f"v_lshlrev_b32 v{TT}, 24, v{TT}")
    A(f"v_cmp_ne_u32 vcc, 0, v{TT}")
    A("s_cbranch_vccz L_fok")
    if sleep: A(f"s_sleep {sleep}")
    for j in range(4): gload(F + 4*j, 4, 30, "ws", 512*j, hld)
    A("s_sub_u32 s27, s27, 1")
    A("s_cbranch_scc0 L_fpoll")
    A("s_waitcnt vmcnt(0)")
    A("L_fok:")
    if stamps: A(f"v_writelane_b32 v{STB}, s27, 15")
    stamp(12 if probe else 10)
    tred(F)
    A("s_nop 1")
    A(f"v_add_f32_dpp v{F}, v{F}, v{F} row_ror:8 row_mask:0xf bank_mask:0xf")
    A("s_nop 1")
    A(f"v_add_f32_dpp v{F}, v{F}, v{F} row_ror:4 row_mask:0xf bank_mask:0xf")
    A("s_mov_b32 exec_lo, 0x000f000f")
    A("s_mov_b32 exec_hi, 0x000f000f")
    A(f"v_cvt_pk_bf16_f32 v{F}, v{F}, v{F}")
    gstore(F, 0, 31, "out", 0, outflags)
    A("s_cmp_eq_u32 s33, 0")
    A("s_cbranch_scc0 L_end2")
    A("s_mov_b64 exec, 1")
    A("v_mov_b32 v30, 0"); A("v_mov_b32 v31, s26")
    gstore(31, 1, 30, "ws", WS_E, "sc1")
    A("L_end2:")
    if stamps or probe == "s11":
        A("s_waitcnt vmcnt(0)")
        stamp(11)
        stamp_flush()
    probe_spin()
    A("L_end:")
    A("s_endpgm")

    A("L_help2:")
    role[0] = "h"
    if stamps:
        A(f"v_writelane_b32 v{STB}, s42, 0")
    stamp(1)
    A("v_and_b32 v10, 3, v2")
    A("v_mul_u32_u24 v5, 896, v10")
    A("v_lshl_add_u32 v5, v4, 4, v5")
    A("v_lshlrev_b32 v7, 3, v3")
    A("v_lshl_add_u32 v7, v4, 8, v7")
    A("s_lshl_b32 s32, s20, 5")
    A("s_add_u32 s33, s32, s21           ; hkv*32 + r")
    A("s_lshl_b32 s27, s33, 8"); A(f"s_add_u32 s27, s27, {WS_Q1}")
    A("v_lshlrev_b32 v8, 4, v4"); A("v_lshl_add_u32 v8, v10, 6, v8"); A("v_add_u32 v8, s27, v8")
    A("s_lshr_b32 s22, s2, 6")
    A("s_lshl_b32 s27, s20, 13"); A("s_lshl_b32 s29, s22, 6"); A("s_add_u32 s27, s27, s29"); A(f"s_add_u32 s27, s27, {WS_Q1}")
    A("v_lshrrev_b32 v9, 2, v2"); A("v_lshlrev_b32 v9, 8, v9"); A("v_lshlrev_b32 v11, 4, v10")
    A("v_add3_u32 v9, v9, v11, s27")
    A("v_add_u32 v11, 0x1000, v9")
    A("v_lshlrev_b32 v12, 3, v2")
    A("s_waitcnt lgkmcnt(0)")
    A("s_add_u32 s26, s26, 0x01010101    ; tag")
    A("v_mov_b32 v18, s26"); A("v_mov_b32 v19, s26")
    XB = 24; WQA = 80
    A("s_waitcnt vmcnt(14)")
    stamp(2)
    for s in range(14): A(f"ds_read_b128 {vr(XB+4*s,4)}, v5 offset:{L_X + 64*s}")
    A("s_waitcnt lgkmcnt(0)")
    QD = 20
    pend = []
    groups = [(0, 4), (4, 8), (8, 11), (11, 13), (13, 14)]
    for gi, (a, b) in enumerate(groups):
        A(f"s_waitcnt vmcnt({14-b})")
        for s in range(a, b):
            A(f"ds_read_b64_tr_b16 {vr(WQA+4*s,2)}, v7 offset:{L_WQ + 1024*s}")
            A(f"ds_read_b64_tr_b16 {vr(WQA+4*s+2,2)}, v7 offset:{L_WQ + 1024*s + 128}")
        for s in range(a, b):
            A(f"s_waitcnt lgkmcnt({2*(b-1-s)})")
            mfma(QD, WQA + 4*s, XB + 4*s, None if s == 0 else QD)
    A("s_mov_b32 exec_lo, 0x000f000f")
    A("s_mov_b32 exec_hi, 0x000f000f")
    A("s_nop 5")
    A(f"v_cvt_pk_bf16_f32 v16, v{QD}, v{QD+1}")
    A(f"v_cvt_pk_bf16_f32 v17, v{QD+2}, v{QD+3}")
    stamp(6)
    gstore(16, 4, 8, "ws", 0, qst)
    A("s_mov_b64 exec, -1")
    stamp(3)
    if qdiag == 1:
        A("s_waitcnt vmcnt(0)")
    stamp(7)
    if qdiag != 2:
        A("v_mov_b32 v13, 0")
        gload(6, 1, 13, "out")
    if qdiag == 1:
        A("s_waitcnt vmcnt(0)")
    stamp(8)
    A(f"s_mov_b32 s27, {SPIN}")
    A("L_qpoll:")
    gload(24, 4, 9, "ws", 0, qld)
    gload(28, 4, 11, "ws", 0, qld)
    stamp(9)
    A("s_waitcnt vmcnt(0)")
    A("v_cmp_ne_u32 vcc, s26, v26")
    A("v_cmp_ne_u32 s[30:31], s26, v30")
    A("s_or_b64 vcc, vcc, s[30:31]")
    A("s_cbranch_vccz L_qok")
    A("s_sub_u32 s27, s27, 1")
    A("s_cbranch_scc0 L_qpoll")
    A("L_qok:")
    A(f"ds_write_b64 v12, v[24:25] offset:{L_Q}")
    A(f"ds_write_b64 v12, v[28:29] offset:{L_Q+576}")
    if stamps:
        A(f"v_writelane_b32 v{STB}, s27, 12")
    A("s_waitcnt lgkmcnt(0)")
    stamp(4)
    A("s_barrier                         ; B1")
    A("v_lshlrev_b32 v5, 5, v2")
    A("s_lshl_b32 s27, s33, 7"); A(f"s_add_u32 s27, s27, {WS_S1}")
    A("v_lshl_add_u32 v7, v2, 4, s27")
    A("s_mov_b32 s35, 0x3db8aa3b")
    A("s_mov_b64 exec, 3")
    A("s_barrier                         ; B2")
    A(f"ds_read_b128 v[24:27], v5 offset:{L_STAT}")
    A(f"ds_read_b128 v[28:31], v5 offset:{L_STAT+16}")
    A("s_waitcnt lgkmcnt(0)")
    A("v_max3_f32 v16, v24, v26, v28")
    A("v_max_f32 v16, v16, v30")
    for i in range(4): A(f"v_sub_f32 v{24+2*i}, v{24+2*i}, v16")
    for i in range(4): A(f"v_mul_f32 v{24+2*i}, s35, v{24+2*i}")
    for i in range(4): A(f"v_exp_f32 v{24+2*i}, v{24+2*i}")
    A("v_mul_f32 v17, v24, v25")
    for i in range(1, 4): A(f"v_fmac_f32 v17, v{24+2*i}, v{25+2*i}")
    gstore(16, 4, 7, "ws", 0, "sc1")
    stamp(5)
    stamp_flush()
    probe_spin()
    A("s_endpgm")
    A("L_codeend:")

    nv = 204 if stamps else 200
    A('.section .rodata,"a"'); A(".p2align 6"); A(f".amdhsa_kernel {NAME}")
    A(f"  .amdhsa_next_free_vgpr {nv}"); A(f"  .amdhsa_next_free_sgpr {96 if safe else 48}"); A(f"  .amdhsa_accum_offset {nv}")
    A("  .amdhsa_group_segment_fixed_size 0"); A("  .amdhsa_kernarg_size 64"); A("  .amdhsa_user_sgpr_count 2")
    A("  .amdhsa_user_sgpr_kernarg_segment_ptr 1"); A("  .amdhsa_system_sgpr_workgroup_id_x 1")
    A("  .amdhsa_float_denorm_mode_32 3")
    A(".end_amdhsa_kernel")
    out = []
    for l in L:
        if l.endswith(":") or l.startswith(".") or l.startswith(";") or l.startswith("  ."):
            out.append(l)
        else:
            out.append("    " + l.rstrip())
    return HEADER + "\n".join(out) + "\n"


if __name__ == "__main__":
    kw = {}
    for a in sys.argv[2:]:
        k, v = a.split("=")
        kw[k] = eval(v) if v in ("True", "False") or v.isdigit() else v
    open(sys.argv[1], "w").write(gen(**kw))
```

```python
import sys

NAME = "standalone__sliding_block_cached__decode_kernel"

HEADER = """; Kernarg layout for this problem (64 bytes, ptrs only, base s[0:1]):
"""

WS_E = 0
WS_Q1 = 0x1000
WS_S1 = 0x11000
WS_O1 = 0x20000
WS_P2 = 0xA0000
WS_ST = 0x200000

L_WQ = 0
L_X = 14336
L_Q = 18432
L_STAT = 19712
L_OX = 19968
L_RED = 20480
L_WO = 28672
L_END = 45056

BUF = dict(x=4, k=6, v=8, wq=10, wo=12, out=14, dbg=16, ws=18)
SIZE = dict(x=3584, k=67108864, v=67108864, wq=3670016, wo=3670016, out=3584, dbg=256, ws=268435456)
SRD = dict(x=64, k=68, v=72, wq=76, wo=80, out=84, ws=88)

SPIN = 200000


def gen(safe=False, stamps=False, order="kkvv", kvflags="nt", wqflags="nt", woflags="nt", b0=True,
        outflags="", sleep=0, probe="", pmask=0, pval=0, wqpat=32, b0late=False, qdiag=0, qst="sc1", qld="sc1", thr=0, thrn=32, wolate=False, tsync=False, only="", pre="", hst="sc1", hld="sc1", pd1=0, pd2=0, ack=False, amp=0):
    L = []
    A = L.append

    def vr(r, n=1):
        return f"v{r}" if n == 1 else f"v[{r}:{r+n-1}]"

    W = {1: "dword", 2: "dwordx2", 3: "dwordx3", 4: "dwordx4"}

    def gload(dst, n, voff, buf, imm=0, fl=""):
        if safe:
            A(f"buffer_load_{W[n]} {vr(dst,n)}, v{voff}, s[{SRD[buf]}:{SRD[buf]+3}], 0 offen offset:{imm} {fl}")
        else:
            A(f"global_load_{W[n]} {vr(dst,n)}, v{voff}, s[{BUF[buf]}:{BUF[buf]+1}] offset:{imm} {fl}")

    def gdma(voff, buf, imm=0, fl=""):
        if safe:
            A(f"buffer_load_dwordx4 v{voff}, s[{SRD[buf]}:{SRD[buf]+3}], 0 offen offset:{imm} {fl} lds")
        else:
            A(f"global_load_lds_dwordx4 v{voff}, s[{BUF[buf]}:{BUF[buf]+1}] offset:{imm} {fl}")

    def gstore(src, n, voff, buf, imm=0, fl=""):
        w = "short" if n == 0 else W[n]
        n = max(n, 1)
        if safe:
            A(f"buffer_store_{w} {vr(src,n)}, v{voff}, s[{SRD[buf]}:{SRD[buf]+3}], 0 offen offset:{imm} {fl}")
        else:
            A(f"global_store_{w} v{voff}, {vr(src,n)}, s[{BUF[buf]}:{BUF[buf]+1}] offset:{imm} {fl}")

    def srds():
        if safe:
            for b, s in SRD.items():
                A(f"s_mov_b32 s{s}, s{BUF[b]}"); A(f"s_mov_b32 s{s+1}, s{BUF[b]+1}")
                A(f"s_mov_b32 s{s+2}, {SIZE[b]}"); A(f"s_mov_b32 s{s+3}, 0x20000")

    nst = [0]
    STB = 200
    role = ["s"]
    def probe_spin():
        if probe and probe[0] == role[0]:
            if role[0] == "h":
                A("s_barrier"); A("s_barrier")
            nst[0] += 1
            A(f"s_and_b32 s40, s2, {pmask}"); A(f"s_cmp_eq_u32 s40, {pval}"); A(f"s_cbranch_scc0 L_probx{nst[0]}")
            A(f"L_probe{nst[0]}:")
            A("s_memrealtime s[40:41]"); A("s_waitcnt lgkmcnt(0)")
            A("s_sub_u32 s40, s40, s42"); A("s_cmpk_lt_i32 s40, 4000"); A(f"s_cbranch_scc1 L_probe{nst[0]}")
            A(f"L_probx{nst[0]}:")
    def stamp(i):
        if probe == f"{role[0]}{i}":
            if amp: A("s_mov_b32 s46, s42")
            A("s_memrealtime s[42:43]")
            A("s_waitcnt lgkmcnt(0)")
            if amp:
                A("s_sub_u32 s47, s42, s46"); A(f"s_mul_i32 s47, s47, {amp}"); A("s_add_u32 s42, s46, s47")
        if stamps and (not only or str(i) in str(only).split(",")):
            A("s_memrealtime s[40:41]")
            A("s_waitcnt lgkmcnt(0)")
            A(f"v_writelane_b32 v{STB}, s40, {i}")

    def stamp_flush():
        if stamps:
            A("s_mov_b64 exec, -1")
            A("s_mul_i32 s40, s2, 5"); A("s_add_u32 s40, s40, s3"); A("s_lshl_b32 s40, s40, 7")
            A(f"s_add_u32 s40, s40, {WS_ST}")
            A(f"v_lshl_add_u32 v{STB+1}, v2, 2, s40")
            A("s_mov_b32 exec_hi, 0")
            gstore(STB, 1, STB + 1, "ws")

    def mfma(d, a, b, c=None):
        cs = "0" if c is None else vr(c, 4)
        A(f"v_mfma_f32_16x16x32_bf16 {vr(d,4)}, {vr(a,4)}, {vr(b,4)}, {cs}")

    A(f"; @launch grid=(256,1,1) block=(320,1,1) lds={L_END}")
    A('.amdgcn_target "amdgcn-amd-amdhsa--gfx950"')
    A(".text"); A(f".globl {NAME}"); A(".p2align 8"); A(f".type {NAME},@function"); A(f"{NAME}:")
    if stamps or probe:
        A("s_memrealtime s[42:43]")
    A("s_cmpk_ge_u32 s2, 0x100")
    A("s_cbranch_scc1 L_end")
    A("s_load_dwordx16 s[4:19], s[0:1], 0")
    A("v_readfirstlane_b32 s3, v0")
    A("v_and_b32 v2, 63, v0              ; lane")
    A("v_and_b32 v3, 15, v0              ; n")
    A("v_bfe_u32 v4, v0, 4, 2            ; g")
    A("s_and_b32 s20, s2, 7              ; hkv")
    A("s_lshr_b32 s21, s2, 3             ; r")
    A("s_lshr_b32 s3, s3, 6              ; wave")
    A("s_cmp_eq_u32 s3, 4")
    A("s_cbranch_scc0 L_stream")

    A("s_setprio 3")
    A("s_getpc_b64 s[22:23]")
    A("L_pc:")
    A("v_lshlrev_b32 v5, 7, v2")
    A("v_min_u32 v5, L_codeend-L_pc-4, v5")
    A("global_load_dword v6, v5, s[22:23]")
    A("v_lshlrev_b32 v5, 4, v2           ; x offset")
    sh = {32: 1, 64: 2, 128: 3}[wqpat]
    A(f"v_lshrrev_b32 v7, {sh}, v2")
    A("v_lshlrev_b32 v7, 13, v7")
    A(f"v_and_b32 v8, {wqpat-16}, v5")
    A("s_lshl_b32 s24, s20, 10")
    if wqpat == 32:
        A("s_lshl_b32 s25, s21, 5")
    else:
        ncol = 1024 // wqpat
        A(f"s_and_b32 s25, s21, {ncol-1}"); A(f"s_lshl_b32 s25, s25, {sh+4}"); A("s_add_u32 s24, s24, s25")
        A(f"s_lshr_b32 s25, s21, {6-sh}"); A(f"s_mul_i32 s25, s25, {(448 >> (sh-1))*8192}")
    A("s_add_u32 s24, s24, s25")
    A("v_add3_u32 v7, v7, v8, s24")
    A(f"v_add_u32 v8, {(524288>>sh)-1024}, v7")
    A(f"s_movk_i32 m0, {L_X}")
    A(f"s_mov_b32 s25, {0x100000>>sh}")
    A("s_waitcnt lgkmcnt(0)")
    srds()
    A(f"s_load_dword s26, s[18:19], {WS_E}")
    gdma(5, "x", 0); gdma(5, "x", 1024); gdma(5, "x", 2048)
    A("s_mov_b32 exec_hi, 0")
    gdma(5, "x", 3072)
    A("s_mov_b32 exec_hi, -1")
    A(f"s_mov_b32 m0, {L_WQ}")
    A("s_nop 0")
    A("L_wq:")
    gdma(7, "wq", 0, wqflags)
    gdma(8, "wq", 1024, wqflags)
    A("s_addk_i32 m0, 0x800")
    A("v_add_u32 v7, s25, v7")
    A("v_add_u32 v8, s25, v8")
    A(f"s_cmpk_lt_u32 m0, {L_WQ+14336}")
    A("s_cbranch_scc1 L_wq")
    if b0late is not False:
        A(f"s_waitcnt vmcnt({b0late})")
    if b0:
        A("s_barrier                         ; B0")
    A("s_branch L_help2")

    A("L_stream:")
    VK = 72; VV = 136
    A("s_lshr_b32 s22, s2, 6             ; b")
    A("s_lshl3_add_u32 s23, s22, s20     ; b*8+hkv")
    A("s_lshl_b32 s23, s23, 21")
    A("s_and_b32 s24, s21, 7             ; c / dd")
    A("s_lshl3_add_u32 s25, s24, s3      ; c*8+w")
    A("s_lshl_b32 s25, s25, 13")
    A("s_add_u32 s23, s23, s25")
    A("s_add_u32 s23, s23, 0x180000")
    A("v_lshlrev_b32 v5, 9, v3")
    A("v_lshlrev_b32 v6, 4, v4")
    A("v_add3_u32 v5, v5, v6, s23        ; K tile0")
    A("v_add_u32 v6, 0x8000, v5          ; K tile1")
    A("v_lshlrev_b32 v7, 4, v3")
    A("v_lshlrev_b32 v8, 11, v4")
    A("v_add3_u32 v7, v7, v8, s23        ; V tile0")
    A("v_add_u32 v8, 0x8000, v7          ; V tile1")
    A("s_waitcnt lgkmcnt(0)")
    if probe == "s20": stamp(20)
    srds()
    if stamps:
        A(f"v_writelane_b32 v{STB}, s42, 0")
    if b0:
        A("s_barrier                         ; B0")
    stamp(1)
    seq = []
    def kt(T): return [("k", T, j) for j in range(8)]
    def vt(T): return [("v", T, j) for j in range(8)]
    if order == "kkvv": seq = kt(0) + kt(1) + vt(0) + vt(1)
    elif order == "kvkv": seq = kt(0) + vt(0) + kt(1) + vt(1)
    for idx, (b, T, j) in enumerate(seq):
        if thr and thr <= idx < thrn: A(f"s_waitcnt vmcnt({thr-1})")
        if b == "k": gload(VK + T*32 + j*4, 4, 5 + T, "k", j*64, kvflags)
        else: gload(VV + T*32 + j*4, 4, 7 + T, "v", (j >> 1)*512 + (j & 1)*256, kvflags)
    NWO = 4
    def after(item):
        return len(seq) - 1 - seq.index(item) + NWO
    A(f"s_load_dword s26, s[18:19], {WS_E}")
    A("s_lshr_b32 s27, s24, 1")
    A("s_lshl2_add_u32 s27, s20, s27")
    A("s_lshl_b32 s27, s27, 5")
    A("s_and_b32 s28, s24, 1")
    A("s_add_u32 s27, s27, s28           ; row0/4")
    A("s_mul_i32 s27, s27, 3584          ; row0*896")
    A("s_lshl2_add_u32 s28, s22, s3")
    A("s_cmp_ge_u32 s28, 14")
    A("s_cselect_b32 s29, 2, 0")
    A("s_cselect_b64 s[30:31], 1, -1")
    A("s_sub_u32 s29, s28, s29")
    A("s_lshl_b32 s29, s29, 6")
    A("s_add_u32 s27, s27, s29")
    A("v_bfe_u32 v9, v2, 2, 2")
    A("v_lshl_add_u32 v9, v4, 3, v9")
    A("v_mul_u32_u24 v9, 896, v9")
    A("v_and_b32 v10, 3, v2")
    A("v_lshlrev_b32 v11, 4, v10")
    A("v_add3_u32 v9, v9, v11, s27")
    A("s_lshl_b32 s29, s3, 12")
    A(f"s_add_u32 s29, s29, {L_WO}")
    A("s_mov_b32 m0, s29")
    def wo_issue():
        A("s_mov_b64 exec, s[30:31]")
        for u in range(4):
            gdma(9, "wo", u*1024, woflags)
            if u < 3: A(f"v_add_u32 v9, {28672-1024}, v9")
        A("s_mov_b64 exec, -1")
    if not wolate: wo_issue()
    stamp(2)
    A("v_and_b32 v16, 1, v2")
    A("v_lshlrev_b32 v16, 4, v16")
    A("v_mov_b32 v17, 0xffff")
    A("v_lshlrev_b32 v16, v16, v17")
    A("v_bfe_u32 v17, v2, 1, 2")
    for j in range(4):
        A(f"v_cmp_eq_u32 vcc, {j}, v17")
        A("s_nop 1")
        A(f"v_cndmask_b32 v{12+j}, 0, v16, vcc")
    A("v_bfe_u32 v16, v2, 3, 1           ; h")
    A("v_mul_u32_u24 v17, 576, v16")
    A("v_lshl_add_u32 v17, v4, 4, v17")
    A("v_lshlrev_b32 v18, 5, v16")
    A("s_lshl_b32 s27, s3, 3")
    A("v_add_u32 v19, s27, v18")
    A("s_lshl_b32 s27, s3, 11")
    A("v_lshl_add_u32 v20, v2, 4, s27")
    A("s_and_b32 s27, s3, 1"); A("s_lshl_b32 s27, s27, 10")
    A("s_lshr_b32 s29, s3, 1"); A("s_lshl_b32 s29, s29, 9"); A("s_add_u32 s27, s27, s29")
    A("v_lshl_add_u32 v21, v2, 4, s27")
    A("s_lshl_b32 s32, s20, 5            ; hkv*32")
    A("s_add_u32 s27, s32, s21"); A("s_lshl2_add_u32 s27, s27, s3"); A("s_lshl_b32 s27, s27, 9")
    A(f"s_add_u32 s27, s27, {WS_O1}")
    A("v_lshl_add_u32 v22, v2, 4, s27")
    A("s_lshl3_add_u32 s33, s3, s32      ; hkv*32 + w*8")
    A("s_lshl_b32 s27, s33, 11"); A("s_lshl_b32 s29, s24, 8"); A("s_add_u32 s27, s27, s29")
    A(f"s_add_u32 s27, s27, {WS_O1}")
    A("v_lshlrev_b32 v23, 12, v4"); A("v_lshlrev_b32 v24, 4, v3")
    A("v_add3_u32 v23, v23, v24, s27")
    A("s_lshl_b32 s27, s33, 7"); A("s_lshr_b32 s29, s24, 2"); A("s_lshl_b32 s29, s29, 4"); A("s_add_u32 s27, s27, s29")
    A(f"s_add_u32 s27, s27, {WS_S1}")
    A("v_lshl_add_u32 v24, v4, 8, s27")
    A("v_bfe_u32 v25, v2, 2, 2"); A("v_lshlrev_b32 v25, 6, v25")
    A("v_lshl_add_u32 v25, v4, 9, v25"); A("v_lshl_add_u32 v25, v10, 3, v25")
    A("v_add_u32 v25, m0, v25")
    A("s_lshl_b32 s27, s3, 7")
    A("v_lshlrev_b32 v26, 1, v4"); A("v_lshl_add_u32 v26, v3, 3, v26"); A("v_add_u32 v26, s27, v26")
    A("v_lshlrev_b32 v27, 4, v4"); A("v_lshl_add_u32 v27, v10, 7, v27")
    A("s_lshl3_add_u32 s34, s20, s24     ; p")
    A("s_lshl_b32 s27, s28, 6"); A("s_add_u32 s27, s27, s34"); A("s_lshl_b32 s27, s27, 9")
    A(f"s_add_u32 s27, s27, {WS_P2}")
    A("v_lshlrev_b32 v28, 4, v4"); A("v_lshl_add_u32 v28, v10, 6, v28"); A("v_add_u32 v28, s27, v28")
    A("v_mov_b32 v29, 0xffffff00")
    A("s_mov_b32 s35, 0x3db8aa3b         ; log2(e)/16")
    A("s_waitcnt lgkmcnt(0)")
    A("s_add_u32 s26, s26, 0x01010101    ; tag")
    A("s_and_b32 s36, s26, 0xff"); A("s_bfe_u32 s37, s26, 0x80008"); A("s_bfe_u32 s38, s26, 0x80010"); A("s_lshr_b32 s39, s26, 24")
    A("s_barrier")
    stamp(3)
    VQ = 40
    for j in range(8):
        A(f"ds_read_b128 {vr(VQ+4*j,4)}, v17 offset:{L_Q + 64*j}")
    S = 32
    A(f"s_waitcnt vmcnt({after(('k',1,7)) - (NWO if wolate else 0)})")
    stamp(4)
    for j in range(8):
        A(f"s_waitcnt lgkmcnt({7-j})")
        mfma(S, VK + 4*j, VQ + 4*j, None if j == 0 else S)
        mfma(S+4, VK + 32 + 4*j, VQ + 4*j, None if j == 0 else S+4)
    A("s_nop 6")
    T0 = 72
    for i in range(4):
        A(f"v_cvt_pk_bf16_f32 v{T0+i}, v{S+2*i}, v{S+2*i+1}")
    for i in range(4):
        A(f"v_lshlrev_b32 v{S+2*i}, 16, v{T0+i}")
        A(f"v_and_b32 v{S+2*i+1}, 0xffff0000, v{T0+i}")
    M = 76; Lr = 77; TT = 78
    A(f"v_max3_f32 v{M}, v{S}, v{S+1}, v{S+2}")
    A(f"v_max3_f32 v{M}, v{M}, v{S+3}, v{S+4}")
    A(f"v_max3_f32 v{M}, v{M}, v{S+5}, v{S+6}")
    A(f"v_max_f32 v{M}, v{M}, v{S+7}")
    def xred(reg, tmp, op):
        for sw in ("v_permlane32_swap_b32", "v_permlane16_swap_b32"):
            A(f"v_mov_b32 v{tmp}, v{reg}")
            A("s_nop 1")
            A(f"{sw} v{reg}, v{tmp}")
            A(f"{op} v{reg}, v{reg}, v{tmp}")
    xred(M, TT, "v_max_f32")
    for i in range(8): A(f"v_sub_f32 v{S+i}, v{S+i}, v{M}")
    for i in range(8): A(f"v_mul_f32 v{S+i}, s35, v{S+i}")
    for i in range(8): A(f"v_exp_f32 v{S+i}, v{S+i}")
    A(f"v_add_f32 v{Lr}, v{S}, v{S+1}")
    for i in range(2, 8): A(f"v_add_f32 v{Lr}, v{Lr}, v{S+i}")
    xred(Lr, TT, "v_add_f32")
    A(f"ds_write_b64 v19, {vr(M,2)} offset:{L_STAT}")
    A("s_waitcnt lgkmcnt(0)")
    A("s_barrier")
    A(f"ds_read_b128 v[80:83], v18 offset:{L_STAT}")
    A(f"ds_read_b128 v[84:87], v18 offset:{L_STAT+16}")
    A("s_waitcnt lgkmcnt(0)")
    A(f"v_max3_f32 v{TT}, v80, v82, v84")
    A(f"v_max_f32 v{TT}, v{TT}, v86")
    A(f"v_sub_f32 v{TT}, v{M}, v{TT}")
    A(f"v_mul_f32 v{TT}, s35, v{TT}")
    A(f"v_exp_f32 v{TT}, v{TT}")
    A("s_nop 0")
    for i in range(8): A(f"v_mul_f32 v{S+i}, v{S+i}, v{TT}")
    for i in range(8): A(f"v_cvt_pk_bf16_f32 v{S+i}, v{S+i}, v{S+i}")
    VA = 40
    for i in range(8):
        for j in range(4): A(f"v_and_b32 v{VA+4*i+j}, v{S+i}, v{12+j}")
    if wolate: wo_issue()
    stamp(5)
    ACC = 88
    first = True
    last_wait = None
    for T in range(2):
        for t in range(4):
            for h in range(2):
                wv = after(("v", T, 2*t + h))
                if T == 0:
                    wv = after(("v", 0, 7))
                if wv != last_wait:
                    A(f"s_waitcnt vmcnt({wv})"); last_wait = wv
                mfma(ACC + 4*h, VA + 16*T + 4*t, VV + 32*T + 8*t + 4*h, None if (T == 0 and t == 0) else ACC + 4*h)
    GS = 96
    if tsync:
        if "s" in pre:
            A("s_mov_b32 exec_hi, 0")
            gstore(12, 4, 22, "ws", 0, hst)
            A("s_mov_b32 exec_lo, 0x000f000f"); A("s_mov_b32 exec_hi, 0x000f000f")
            gstore(12, 4, 28, "ws", 0, hst); gstore(12, 4, 28, "ws", 256, hst)
            A("s_mov_b64 exec, -1")
        if "l" in pre:
            A("s_mov_b32 exec_hi, 0")
            gload(GS, 4, 22, "ws", 0, "sc1")
            A("s_mov_b32 exec_lo, 0x000f000f"); A("s_mov_b32 exec_hi, 0x000f000f")
            gload(GS, 4, 28, "ws", 0, "sc1"); gload(GS, 4, 28, "ws", 256, "sc1")
            A("s_mov_b64 exec, -1")
        A("s_waitcnt vmcnt(0)")
        A("s_add_u32 s44, s42, 1500"); A("s_or_b32 s44, s44, 0x3ff"); A("s_add_u32 s44, s44, 1")
        A("L_tsync:")
        A("s_memrealtime s[40:41]"); A("s_waitcnt lgkmcnt(0)")
        A("s_sub_u32 s45, s40, s44"); A("s_cmp_lt_i32 s45, 0"); A("s_cbranch_scc1 L_tsync")
        A(f"v_writelane_b32 v{STB}, s44, 13")
    gload(GS, 4, 24, "ws", 0, "sc1")
    gload(GS+4, 4, 24, "ws", 128, "sc1")
    A("s_nop 4")
    A(f"ds_write_b128 v20, {vr(ACC,4)} offset:{L_RED}")
    A(f"ds_write_b128 v20, {vr(ACC+4,4)} offset:{L_RED+1024}")
    A("s_waitcnt lgkmcnt(0)")
    stamp(6)
    A("s_barrier")
    A("s_mov_b32 exec_hi, 0")
    R = 104
    for i in range(4): A(f"ds_read_b128 {vr(R+4*i,4)}, v21 offset:{L_RED + 2048*i}")
    A("s_waitcnt lgkmcnt(2)")
    A(f"v_pk_add_f32 {vr(R,2)}, {vr(R,2)}, {vr(R+4,2)}")
    A(f"v_pk_add_f32 {vr(R+2,2)}, {vr(R+2,2)}, {vr(R+6,2)}")
    A("s_waitcnt lgkmcnt(0)")
    A(f"v_pk_add_f32 {vr(R+8,2)}, {vr(R+8,2)}, {vr(R+12,2)}")
    A(f"v_pk_add_f32 {vr(R+10,2)}, {vr(R+10,2)}, {vr(R+14,2)}")
    A(f"v_pk_add_f32 {vr(R,2)}, {vr(R,2)}, {vr(R+8,2)}")
    A(f"v_pk_add_f32 {vr(R+2,2)}, {vr(R+2,2)}, {vr(R+10,2)}")
    for j in range(4): A(f"v_and_or_b32 v{R+j}, v{R+j}, v29, s{36+j}")
    gstore(R, 4, 22, "ws", 0, hst)
    A("s_mov_b32 exec_hi, -1")
    GO = 120
    def until(d, lab):
        A(f"{lab}:")
        A("s_memrealtime s[40:41]"); A("s_waitcnt lgkmcnt(0)")
        A("s_sub_u32 s45, s40, s44"); A(f"s_cmp_lt_i32 s45, {d}"); A(f"s_cbranch_scc1 {lab}")
    if ack:
        A("s_waitcnt vmcnt(0)")
        stamp(6)
    if pd1: until(pd1, "L_pd1")
    gload(GO, 4, 23, "ws", 0, hld)
    gload(GO+4, 4, 23, "ws", 2048, hld)
    stamp(7)
    A(f"s_mov_b32 s27, {SPIN}")
    A("s_waitcnt vmcnt(3)")
    WA = 136
    for tau in range(2):
        for s in range(2):
            for e in range(2):
                A(f"ds_read_b64_tr_b16 {vr(WA + 8*tau + 4*s + 2*e, 2)}, v25 offset:{s*2048 + e*256 + tau*32}")
    A("L_spoll:")
    A(f"v_cmp_ne_u32 vcc, s26, v{GS+2}")
    A(f"v_cmp_ne_u32 s[30:31], s26, v{GS+6}")
    A("s_or_b64 vcc, vcc, s[30:31]")
    A("s_cbranch_vccz L_sok")
    gload(GS, 4, 24, "ws", 0, "sc1")
    gload(GS+4, 4, 24, "ws", 128, "sc1")
    A("s_sub_u32 s27, s27, 1")
    A("s_waitcnt vmcnt(0)")
    A("s_cbranch_scc0 L_spoll")
    A("L_sok:")
    A(f"v_max_f32 v{M}, v{GS}, v{GS+4}")
    xred(M, TT, "v_max_f32")
    A(f"v_sub_f32 v{GS}, v{GS}, v{M}"); A(f"v_sub_f32 v{GS+4}, v{GS+4}, v{M}")
    A(f"v_mul_f32 v{GS}, s35, v{GS}"); A(f"v_mul_f32 v{GS+4}, s35, v{GS+4}")
    A(f"v_exp_f32 v{GS}, v{GS}"); A(f"v_exp_f32 v{GS+4}, v{GS+4}")
    A("s_nop 0")
    A(f"v_mul_f32 v{Lr}, v{GS}, v{GS+1}")
    A(f"v_fmac_f32 v{Lr}, v{GS+4}, v{GS+5}")
    xred(Lr, TT, "v_add_f32")
    A(f"v_rcp_f32 v{Lr}, v{Lr}")
    A("s_nop 0")
    A(f"v_mul_f32 v{GS}, v{GS}, v{Lr}"); A(f"v_mul_f32 v{GS+4}, v{GS+4}, v{Lr}")
    stamp(8)
    A(f"s_mov_b32 s27, {SPIN}")
    A("L_opoll:")
    A("s_waitcnt vmcnt(0)")
    for i in range(8): A(f"v_xor_b32 v{GO+i}, s{36 + (i & 3)}, v{GO+i}")
    A(f"v_or3_b32 v{TT}, v{GO}, v{GO+1}, v{GO+2}")
    A(f"v_or3_b32 v{TT}, v{TT}, v{GO+3}, v{GO+4}")
    A(f"v_or3_b32 v{TT}, v{TT}, v{GO+5}, v{GO+6}")
    A(f"v_or_b32 v{TT}, v{TT}, v{GO+7}")
    A(f"v_lshlrev_b32 v{TT}, 24, v{TT}")
    A(f"v_cmp_ne_u32 vcc, 0, v{TT}")
    A("s_cbranch_vccz L_ook")
    if sleep: A(f"s_sleep {sleep}")
    gload(GO, 4, 23, "ws", 0, hld)
    gload(GO+4, 4, 23, "ws", 2048, hld)
    A("s_sub_u32 s27, s27, 1")
    A("s_cbranch_scc0 L_opoll")
    A("s_waitcnt vmcnt(0)")
    A("L_ook:")
    if stamps: A(f"v_writelane_b32 v{STB}, s27, 14")
    stamp(9)
    for i in range(4): A(f"v_mul_f32 v{GO+i}, v{GO+i}, v{GS}")
    for i in range(4): A(f"v_fmac_f32 v{GO+i}, v{GO+4+i}, v{GS+4}")
    def tred(r):
        A("s_nop 0")
        A(f"v_permlane32_swap_b32 v{r}, v{r+2}")
        A(f"v_permlane32_swap_b32 v{r+1}, v{r+3}")
        A(f"v_add_f32 v{r}, v{r}, v{r+2}")
        A(f"v_add_f32 v{r+1}, v{r+1}, v{r+3}")
        A("s_nop 1")
        A(f"v_permlane16_swap_b32 v{r}, v{r+1}")
        A(f"v_add_f32 v{r}, v{r}, v{r+1}")
    tred(GO)
    A(f"v_cvt_pk_bf16_f32 v{GO}, v{GO}, v{GO}")
    A(f"ds_write_b16 v26, v{GO} offset:{L_OX}")
    A("s_waitcnt lgkmcnt(0)")
    A("s_barrier")
    A("s_cmp_ge_u32 s28, 14")
    A("s_cbranch_scc1 L_final")
    OB = 152
    A(f"ds_read_b128 {vr(OB,4)}, v27 offset:{L_OX}")
    A(f"ds_read_b128 {vr(OB+4,4)}, v27 offset:{L_OX+64}")
    D = 160
    A("s_waitcnt lgkmcnt(1)")
    mfma(D, WA, OB)
    mfma(D+4, WA+8, OB)
    A("s_waitcnt lgkmcnt(0)")
    mfma(D, WA+4, OB+4, D)
    mfma(D+4, WA+12, OB+4, D+4)
    A("s_mov_b32 exec_lo, 0x000f000f")
    A("s_mov_b32 exec_hi, 0x000f000f")
    A("s_nop 4")
    for j in range(4): A(f"v_and_or_b32 v{D+j}, v{D+j}, v29, s{36+j}")
    gstore(D, 4, 28, "ws", 0, hst)
    for j in range(4): A(f"v_and_or_b32 v{D+4+j}, v{D+4+j}, v29, s{36+j}")
    gstore(D+4, 4, 28, "ws", 256, hst)
    if ack: A("s_waitcnt vmcnt(0)")
    stamp(10)
    stamp_flush()
    probe_spin()
    A("s_endpgm")

    A("L_final:")
    A("s_cmp_eq_u32 s24, 7")
    A("s_cbranch_scc1 L_end2")
    A("s_lshl3_add_u32 s27, s24, s20")
    A("s_lshr_b32 s29, s27, 2"); A("s_lshl_b32 s29, s29, 15")
    A("s_and_b32 s30, s27, 3"); A("s_lshl_b32 s30, s30, 7"); A("s_add_u32 s29, s29, s30")
    A("s_and_b32 s31, s3, 1"); A("s_lshl_b32 s30, s31, 6"); A("s_add_u32 s29, s29, s30")
    A(f"s_add_u32 s29, s29, {WS_P2}")
    A("v_lshrrev_b32 v30, 2, v2"); A("v_lshlrev_b32 v30, 11, v30")
    A("v_add3_u32 v30, v30, v11, s29")
    F = 160
    if pd2: until(pd2, "L_pd2")
    for j in range(4): gload(F + 4*j, 4, 30, "ws", 512*j, hld)
    A("s_and_b32 s29, s27, 1"); A("s_lshl1_add_u32 s29, s29, s31"); A("s_mul_i32 s29, s29, 896")
    A("s_lshr_b32 s30, s27, 1"); A("s_lshl_b32 s30, s30, 5"); A("s_add_u32 s29, s29, s30")
    A("v_lshlrev_b32 v31, 1, v4"); A("v_lshl_add_u32 v31, v10, 3, v31"); A("v_add_u32 v31, s29, v31")
    A("s_lshl1_add_u32 s33, s27, s31")
    A(f"s_mov_b32 s27, {SPIN}")
    A("L_fpoll:")
    for j in range(4):
        A(f"s_waitcnt vmcnt({3-j})")
        for i in range(4): A(f"v_xor_b32 v{F+4*j+i}, s{36+i}, v{F+4*j+i}")
        if j == 0:
            A(f"v_or_b32 v{TT}, v{F}, v{F+1}")
            A(f"v_or3_b32 v{TT}, v{TT}, v{F+2}, v{F+3}")
        else:
            A(f"v_or3_b32 v{TT}, v{TT}, v{F+4*j}, v{F+4*j+1}")
            A(f"v_or3_b32 v{TT}, v{TT}, v{F+4*j+2}, v{F+4*j+3}")
            A(f"v_pk_add_f32 {vr(F,2)}, {vr(F,2)}, {vr(F+4*j,2)}")
            A(f"v_pk_add_f32 {vr(F+2,2)}, {vr(F+2,2)}, {vr(F+4*j+2,2)}")
    A(f"v_lshlrev_b32 v{TT}, 24, v{TT}")
    A(f"v_cmp_ne_u32 vcc, 0, v{TT}")
    A("s_cbranch_vccz L_fok")
    if sleep: A(f"s_sleep {sleep}")
    for j in range(4): gload(F + 4*j, 4, 30, "ws", 512*j, hld)
    A("s_sub_u32 s27, s27, 1")
    A("s_cbranch_scc0 L_fpoll")
    A("s_waitcnt vmcnt(0)")
    A("L_fok:")
    if stamps: A(f"v_writelane_b32 v{STB}, s27, 15")
    stamp(12 if probe else 10)
    tred(F)
    A("s_nop 1")
    A(f"v_add_f32_dpp v{F}, v{F}, v{F} row_ror:8 row_mask:0xf bank_mask:0xf")
    A("s_nop 1")
    A(f"v_add_f32_dpp v{F}, v{F}, v{F} row_ror:4 row_mask:0xf bank_mask:0xf")
    A("s_mov_b32 exec_lo, 0x000f000f")
    A("s_mov_b32 exec_hi, 0x000f000f")
    A(f"v_cvt_pk_bf16_f32 v{F}, v{F}, v{F}")
    gstore(F, 0, 31, "out", 0, outflags)
    A("s_cmp_eq_u32 s33, 0")
    A("s_cbranch_scc0 L_end2")
    A("s_mov_b64 exec, 1")
    A("v_mov_b32 v30, 0"); A("v_mov_b32 v31, s26")
    gstore(31, 1, 30, "ws", WS_E, "sc1")
    A("L_end2:")
    if stamps or probe == "s11":
        A("s_waitcnt vmcnt(0)")
        stamp(11)
        stamp_flush()
    probe_spin()
    A("L_end:")
    A("s_endpgm")

    A("L_help2:")
    role[0] = "h"
    if stamps:
        A(f"v_writelane_b32 v{STB}, s42, 0")
    stamp(1)
    A("v_and_b32 v10, 3, v2")
    A("v_mul_u32_u24 v5, 896, v10")
    A("v_lshl_add_u32 v5, v4, 4, v5")
    A("v_lshlrev_b32 v7, 3, v3")
    A("v_lshl_add_u32 v7, v4, 8, v7")
    A("s_lshl_b32 s32, s20, 5")
    A("s_add_u32 s33, s32, s21           ; hkv*32 + r")
    A("s_lshl_b32 s27, s33, 8"); A(f"s_add_u32 s27, s27, {WS_Q1}")
    A("v_lshlrev_b32 v8, 4, v4"); A("v_lshl_add_u32 v8, v10, 6, v8"); A("v_add_u32 v8, s27, v8")
    A("s_lshr_b32 s22, s2, 6")
    A("s_lshl_b32 s27, s20, 13"); A("s_lshl_b32 s29, s22, 6"); A("s_add_u32 s27, s27, s29"); A(f"s_add_u32 s27, s27, {WS_Q1}")
    A("v_lshrrev_b32 v9, 2, v2"); A("v_lshlrev_b32 v9, 8, v9"); A("v_lshlrev_b32 v11, 4, v10")
    A("v_add3_u32 v9, v9, v11, s27")
    A("v_add_u32 v11, 0x1000, v9")
    A("v_lshlrev_b32 v12, 3, v2")
    A("s_waitcnt lgkmcnt(0)")
    A("s_add_u32 s26, s26, 0x01010101    ; tag")
    A("v_mov_b32 v18, s26"); A("v_mov_b32 v19, s26")
    XB = 24; WQA = 80
    A("s_waitcnt vmcnt(14)")
    stamp(2)
    for s in range(14): A(f"ds_read_b128 {vr(XB+4*s,4)}, v5 offset:{L_X + 64*s}")
    A("s_waitcnt lgkmcnt(0)")
    QD = 20
    pend = []
    groups = [(0, 4), (4, 8), (8, 11), (11, 13), (13, 14)]
    for gi, (a, b) in enumerate(groups):
        A(f"s_waitcnt vmcnt({14-b})")
        for s in range(a, b):
            A(f"ds_read_b64_tr_b16 {vr(WQA+4*s,2)}, v7 offset:{L_WQ + 1024*s}")
            A(f"ds_read_b64_tr_b16 {vr(WQA+4*s+2,2)}, v7 offset:{L_WQ + 1024*s + 128}")
        for s in range(a, b):
            A(f"s_waitcnt lgkmcnt({2*(b-1-s)})")
            mfma(QD, WQA + 4*s, XB + 4*s, None if s == 0 else QD)
    A("s_mov_b32 exec_lo, 0x000f000f")
    A("s_mov_b32 exec_hi, 0x000f000f")
    A("s_nop 5")
    A(f"v_cvt_pk_bf16_f32 v16, v{QD}, v{QD+1}")
    A(f"v_cvt_pk_bf16_f32 v17, v{QD+2}, v{QD+3}")
    stamp(6)
    gstore(16, 4, 8, "ws", 0, qst)
    A("s_mov_b64 exec, -1")
    stamp(3)
    if qdiag == 1:
        A("s_waitcnt vmcnt(0)")
    stamp(7)
    if qdiag != 2:
        A("v_mov_b32 v13, 0")
        gload(6, 1, 13, "out")
    if qdiag == 1:
        A("s_waitcnt vmcnt(0)")
    stamp(8)
    A(f"s_mov_b32 s27, {SPIN}")
    A("L_qpoll:")
    gload(24, 4, 9, "ws", 0, qld)
    gload(28, 4, 11, "ws", 0, qld)
    stamp(9)
    A("s_waitcnt vmcnt(0)")
    A("v_cmp_ne_u32 vcc, s26, v26")
    A("v_cmp_ne_u32 s[30:31], s26, v30")
    A("s_or_b64 vcc, vcc, s[30:31]")
    A("s_cbranch_vccz L_qok")
    A("s_sub_u32 s27, s27, 1")
    A("s_cbranch_scc0 L_qpoll")
    A("L_qok:")
    A(f"ds_write_b64 v12, v[24:25] offset:{L_Q}")
    A(f"ds_write_b64 v12, v[28:29] offset:{L_Q+576}")
    if stamps:
        A(f"v_writelane_b32 v{STB}, s27, 12")
    A("s_waitcnt lgkmcnt(0)")
    stamp(4)
    A("s_barrier                         ; B1")
    A("v_lshlrev_b32 v5, 5, v2")
    A("s_lshl_b32 s27, s33, 7"); A(f"s_add_u32 s27, s27, {WS_S1}")
    A("v_lshl_add_u32 v7, v2, 4, s27")
    A("s_mov_b32 s35, 0x3db8aa3b")
    A("s_mov_b64 exec, 3")
    A("s_barrier                         ; B2")
    A(f"ds_read_b128 v[24:27], v5 offset:{L_STAT}")
    A(f"ds_read_b128 v[28:31], v5 offset:{L_STAT+16}")
    A("s_waitcnt lgkmcnt(0)")
    A("v_max3_f32 v16, v24, v26, v28")
    A("v_max_f32 v16, v16, v30")
    for i in range(4): A(f"v_sub_f32 v{24+2*i}, v{24+2*i}, v16")
    for i in range(4): A(f"v_mul_f32 v{24+2*i}, s35, v{24+2*i}")
    for i in range(4): A(f"v_exp_f32 v{24+2*i}, v{24+2*i}")
    A("v_mul_f32 v17, v24, v25")
    for i in range(1, 4): A(f"v_fmac_f32 v17, v{24+2*i}, v{25+2*i}")
    gstore(16, 4, 7, "ws", 0, "sc1")
    stamp(5)
    stamp_flush()
    probe_spin()
    A("s_endpgm")
    A("L_codeend:")

    nv = 204 if stamps else 200
    A('.section .rodata,"a"'); A(".p2align 6"); A(f".amdhsa_kernel {NAME}")
    A(f"  .amdhsa_next_free_vgpr {nv}"); A(f"  .amdhsa_next_free_sgpr {96 if safe else 48}"); A(f"  .amdhsa_accum_offset {nv}")
    A("  .amdhsa_group_segment_fixed_size 0"); A("  .amdhsa_kernarg_size 64"); A("  .amdhsa_user_sgpr_count 2")
    A("  .amdhsa_user_sgpr_kernarg_segment_ptr 1"); A("  .amdhsa_system_sgpr_workgroup_id_x 1")
    A("  .amdhsa_float_denorm_mode_32 3")
    A(".end_amdhsa_kernel")
    out = []
    for l in L:
        if l.endswith(":") or l.startswith(".") or l.startswith(";") or l.startswith("  ."):
            out.append(l)
        else:
            out.append("    " + l.rstrip())
    return HEADER + "\n".join(out) + "\n"


if __name__ == "__main__":
    kw = {}
    for a in sys.argv[2:]:
        k, v = a.split("=")
        kw[k] = eval(v) if v in ("True", "False") or v.isdigit() else v
    open(sys.argv[1], "w").write(gen(**kw))
```

```python
def emit_record(A, gstore, WS_ST, nw_shift=3):
    A("s_mov_b64 exec, 1")
    A("s_lshl3_add_u32 s40, s2, s3"); A("s_lshl_b32 s40, s40, 3"); A(f"s_add_u32 s40, s40, {WS_ST}")
    A("v_mov_b32 v60, s40"); A("v_mov_b32 v62, s46"); A("v_mov_b32 v63, s42")
    gstore(62, 2, 60, "ws", 0, "sc1")
    A("s_mov_b64 exec, -1")

def emit_report(A, gload, WS_ST, u, amp, pmask, pval, omin=False):
    A("s_or_b32 s40, s2, s3"); A(f"s_cbranch_scc1 L_opx{u}")
    A(f"L_opa{u}:")
    A("s_memrealtime s[40:41]"); A("s_waitcnt lgkmcnt(0)")
    A("s_sub_u32 s40, s40, s46"); A("s_cmpk_lt_i32 s40, 3000"); A(f"s_cbranch_scc1 L_opa{u}")
    A("v_lshlrev_b32 v60, 4, v2"); A(f"v_add_u32 v60, {WS_ST}, v60")
    A("v_mov_b32 v56, 0"); A(f"v_mov_b32 v57, {'0x7fffffff' if omin else '0x80000000'}"); A("v_mov_b32 v59, v57")
    A("v_lshrrev_b32 v58, 2, v2")
    A("s_mov_b32 s47, 0")
    A(f"L_opb{u}:")
    gload(64, 4, 60, "ws", 0, "sc1")
    A("s_waitcnt vmcnt(0)")
    op = "v_min_i32" if omin else "v_max_i32"
    if omin:
        for a in (64, 66):
            A(f"v_cmp_eq_u32 vcc, v{a}, v{a+1}"); A(f"v_subrev_u32 v{a}, s46, v{a}"); A(f"v_subrev_u32 v{a+1}, s46, v{a+1}")
            A(f"v_cndmask_b32 v{a+1}, v{a+1}, v59, vcc")
    else:
        for i in range(4): A(f"v_subrev_u32 v{64+i}, s46, v{64+i}")
    A("v_min3_i32 v56, v56, v64, v66")
    A(f"{op} v65, v65, v67")
    A(f"v_and_b32 v61, {pmask}, v58"); A(f"v_cmp_eq_u32 vcc, {pval}, v61"); A("s_nop 1")
    A("v_cndmask_b32 v65, v59, v65, vcc")
    A(f"{op} v57, v57, v65")
    A("v_add_u32 v60, 1024, v60"); A("v_add_u32 v58, 16, v58")
    A("s_add_u32 s47, s47, 1"); A("s_cmp_lt_u32 s47, 16"); A(f"s_cbranch_scc1 L_opb{u}")
    A("s_mov_b32 s47, 0"); A("s_mov_b32 s44, 0"); A(f"s_mov_b32 s45, {'0x7fffffff' if omin else '0x80000000'}")
    A(f"L_opc{u}:")
    A("v_readlane_b32 s40, v56, s47"); A("v_readlane_b32 s41, v57, s47")
    A("s_min_i32 s44, s44, s40"); A(f"{'s_min_i32' if omin else 's_max_i32'} s45, s45, s41")
    A("s_add_u32 s47, s47, 1"); A("s_cmp_lt_u32 s47, 64"); A(f"s_cbranch_scc1 L_opc{u}")
    A("s_sub_u32 s45, s45, s44"); A("s_min_u32 s45, s45, 3000"); A(f"s_mul_i32 s45, s45, {amp}")
    A("s_add_u32 s45, s45, s44"); A("s_add_u32 s45, s45, 4000")
    A(f"L_opd{u}:")
    A("s_memrealtime s[40:41]"); A("s_waitcnt lgkmcnt(0)")
    A("s_sub_u32 s40, s40, s46"); A("s_cmp_lt_i32 s40, s45"); A(f"s_cbranch_scc1 L_opd{u}")
    A(f"L_opx{u}:")
```

```python
import sys, os
sys.path.insert(0, os.path.dirname(os.path.abspath(__file__)))
import oprobe

NAME = "standalone__sliding_block_cached__decode_kernel"

HEADER = """; Kernarg layout for this problem (64 bytes, ptrs only, base s[0:1]):
;   offset  24: d_in[3] wq  shape=(448, 4096) dtype=bfloat16
;   offset  32: d_in[4] wo  shape=(4096, 448) dtype=bfloat16
;   offset  56: d_ws      268435456 bytes workspace
"""

WS_E = 0
WS_S1 = 0x8000
WS_Q1 = 0x10000
WS_O1 = 0x50000
SLOW = 0x100000
WS_P2 = 0x200000 - 0x10000 * 0
WS_P2 = 0x200000
WS_ST = 0x400000

L_WQ = 0
L_Q = 14336
L_STAT = 15616
L_OX = 15872
L_RED = 16384
L_WO = 24576
L_END = 40960

BUF = dict(x=4, k=6, v=8, wq=10, wo=12, out=14, dbg=16, ws=18)
SIZE = dict(x=3584, k=67108864, v=67108864, wq=3670016, wo=3670016, out=3584, dbg=256, ws=268435456)
SRD = dict(x=64, k=68, v=72, wq=76, wo=80, out=84, ws=88)

SPIN = 100000


def gen(safe=False, stamps=False, only="", probe="", pmask=0, pval=0, amp=0,
        kvflags="nt", wqflags="nt", woflags="nt", outflags="", thr=8, thr2=8, thrsw=32, kpre=0,
        nq=3, qgap=8, nf=256, gw=True, tsync=False, fast=True, fpre=True, wopos=1, vland=False, qdelay=0, psleep=0, kb="R X Y W0 W1 G3 G4 G5 U0 U1", nowo=False, wqx="", nopf=False, ptf="sc1", slowf="sc1", xf="", pollf="sc1", op="", omin=False, plen=4000):
    L = []
    A = L.append

    def vr(r, n=1):
        return f"v{r}" if n == 1 else f"v[{r}:{r+n-1}]"

    W = {1: "dword", 2: "dwordx2", 3: "dwordx3", 4: "dwordx4"}

    def gload(dst, n, voff, buf, imm=0, fl=""):
        if safe:
            A(f"buffer_load_{W[n]} {vr(dst,n)}, v{voff}, s[{SRD[buf]}:{SRD[buf]+3}], 0 offen offset:{imm} {fl}")
        else:
            A(f"global_load_{W[n]} {vr(dst,n)}, v{voff}, s[{BUF[buf]}:{BUF[buf]+1}] offset:{imm} {fl}")

    def gdma(voff, buf, imm=0, fl=""):
        if nowo and buf == "wo": return
        if wqx == "none" and buf == "wq": return
        if safe:
            A(f"buffer_load_dwordx4 v{voff}, s[{SRD[buf]}:{SRD[buf]+3}], 0 offen offset:{imm} {fl} lds")
        else:
            A(f"global_load_lds_dwordx4 v{voff}, s[{BUF[buf]}:{BUF[buf]+1}] offset:{imm} {fl}")

    def gstore(src, n, voff, buf, imm=0, fl=""):
        w = "short" if n == 0 else W[n]
        n = max(n, 1)
        if safe:
            A(f"buffer_store_{w} {vr(src,n)}, v{voff}, s[{SRD[buf]}:{SRD[buf]+3}], 0 offen offset:{imm} {fl}")
        else:
            A(f"global_store_{w} v{voff}, {vr(src,n)}, s[{BUF[buf]}:{BUF[buf]+1}] offset:{imm} {fl}")

    def publish(src, voff, tmp):
        if fast:
            gstore(src, 4, voff, "ws", 0, "")
            A(f"v_add_u32 v{tmp}, {SLOW}, v{voff}")
            gstore(src, 4, tmp, "ws", 0, slowf)
        else:
            gstore(src, 4, voff, "ws", 0, "sc1")

    def srds():
        if op: A("s_mov_b32 s46, s42")
        if safe:
            for b, s in SRD.items():
                A(f"s_mov_b32 s{s}, s{BUF[b]}"); A(f"s_mov_b32 s{s+1}, s{BUF[b]+1}")
                A(f"s_mov_b32 s{s+2}, {SIZE[b]}"); A(f"s_mov_b32 s{s+3}, 0x20000")

    STB = 200
    role = ["s"]
    uid = [0]

    def probe_spin():
        if probe and probe[0] == role[0]:
            uid[0] += 1
            u = uid[0]
            A(f"s_and_b32 s40, s2, {pmask}"); A(f"s_cmp_eq_u32 s40, {pval}"); A(f"s_cbranch_scc0 L_probx{u}")
            A(f"L_probe{u}:")
            A("s_memrealtime s[40:41]"); A("s_waitcnt lgkmcnt(0)")
            A("s_sub_u32 s40, s40, s42"); A(f"s_cmpk_lt_i32 s40, {plen}"); A(f"s_cbranch_scc1 L_probe{u}")
            A(f"L_probx{u}:")

    def stamp(i):
        if op == f"{role[0]}{i}":
            A("s_memrealtime s[42:43]")
            A("s_waitcnt lgkmcnt(0)")
        if probe == f"{role[0]}{i}":
            if amp: A("s_mov_b32 s46, s42")
            A("s_memrealtime s[42:43]")
            A("s_waitcnt lgkmcnt(0)")
            if amp:
                A("s_sub_u32 s47, s42, s46"); A(f"s_mul_i32 s47, s47, {amp}"); A("s_add_u32 s42, s46, s47")
        if stamps and (only == "" or f"{role[0]}{i}" in str(only).split(",")):
            A("s_memrealtime s[40:41]")
            A("s_waitcnt lgkmcnt(0)")
            A(f"v_writelane_b32 v{STB}, s40, {i}")

    def note(sreg, i):
        if stamps: A(f"v_writelane_b32 v{STB}, {sreg}, {i}")

    def finish():
        if stamps:
            A("s_mov_b64 exec, -1")
            A("s_lshl3_add_u32 s40, s2, s3"); A("s_lshl_b32 s40, s40, 7")
            A(f"s_add_u32 s40, s40, {WS_ST}")
            A(f"v_lshl_add_u32 v{STB+1}, v2, 2, s40")
            A("s_mov_b32 exec_hi, 0")
            gstore(STB, 1, STB + 1, "ws")
        probe_spin()
        if op:
            uid[0] += 1
            oprobe.emit_record(A, gstore, WS_ST)
            if role[0] == "s": oprobe.emit_report(A, gload, WS_ST, uid[0], amp, pmask, pval, omin)
        A("s_endpgm")

    def mfma(d, a, b, c=None):
        cs = "0" if c is None else vr(c, 4)
        A(f"v_mfma_f32_16x16x32_bf16 {vr(d,4)}, {vr(a,4)}, {vr(b,4)}, {cs}")

    def tags():
        A("s_add_u32 s26, s26, 0x01010101")
        A("s_and_b32 s36, s26, 0xff"); A("s_bfe_u32 s37, s26, 0x80008"); A("s_bfe_u32 s38, s26, 0x80010"); A("s_lshr_b32 s39, s26, 24")

    def xred(reg, tmp, op):
        for sw in ("v_permlane32_swap_b32", "v_permlane16_swap_b32"):
            A(f"v_mov_b32 v{tmp}, v{reg}")
            A("s_nop 1")
            A(f"{sw} v{reg}, v{tmp}")
            A(f"{op} v{reg}, v{reg}, v{tmp}")

    def tred(r):
        A(f"v_permlane32_swap_b32 v{r}, v{r+2}")
        A(f"v_permlane32_swap_b32 v{r+1}, v{r+3}")
        A(f"v_add_f32 v{r}, v{r}, v{r+2}")
        A(f"v_add_f32 v{r+1}, v{r+1}, v{r+3}")
        A("s_nop 1")
        A(f"v_permlane16_swap_b32 v{r}, v{r+1}")
        A(f"v_add_f32 v{r}, v{r}, v{r+1}")

    def untag8(g, tt):
        for i in range(8): A(f"v_xor_b32 v{g+i}, s{36 + (i & 3)}, v{g+i}")
        A(f"v_or3_b32 v{tt}, v{g}, v{g+1}, v{g+2}")
        A(f"v_or3_b32 v{tt}, v{tt}, v{g+3}, v{g+4}")
        A(f"v_or3_b32 v{tt}, v{tt}, v{g+5}, v{g+6}")
        A(f"v_or_b32 v{tt}, v{tt}, v{g+7}")
        A(f"v_lshlrev_b32 v{tt}, 24, v{tt}")
        A(f"v_cmp_ne_u32 vcc, 0, v{tt}")

    def spin_step(addr):
        if fast:
            A(f"s_cmp_eq_u32 s27, {SPIN - nf}")
            A(f"s_cselect_b32 s29, {SLOW}, 0")
            A(f"v_add_u32 v{addr}, s29, v{addr}")
        if psleep: A(f"s_sleep {psleep}")
        A("s_sub_u32 s27, s27, 1")

    A(f"; @launch grid=(256,1,1) block=(512,1,1) lds={L_END}")
    A('.amdgcn_target "amdgcn-amd-amdhsa--gfx950"')
    A(".text"); A(f".globl {NAME}"); A(".p2align 8"); A(f".type {NAME},@function"); A(f"{NAME}:")
    if stamps or probe or op:
        A("s_memrealtime s[42:43]")
    A("s_cmpk_ge_u32 s2, 0x100")
    A("s_cbranch_scc1 L_end")
    A("s_load_dwordx16 s[4:19], s[0:1], 0")
    A("v_readfirstlane_b32 s3, v0")
    A("v_and_b32 v2, 63, v0              ; lane")
    A("v_and_b32 v3, 15, v0              ; n")
    A("v_bfe_u32 v4, v0, 4, 2            ; g")
    A("s_and_b32 s20, s2, 7              ; hkv")
    A("s_lshr_b32 s22, s2, 6")
    A("s_bfe_u32 s24, s2, 0x30003        ; c / line / dd")
    A("s_lshr_b32 s3, s3, 6              ; wave")
    A("s_cmp_lt_u32 s3, 4")
    A("s_cbranch_scc1 L_stream")
    A("s_cmp_eq_u32 s3, 4")
    A("s_cbranch_scc1 L_w4")
    A("s_getpc_b64 s[28:29]")
    A("L_pc:")
    A("v_lshlrev_b32 v5, 5, v0")
    A("v_subrev_u32 v5, 10240, v5")
    A("v_min_u32 v5, L_codeend-L_pc-4, v5")
    if not nopf: A("global_load_dword v6, v5, s[28:29]")
    A("s_barrier                         ; B0")
    A("s_branch L_tail")
    A("L_w4:")

    XR = 24
    A("s_setprio 3")
    A("v_and_b32 v10, 3, v2")
    A("v_mul_u32_u24 v5, 896, v10")
    A("s_mul_i32 s25, s22, 224")
    A("v_lshlrev_b32 v6, 3, v4")
    A("v_add3_u32 v6, v5, v6, s25")
    A("v_lshl_add_u32 v5, v4, 3, v6")
    A("s_lshl3_add_u32 s23, s20, s24     ; line index hkv*8+line")
    A("s_lshl_b32 s27, s23, 7")
    A("s_lshl_b32 s25, s25, 12           ; kq*112*8192")
    A("s_add_u32 s25, s25, s27")
    A("v_lshrrev_b32 v7, 3, v2")
    A("v_lshlrev_b32 v7, 13, v7")
    A("v_and_b32 v8, 7, v2")
    A("v_lshlrev_b32 v8, 4, v8")
    A("v_add3_u32 v7, v7, v8, s25        ; wq offset, rows 0..7")
    A(f"v_add_u32 v8, {65536-1024}, v7")
    A(f"s_mov_b32 m0, {L_WQ}")
    A("s_mov_b32 s25, 0x20000")
    if wqx == "lin":
        A("s_mul_i32 s25, s2, 14336"); A("v_lshl_add_u32 v7, v2, 4, s25"); A("v_mov_b32 v8, v7"); A("s_movk_i32 s25, 0x800")
    if wqx == "spread":
        A("s_and_b32 s25, s2, 3"); A("s_mul_i32 s25, s25, 917504"); A("s_bfe_u32 s27, s2, 0x10002"); A("s_lshl_b32 s27, s27, 12"); A("s_add_u32 s25, s25, s27")
        A("s_lshr_b32 s27, s2, 3"); A("s_lshl_b32 s27, s27, 7"); A("s_add_u32 s25, s25, s27")
        A("v_lshrrev_b32 v7, 3, v2"); A("v_lshlrev_b32 v7, 13, v7"); A("v_and_b32 v8, 7, v2"); A("v_lshlrev_b32 v8, 4, v8")
        A("v_add3_u32 v7, v7, v8, s25"); A(f"v_add_u32 v8, {65536-1024}, v7"); A("s_mov_b32 s25, 0x20000")
    A("s_waitcnt lgkmcnt(0)")
    srds()
    for s in range(3): gload(XR + 4*s, 4, 5, "x", 64*s, xf)
    gload(XR + 12, 2, 6, "x", 192, xf)
    A("L_wq:")
    gdma(7, "wq", 0, wqflags)
    gdma(8, "wq", 1024, wqflags)
    A("s_addk_i32 m0, 0x800")
    A("v_add_u32 v7, s25, v7")
    A("v_add_u32 v8, s25, v8")
    A(f"s_cmpk_lt_u32 m0, {L_WQ+14336}")
    A("s_cbranch_scc1 L_wq")
    A("s_barrier                         ; B0")
    A("s_branch L_qproj")

    A("L_stream:")
    VK = 68; VV = 132
    A("s_lshl3_add_u32 s23, s22, s20     ; b*8+hkv")
    A("s_lshl_b32 s23, s23, 21")
    kp = {b: 9 + i for i, b in enumerate(kb.replace("_", " ").split())}
    assert kp["U0"] == 17 and kp["U1"] == 18 and kp["Y"] == kp["X"] + 1 and kp["W1"] == kp["W0"] + 1 and kp["G5"] == kp["G4"] + 1
    A("s_add_u32 s23, s23, 0x180000")
    if kp["G4"] == kp["G3"] + 1:
        A(f"s_lshl_b32 s25, s24, {kp['G3']}"); A("s_add_u32 s23, s23, s25")
    else:
        A("s_and_b32 s25, s24, 1"); A(f"s_lshl_b32 s25, s25, {kp['G3']}"); A("s_add_u32 s23, s23, s25")
        A("s_lshr_b32 s25, s24, 1"); A(f"s_lshl_b32 s25, s25, {kp['G4']}"); A("s_add_u32 s23, s23, s25")
    A(f"s_lshl_b32 s25, s3, {kp['W0']}"); A("s_add_u32 s23, s23, s25")
    if kp["X"] == kp["R"] + 1:
        A("v_lshrrev_b32 v5, 1, v3")
        A(f"v_lshlrev_b32 v5, {kp['R']}, v5")
    else:
        A("v_and_b32 v5, 2, v3"); A(f"v_lshlrev_b32 v5, {kp['R']-1}, v5")
        A("v_lshrrev_b32 v6, 2, v3"); A(f"v_lshl_add_u32 v5, v6, {kp['X']}, v5")
    A("v_and_b32 v7, 1, v2")
    A("v_lshl_add_u32 v6, v7, 2, v4")
    A("v_lshlrev_b32 v6, 4, v6")
    A("v_add3_u32 v5, v5, v6, s23        ; K offset")
    A("v_lshlrev_b32 v6, 4, v3")
    A(f"v_lshlrev_b32 v8, {kp['X']}, v4")
    A("v_add3_u32 v6, v6, v8, s23        ; V offset")
    rbig = kp["R"] > 11
    if rbig: A(f"v_add_u32 v26, {1 << kp['R']}, v6")
    A("s_mov_b32 s25, 0x20000")
    A("s_waitcnt lgkmcnt(0)")
    srds()
    if stamps: A(f"v_writelane_b32 v{STB}, s42, 0")
    for idx in range(32):
        if idx == kpre:
            A("s_barrier                         ; B0")
            stamp(1)
        d = thr if idx < thrsw else thr2
        if d and idx >= d: A(f"s_waitcnt vmcnt({d-1})")
        U, j = (idx >> 2) & 3, idx & 3
        if idx < 16: gload(VK + 4*idx, 4, 5, "k", j*128, kvflags)
        elif rbig: gload(VV + 4*(idx-16), 4, 26 if j & 2 else 6, "v", (j & 1)*256, kvflags)
        else: gload(VV + 4*(idx-16), 4, 6, "v", (j & 1)*256 + ((j >> 1) << kp["R"]), kvflags)
        if j == 3 and U < 3:
            A(f"v_add_u32 v{5 + (idx >> 4)}, s25, v{5 + (idx >> 4)}")
            if rbig and idx >= 16: A("v_add_u32 v26, s25, v26")
        if idx == 8:
            A(f"s_load_dword s26, s[18:19], {WS_E}")
        if idx == 20:
            A("v_lshlrev_b32 v16, 4, v7")
            A("v_mov_b32 v17, 0xffff")
            A("v_lshlrev_b32 v16, v16, v17")
            A("v_bfe_u32 v17, v2, 1, 2")
            for jj in range(4):
                A(f"v_cmp_eq_u32 vcc, {jj}, v17")
                A("s_nop 1")
                A(f"v_cndmask_b32 v{8+jj}, 0, v16, vcc")
        if idx == 21:
            A("v_bfe_u32 v16, v2, 3, 1           ; h")
            A("v_mul_u32_u24 v12, 576, v16")
            A("v_and_b32 v17, 4, v2              ; 4*c'")
            A("v_add_u32 v17, v17, v4")
            A("v_lshl_add_u32 v12, v17, 4, v12")
            A("v_lshlrev_b32 v13, 5, v16")
            A("s_lshl_b32 s27, s3, 3")
            A("v_add_u32 v14, s27, v13")
            A("s_lshl_b32 s27, s3, 11")
            A("v_lshl_add_u32 v15, v2, 4, s27")
        if idx == 22:
            A("s_and_b32 s31, s3, 1"); A("s_lshl_b32 s27, s31, 10")
            A("s_lshr_b32 s29, s3, 1"); A("s_lshl_b32 s29, s29, 9"); A("s_add_u32 s27, s27, s29")
            A("v_lshl_add_u32 v16, v2, 4, s27")
            A("s_lshr_b32 s21, s2, 3             ; r")
            A("s_lshl_b32 s27, s20, 5"); A("s_add_u32 s27, s27, s21"); A("s_lshl2_add_u32 s27, s27, s3"); A("s_lshl_b32 s27, s27, 9")
            A(f"s_add_u32 s27, s27, {WS_O1}")
            A("v_lshl_add_u32 v17, v2, 4, s27")
            A("v_mov_b32 v18, 0xffffff00")
            A("s_mov_b32 s35, 0x3db8aa3b         ; log2(e)/16")
        if idx == 23:
            A("s_lshr_b32 s29, s2, 2"); A("s_lshl_b32 s29, s29, 15")
            A("s_and_b32 s30, s2, 3"); A("s_lshl1_add_u32 s30, s30, s31"); A("s_lshl_b32 s30, s30, 6"); A("s_add_u32 s29, s29, s30")
            A(f"s_add_u32 s29, s29, {WS_P2}")
            A("v_and_b32 v21, 3, v2")
            A("v_lshrrev_b32 v19, 2, v2"); A("v_lshlrev_b32 v19, 11, v19"); A("v_lshlrev_b32 v20, 4, v21")
            A("v_add3_u32 v19, v19, v20, s29")
            A("s_and_b32 s29, s2, 1"); A("s_lshl1_add_u32 s29, s29, s31"); A("s_mul_i32 s29, s29, 896")
            A("s_lshr_b32 s30, s2, 1"); A("s_lshl_b32 s30, s30, 5"); A("s_add_u32 s29, s29, s30")
            A("v_lshlrev_b32 v20, 1, v4"); A("v_lshl_add_u32 v20, v21, 3, v20"); A("v_add_u32 v20, s29, v20")
        if idx == 24:
            A("s_waitcnt lgkmcnt(0)")
            tags()
    def after(i): return 31 - i
    if vland: A("s_waitcnt vmcnt(0)")
    stamp(2)
    A("s_barrier")
    stamp(3)
    VQ = 36; D = 52; S = 28
    for j in range(4):
        A(f"ds_read_b128 {vr(VQ+4*j,4)}, v12 offset:{L_Q + 128*j}")
    A(f"s_waitcnt vmcnt({after(15)})")
    for j in range(4):
        A(f"s_waitcnt lgkmcnt({3-j})")
        for U in range(4):
            mfma(D + 4*U, VK + 16*U + 4*j, VQ + 4*j, None if j == 0 else D + 4*U)
    A("s_nop 4")
    for U in range(4):
        for r0 in range(2):
            a, b = D + 4*U + 2*r0, D + 4*U + 2*r0 + 1
            A(f"v_add_f32_dpp v{S+2*U+r0}, v{b}, v{a} row_shl:4 row_mask:0xf bank_mask:0x5")
            A(f"v_add_f32_dpp v{S+2*U+r0}, v{a}, v{b} row_shr:4 row_mask:0xf bank_mask:0xa")
    T0 = 36
    for i in range(4):
        A(f"v_cvt_pk_bf16_f32 v{T0+i}, v{S+2*i}, v{S+2*i+1}")
    for i in range(4):
        A(f"v_lshlrev_b32 v{S+2*i}, 16, v{T0+i}")
        A(f"v_and_b32 v{S+2*i+1}, 0xffff0000, v{T0+i}")
    M = 22; Lr = 23; TT = 24
    A(f"v_max3_f32 v{M}, v{S}, v{S+1}, v{S+2}")
    A(f"v_max3_f32 v{M}, v{M}, v{S+3}, v{S+4}")
    A(f"v_max3_f32 v{M}, v{M}, v{S+5}, v{S+6}")
    A(f"v_max_f32 v{M}, v{M}, v{S+7}")
    xred(M, TT, "v_max_f32")
    for i in range(8): A(f"v_sub_f32 v{S+i}, v{S+i}, v{M}")
    for i in range(8): A(f"v_mul_f32 v{S+i}, s35, v{S+i}")
    for i in range(8): A(f"v_exp_f32 v{S+i}, v{S+i}")
    A(f"v_add_f32 v{Lr}, v{S}, v{S+1}")
    for i in range(2, 8): A(f"v_add_f32 v{Lr}, v{Lr}, v{S+i}")
    xred(Lr, TT, "v_add_f32")
    A(f"ds_write_b64 v14, {vr(M,2)} offset:{L_STAT}")
    A("s_waitcnt lgkmcnt(0)")
    stamp(4)
    A("s_barrier")
    A(f"ds_read_b128 v[40:43], v13 offset:{L_STAT}")
    A(f"ds_read_b128 v[44:47], v13 offset:{L_STAT+16}")
    A("s_waitcnt lgkmcnt(0)")
    A(f"v_max3_f32 v{TT}, v40, v42, v44")
    A(f"v_max_f32 v{TT}, v{TT}, v46")
    A(f"v_sub_f32 v{TT}, v{M}, v{TT}")
    A(f"v_mul_f32 v{TT}, s35, v{TT}")
    A(f"v_exp_f32 v{TT}, v{TT}")
    A("s_nop 0")
    for i in range(8): A(f"v_mul_f32 v{S+i}, v{S+i}, v{TT}")
    for i in range(8): A(f"v_cvt_pk_bf16_f32 v{S+i}, v{S+i}, v{S+i}")
    VA = VK
    for i in range(8):
        for j in range(4): A(f"v_and_b32 v{VA+4*i+j}, v{S+i}, v{8+j}")
    stamp(5)
    ACC = 52
    for i in range(16):
        t, h = i >> 1, i & 1
        if i == 0: A(f"s_waitcnt vmcnt({after(16+7)})")
        elif i >= 8: A(f"s_waitcnt vmcnt({after(16+i)})")
        mfma(ACC + 4*h, VA + 4*t, VV + 4*i, None if t == 0 else ACC + 4*h)
    if tsync:
        A("s_add_u32 s44, s42, 1500"); A("s_or_b32 s44, s44, 0x3ff"); A("s_add_u32 s44, s44, 1")
        A("L_tsync:")
        A("s_memrealtime s[40:41]"); A("s_waitcnt lgkmcnt(0)")
        A("s_sub_u32 s45, s40, s44"); A("s_cmp_lt_i32 s45, 0"); A("s_cbranch_scc1 L_tsync")
        note("s44", 13)
    A("s_nop 6")
    A(f"ds_write_b128 v15, {vr(ACC,4)} offset:{L_RED}")
    A(f"ds_write_b128 v15, {vr(ACC+4,4)} offset:{L_RED+1024}")
    A("s_waitcnt lgkmcnt(0)")
    stamp(6)
    A("s_barrier")
    A("s_mov_b32 exec_hi, 0")
    R = 36
    for i in range(4): A(f"ds_read_b128 {vr(R+4*i,4)}, v16 offset:{L_RED + 2048*i}")
    A("s_waitcnt lgkmcnt(2)")
    A(f"v_pk_add_f32 {vr(R,2)}, {vr(R,2)}, {vr(R+4,2)}")
    A(f"v_pk_add_f32 {vr(R+2,2)}, {vr(R+2,2)}, {vr(R+6,2)}")
    A("s_waitcnt lgkmcnt(0)")
    A(f"v_pk_add_f32 {vr(R+8,2)}, {vr(R+8,2)}, {vr(R+12,2)}")
    A(f"v_pk_add_f32 {vr(R+10,2)}, {vr(R+10,2)}, {vr(R+14,2)}")
    A(f"v_pk_add_f32 {vr(R,2)}, {vr(R,2)}, {vr(R+8,2)}")
    A(f"v_pk_add_f32 {vr(R+2,2)}, {vr(R+2,2)}, {vr(R+10,2)}")
    for j in range(4): A(f"v_and_or_b32 v{R+j}, v{R+j}, v18, s{36+j}")
    publish(R, 17, 25)
    A("s_mov_b32 exec_hi, -1")
    stamp(7)
    A("s_barrier                         ; B4")
    A("s_cmp_ge_u32 s2, 56")
    A("s_cbranch_scc1 L_send")
    A("s_cmp_ge_u32 s3, 2")
    A("s_cbranch_scc1 L_send")
    F = 68
    A(f"s_mov_b32 s27, {SPIN}")
    A("L_fpoll:")
    for j in range(4): gload(F + 4*j, 4, 19, "ws", 512*j, "sc1")
    for j in range(4):
        A(f"s_waitcnt vmcnt({3-j})")
        for i in range(4): A(f"v_xor_b32 v{F+4*j+i}, s{36+i}, v{F+4*j+i}")
        if j == 0:
            A(f"v_or_b32 v{TT}, v{F}, v{F+1}")
            A(f"v_or3_b32 v{TT}, v{TT}, v{F+2}, v{F+3}")
        else:
            A(f"v_or3_b32 v{TT}, v{TT}, v{F+4*j}, v{F+4*j+1}")
            A(f"v_or3_b32 v{TT}, v{TT}, v{F+4*j+2}, v{F+4*j+3}")
            A(f"v_pk_add_f32 {vr(F,2)}, {vr(F,2)}, {vr(F+4*j,2)}")
            A(f"v_pk_add_f32 {vr(F+2,2)}, {vr(F+2,2)}, {vr(F+4*j+2,2)}")
    A(f"v_lshlrev_b32 v{TT}, 24, v{TT}")
    A(f"v_cmp_ne_u32 vcc, 0, v{TT}")
    A("s_cbranch_vccz L_fok")
    A("s_sub_u32 s27, s27, 1")
    A("s_cbranch_scc0 L_fpoll")
    A("L_fok:")
    note("s27", 15)
    stamp(10)
    tred(F)
    A("s_nop 1")
    A(f"v_add_f32_dpp v{F}, v{F}, v{F} row_ror:8 row_mask:0xf bank_mask:0xf")
    A("s_nop 1")
    A(f"v_add_f32_dpp v{F}, v{F}, v{F} row_ror:4 row_mask:0xf bank_mask:0xf")
    A("s_mov_b32 exec_lo, 0x000f000f")
    A("s_mov_b32 exec_hi, 0x000f000f")
    A(f"v_cvt_pk_bf16_f32 v{F}, v{F}, v{F}")
    gstore(F, 0, 20, "out", 0, outflags)
    A("s_or_b32 s29, s2, s3")
    A("s_cbranch_scc1 L_send2")
    A("s_mov_b64 exec, 1")
    A("v_mov_b32 v19, 0"); A("v_mov_b32 v20, s26")
    gstore(20, 1, 19, "ws", WS_E, "sc1")
    A("L_send2:")
    if stamps or probe == "s11" or op == "s11":
        A("s_waitcnt vmcnt(0)")
        stamp(11)
    A("L_send:")
    if stamps or probe or op:
        finish()
    A("L_end:")
    A("s_endpgm")

    role[0] = "h"
    A("L_qproj:")
    if stamps: A(f"v_writelane_b32 v{STB}, s42, 0")
    stamp(1)
    A(f"s_load_dword s26, s[18:19], {WS_E}")
    A("v_bfe_u32 v11, v2, 2, 2           ; n>>2")
    A("v_lshlrev_b32 v5, 7, v11")
    A("v_lshl_add_u32 v5, v10, 3, v5")
    A("v_lshl_add_u32 v6, v4, 9, v5")
    A("v_lshl_add_u32 v5, v4, 10, v5")
    A("s_lshl2_add_u32 s27, s23, s22"); A("s_lshl_b32 s27, s27, 10"); A(f"s_add_u32 s27, s27, {WS_Q1}")
    A("v_lshlrev_b32 v7, 8, v10"); A("v_lshl_add_u32 v7, v11, 6, v7"); A("v_lshlrev_b32 v8, 4, v4")
    A("v_add3_u32 v7, v7, v8, s27")
    A("v_mov_b32 v18, 0xffffff00")
    for t in range(4): A(f"v_cmp_eq_u32 s[{48+2*t}:{49+2*t}], {t}, v11")
    XM = 40
    WA = 104
    QD = 20
    A("s_waitcnt vmcnt(14)")
    stamp(2)
    for t in range(4):
        for i in range(14): A(f"v_cndmask_b32 v{XM+16*t+i}, 0, v{XR+i}, s[{48+2*t}:{49+2*t}]")
    A("s_waitcnt lgkmcnt(0)")
    tags()
    for s in range(3):
        A(f"s_waitcnt vmcnt({10-4*s})")
        for t in range(4):
            for e in range(2):
                A(f"ds_read_b64_tr_b16 {vr(WA+16*s+4*t+2*e,2)}, v5 offset:{L_WQ + 4096*s + 512*e + 32*t}")
        for t in range(4):
            A(f"s_waitcnt lgkmcnt({6-2*t})")
            mfma(QD, WA + 16*s + 4*t, XM + 16*t + 4*s, None if (s == 0 and t == 0) else QD)
    A("s_waitcnt vmcnt(0)")
    for t in range(4):
        A(f"ds_read_b64_tr_b16 {vr(WA+48+2*t,2)}, v6 offset:{L_WQ + 12288 + 32*t}")
    for t in range(4):
        A(f"s_waitcnt lgkmcnt({3-t})")
        if t: A("s_nop 0")
        A(f"v_mfma_f32_16x16x16_bf16 {vr(QD,4)}, {vr(WA+48+2*t,2)}, {vr(XM+16*t+12,2)}, {vr(QD,4)}")
    A("s_nop 7")
    for j in range(4): A(f"v_and_or_b32 v{QD+j}, v{QD+j}, v18, s{36+j}")
    stamp(3)
    publish(QD, 7, 8)
    A("s_branch L_tail2")

    A("L_tail:")
    A("s_setprio 2")
    A("v_and_b32 v10, 3, v2")
    A("s_lshl3_add_u32 s23, s20, s24")
    A("s_lshr_b32 s21, s2, 3")
    A("s_waitcnt lgkmcnt(0)")
    srds()
    if stamps: A(f"v_writelane_b32 v{STB}, s42, 0")
    A(f"s_load_dword s26, s[18:19], {WS_E}")
    A("s_lshl2_add_u32 s27, s23, s22"); A("s_lshl_b32 s27, s27, 10"); A(f"s_add_u32 s27, s27, {WS_Q1}")
    A("s_lshl_b32 s30, s20, 5"); A("s_add_u32 s30, s30, s21")
    A("s_lshl_b32 s29, s30, 11"); A(f"s_add_u32 s29, s29, {WS_O1}")
    A("s_lshl_b32 s30, s30, 7"); A(f"s_add_u32 s30, s30, {WS_S1}")
    A("s_cmp_eq_u32 s3, 6"); A("s_cselect_b32 s27, s29, s27"); A("s_cselect_b32 s31, 15, 7")
    A("s_cmp_eq_u32 s3, 7"); A("s_cselect_b32 s27, s30, s27"); A("s_cselect_b32 s31, 0, s31")
    A("v_min_u32 v5, s31, v2")
    A("v_lshl_add_u32 v5, v5, 7, s27")
    stamp(1)
    if fast:
        A("s_mov_b64 exec, 0xffff")
        gload(6, 1, 5, "ws", 0, ptf)
        A("s_mov_b64 exec, -1")
    A("v_mov_b32 v18, 0xffffff00")
    A("s_waitcnt lgkmcnt(0)")
    tags()

    A("L_tail2:")
    A("s_and_b32 s33, s3, 3              ; u")
    A("s_lshr_b32 s21, s2, 3")
    A("s_lshl2_add_u32 s27, s20, s33"); A("s_lshl_b32 s27, s27, 13"); A("s_lshl_b32 s29, s22, 8"); A("s_add_u32 s27, s27, s29")
    A(f"s_add_u32 s27, s27, {WS_Q1}")
    A("v_and_b32 v12, 1, v4"); A("v_lshrrev_b32 v13, 1, v4")
    A("v_lshlrev_b32 v9, 12, v12"); A("v_lshl_add_u32 v9, v13, 11, v9"); A("v_lshlrev_b32 v14, 4, v3")
    A("v_add3_u32 v9, v9, v14, s27")
    QG = 40
    if qdelay:
        A("L_qd:")
        A("s_memrealtime s[40:41]"); A("s_waitcnt lgkmcnt(0)")
        A("s_sub_u32 s45, s40, s42"); A(f"s_cmp_lt_i32 s45, {qdelay}"); A("s_cbranch_scc1 L_qd")
    for k in range(nq):
        gload(QG + 8*k, 4, 9, "ws", 0, pollf); gload(QG + 8*k + 4, 4, 9, "ws", 1024, pollf)
        if k == 0:
            A("s_lshr_b32 s27, s33, 1"); A("s_mul_i32 s27, s27, 576"); A("s_and_b32 s29, s33, 1"); A("s_lshl_b32 s29, s29, 8"); A("s_add_u32 s27, s27, s29")
            A("v_lshlrev_b32 v15, 7, v12"); A("v_lshl_add_u32 v15, v13, 2, v15"); A("v_lshlrev_b32 v16, 3, v3")
            A("v_add3_u32 v15, v15, v16, s27")
            A(f"s_mov_b32 s27, {SPIN}")
        if k < nq - 1 and qgap: A(f"s_sleep {qgap}")
    QS = 20; TT = 24
    A("L_qpoll:")
    for k in range(nq):
        g = QG + 8*k
        A(f"s_waitcnt vmcnt({2*(nq-1)})")
        untag8(g, TT)
        A(f"v_pk_add_f32 {vr(QS,2)}, {vr(g,2)}, {vr(g+4,2)}")
        A(f"v_pk_add_f32 {vr(QS+2,2)}, {vr(g+2,2)}, {vr(g+6,2)}")
        A("s_cbranch_vccz L_qok")
        if k == nq - 1: spin_step(9)
        gload(g, 4, 9, "ws", 0, "sc1"); gload(g + 4, 4, 9, "ws", 1024, "sc1")
    A("s_cbranch_scc0 L_qpoll")
    A("L_qok:")
    note("s27", 12)
    A("s_nop 0")
    A(f"v_permlane32_swap_b32 v{QS}, v{QS+2}")
    A(f"v_permlane32_swap_b32 v{QS+1}, v{QS+3}")
    A(f"v_pk_add_f32 {vr(QS,2)}, {vr(QS,2)}, {vr(QS+2,2)}")
    A(f"v_cvt_pk_bf16_f32 v{QS}, v{QS}, v{QS+1}")
    A(f"ds_write_b32 v15, v{QS} offset:{L_Q}")
    A("s_lshr_b32 s27, s24, 1")
    A("s_lshl2_add_u32 s27, s20, s27")
    A("s_lshl2_add_u32 s27, s27, s33")
    A("s_lshl_b32 s27, s27, 3")
    A("s_and_b32 s28, s24, 1")
    A("s_add_u32 s27, s27, s28           ; (row0 + 32u)/4")
    A("s_mul_i32 s27, s27, 3584")
    A("s_lshl_b32 s28, s22, 8"); A("s_add_u32 s27, s27, s28")
    A("v_lshlrev_b32 v5, 1, v4"); A("v_xor_b32 v5, v5, v3"); A("v_lshlrev_b32 v5, 4, v5")
    A("v_mul_u32_u24 v6, 896, v4")
    A("v_xor_b32 v7, 0x80, v5")
    A("v_add3_u32 v5, v5, v6, s27")
    A(f"s_add_u32 s27, s27, {2*(7168-1024)}")
    A("v_add3_u32 v7, v7, v6, s27")
    A(f"v_add_u32 v6, {7168-1024}, v5")
    A(f"v_add_u32 v8, {7168-1024}, v7")
    A("s_lshl_b32 s27, s33, 12"); A(f"s_add_u32 m0, s27, {L_WO}")
    A("s_cmp_eq_u32 s22, 3")
    A("s_cselect_b32 s30, 0x00ff00ff, -1")
    A("s_cselect_b32 s31, 0xff00ff00, -1")
    A("s_waitcnt lgkmcnt(0)")
    stamp(4)
    if wopos == 0:
        A("s_mov_b32 exec_lo, s30"); A("s_mov_b32 exec_hi, s30")
        gdma(5, "wo", 0, woflags); gdma(6, "wo", 1024, woflags)
        A("s_mov_b32 exec_lo, s31"); A("s_mov_b32 exec_hi, s31")
        gdma(7, "wo", 2048, woflags); gdma(8, "wo", 3072, woflags)
        A("s_mov_b64 exec, -1")
        stamp(5)
    A("s_barrier                         ; B1")
    def wo_issue():
        A("s_mov_b32 exec_lo, s30"); A("s_mov_b32 exec_hi, s30")
        gdma(5, "wo", 0, woflags); gdma(6, "wo", 1024, woflags)
        A("s_mov_b32 exec_lo, s31"); A("s_mov_b32 exec_hi, s31")
        gdma(7, "wo", 2048, woflags); gdma(8, "wo", 3072, woflags)
        A("s_mov_b64 exec, -1")
        stamp(5)
    if wopos == 1: wo_issue()
    A("s_lshl_b32 s32, s20, 5")
    A("s_lshl3_add_u32 s34, s33, s32     ; hkv*32 + u*8")
    A("s_lshl_b32 s27, s34, 11"); A("s_lshl_b32 s29, s24, 8"); A("s_add_u32 s27, s27, s29")
    A(f"s_add_u32 s27, s27, {WS_O1}")
    A("v_lshlrev_b32 v25, 12, v4")
    A("v_add3_u32 v25, v25, v14, s27")
    A("s_lshl_b32 s27, s34, 7"); A("s_lshr_b32 s29, s24, 2"); A("s_lshl_b32 s29, s29, 4"); A("s_add_u32 s27, s27, s29")
    A(f"s_add_u32 s27, s27, {WS_S1}")
    A("v_lshl_add_u32 v26, v4, 8, s27")
    A("v_bfe_u32 v11, v2, 2, 2")
    A("v_lshl_add_u32 v27, v12, 2, v11"); A("s_lshl_b32 s27, s33, 1"); A("v_xor_b32 v27, s27, v27")
    A("v_lshlrev_b32 v27, 5, v27"); A("v_lshl_add_u32 v27, v11, 8, v27")
    A("v_lshl_add_u32 v27, v4, 11, v27"); A("v_lshl_add_u32 v27, v10, 3, v27")
    A("v_xor_b32 v28, 32, v27")
    A("s_lshl_b32 s27, s33, 7")
    A("v_lshlrev_b32 v29, 1, v4"); A("v_add3_u32 v29, v29, v16, s27")
    A("v_lshlrev_b32 v31, 4, v4"); A("v_lshl_add_u32 v30, v10, 7, v31")
    A("s_lshl2_add_u32 s28, s22, s33")
    A("s_lshl_b32 s27, s28, 6"); A("s_add_u32 s27, s27, s23"); A("s_lshl_b32 s27, s27, 9")
    A(f"s_add_u32 s27, s27, {WS_P2}")
    A("v_lshlrev_b32 v32, 6, v10"); A("v_add3_u32 v31, v31, v32, s27")
    A("s_mov_b32 s35, 0x3db8aa3b")
    A("s_add_u32 s27, s32, s21"); A("s_lshl_b32 s27, s27, 7"); A(f"s_add_u32 s27, s27, {WS_S1}")
    A("v_lshl_add_u32 v33, v2, 4, s27")
    A("v_lshlrev_b32 v34, 5, v2")
    A("s_barrier                         ; B2")
    if wopos == 2: wo_issue()
    A("s_cmp_eq_u32 s3, 7")
    A("s_cbranch_scc0 L_nostat")
    A("s_mov_b64 exec, 3")
    SB = 72
    A(f"ds_read_b128 {vr(SB,4)}, v34 offset:{L_STAT}")
    A(f"ds_read_b128 {vr(SB+4,4)}, v34 offset:{L_STAT+16}")
    A(f"v_mov_b32 v{SB+10}, s26"); A(f"v_mov_b32 v{SB+11}, s26")
    A("s_waitcnt lgkmcnt(0)")
    A(f"v_max3_f32 v{SB+8}, v{SB}, v{SB+2}, v{SB+4}")
    A(f"v_max_f32 v{SB+8}, v{SB+8}, v{SB+6}")
    for i in range(4): A(f"v_sub_f32 v{SB+2*i}, v{SB+2*i}, v{SB+8}")
    for i in range(4): A(f"v_mul_f32 v{SB+2*i}, s35, v{SB+2*i}")
    for i in range(4): A(f"v_exp_f32 v{SB+2*i}, v{SB+2*i}")
    A(f"v_mul_f32 v{SB+9}, v{SB}, v{SB+1}")
    for i in range(1, 4): A(f"v_fmac_f32 v{SB+9}, v{SB+2*i}, v{SB+1+2*i}")
    publish(SB+8, 33, 35)
    A("s_mov_b64 exec, -1")
    A("L_nostat:")
    if fpre:
        A("s_cmp_eq_u32 s3, 6"); A("s_cbranch_scc0 L_nofpre")
        A("s_cmp_lt_u32 s2, 56"); A("s_cbranch_scc0 L_nofpre")
        A("s_lshr_b32 s29, s2, 2"); A("s_lshl_b32 s29, s29, 15")
        A("s_and_b32 s27, s2, 3"); A("s_lshl_b32 s27, s27, 7"); A("s_add_u32 s29, s29, s27")
        A(f"s_add_u32 s29, s29, {WS_P2}")
        A("v_lshl_add_u32 v35, v2, 9, s29")
        gload(SB, 1, 35, "ws", 0, ptf)
        A("v_mov_b32 v35, 0")
        gload(SB+1, 1, 35, "out", 0, "nt")
        A("L_nofpre:")
    stamp(6)
    A("s_barrier                         ; B3")
    GS = 88; GO = 96; M = 22; Lr = 23
    gload(GS, 4, 26, "ws", 0, "sc1"); gload(GS+4, 4, 26, "ws", 128, "sc1")
    A(f"s_mov_b32 s27, {SPIN}")
    A("L_spoll:")
    A("s_waitcnt vmcnt(0)")
    A(f"v_cmp_ne_u32 vcc, s26, v{GS+2}")
    A(f"v_cmp_ne_u32 s[30:31], s26, v{GS+6}")
    A("s_or_b64 vcc, vcc, s[30:31]")
    A("s_cbranch_vccz L_sok")
    spin_step(26)
    gload(GS, 4, 26, "ws", 0, "sc1"); gload(GS+4, 4, 26, "ws", 128, "sc1")
    A("s_cbranch_scc0 L_spoll")
    A("s_waitcnt vmcnt(0)")
    A("L_sok:")
    gload(GO, 4, 25, "ws", 0, "sc1"); gload(GO+4, 4, 25, "ws", 2048, "sc1")
    stamp(7)
    A(f"v_max_f32 v{M}, v{GS}, v{GS+4}")
    xred(M, TT, "v_max_f32")
    A(f"v_sub_f32 v{GS}, v{GS}, v{M}"); A(f"v_sub_f32 v{GS+4}, v{GS+4}, v{M}")
    A(f"v_mul_f32 v{GS}, s35, v{GS}"); A(f"v_mul_f32 v{GS+4}, s35, v{GS+4}")
    A(f"v_exp_f32 v{GS}, v{GS}"); A(f"v_exp_f32 v{GS+4}, v{GS+4}")
    A(f"s_mov_b32 s27, {SPIN}")
    A(f"v_mul_f32 v{Lr}, v{GS}, v{GS+1}")
    A(f"v_fmac_f32 v{Lr}, v{GS+4}, v{GS+5}")
    xred(Lr, TT, "v_add_f32")
    A(f"v_rcp_f32 v{Lr}, v{Lr}")
    A("s_nop 0")
    A(f"v_mul_f32 v{GS}, v{GS}, v{Lr}"); A(f"v_mul_f32 v{GS+4}, v{GS+4}, v{Lr}")
    A("L_opoll:")
    A("s_waitcnt vmcnt(0)")
    untag8(GO, TT)
    A("s_cbranch_vccz L_ook")
    spin_step(25)
    gload(GO, 4, 25, "ws", 0, "sc1"); gload(GO+4, 4, 25, "ws", 2048, "sc1")
    A("s_cbranch_scc0 L_opoll")
    A("s_waitcnt vmcnt(0)")
    A("L_ook:")
    note("s27", 14)
    stamp(8)
    for i in range(4): A(f"v_mul_f32 v{GO+i}, v{GO+i}, v{GS}")
    for i in range(4): A(f"v_fmac_f32 v{GO+i}, v{GO+4+i}, v{GS+4}")
    A("s_nop 0")
    tred(GO)
    A(f"v_cvt_pk_bf16_f32 v{GO}, v{GO}, v{GO}")
    A(f"ds_write_b16 v29, v{GO} offset:{L_OX}")
    A("s_cmp_ge_u32 s28, 14")
    A("s_waitcnt lgkmcnt(0)")
    A("s_barrier                         ; B4: o and wo in LDS")
    A("s_cbranch_scc1 L_tend")
    OB = 104; WA = 112; D = 128
    for s in range(2):
        A(f"ds_read_b128 {vr(OB+4*s,4)}, v30 offset:{L_OX + 64*s}")
        for tau in range(2):
            for e in range(2):
                A(f"ds_read_b64_tr_b16 {vr(WA + 8*tau + 4*s + 2*e, 2)}, v{27+tau} offset:{L_WO + s*8192 + e*1024}")
    A("s_waitcnt lgkmcnt(7)")
    mfma(D, WA, OB)
    A("s_waitcnt lgkmcnt(5)")
    mfma(D+4, WA+8, OB)
    A("s_waitcnt lgkmcnt(2)")
    mfma(D, WA+4, OB+4, D)
    A("s_waitcnt lgkmcnt(0)")
    mfma(D+4, WA+12, OB+4, D+4)
    A("s_mov_b32 exec_lo, 0x000f000f")
    A("s_mov_b32 exec_hi, 0x000f000f")
    A("s_nop 3")
    for j in range(4): A(f"v_and_or_b32 v{D+j}, v{D+j}, v18, s{36+j}")
    gstore(D, 4, 31, "ws", 0, "sc1")
    for j in range(4): A(f"v_and_or_b32 v{D+4+j}, v{D+4+j}, v18, s{36+j}")
    gstore(D+4, 4, 31, "ws", 256, "sc1")
    A("L_tend:")
    stamp(9)
    finish()
    A("L_codeend:")

    nv = 204 if stamps else 196
    A('.section .rodata,"a"'); A(".p2align 6"); A(f".amdhsa_kernel {NAME}")
    A(f"  .amdhsa_next_free_vgpr {nv}"); A(f"  .amdhsa_next_free_sgpr {96 if safe else 56}"); A(f"  .amdhsa_accum_offset {nv}")
    A("  .amdhsa_group_segment_fixed_size 0"); A("  .amdhsa_kernarg_size 64"); A("  .amdhsa_user_sgpr_count 2")
    A("  .amdhsa_user_sgpr_kernarg_segment_ptr 1"); A("  .amdhsa_system_sgpr_workgroup_id_x 1")
    A("  .amdhsa_float_denorm_mode_32 3")
    A(".end_amdhsa_kernel")
    out = []
    for l in L:
        if l.endswith(":") or l.startswith(".") or l.startswith(";") or l.startswith("  ."):
            out.append(l)
        else:
            out.append("    " + l.rstrip())
    return HEADER + "\n".join(out) + "\n"


if __name__ == "__main__":
    kw = {}
    for a in sys.argv[2:]:
        k, v = a.split("=")
        kw[k] = eval(v) if v in ("True", "False") or v.isdigit() else v.replace("+", " ")
    open(sys.argv[1], "w").write(gen(**kw))
```

```python
import sys, os
sys.path.insert(0, os.path.dirname(os.path.abspath(__file__)))
import oprobe

NAME = "standalone__sliding_block_cached__decode_kernel"

HEADER = """; Kernarg layout for this problem (64 bytes, ptrs only, base s[0:1]):
;   offset  32: d_in[4] wo  shape=(4096, 448) dtype=bfloat16
;   offset  56: d_ws      268435456 bytes workspace
"""

WS_E = 0
WS_S1 = 0x8000
WS_Q1 = 0x10000
WS_O1 = 0x50000
WS_P2 = 0x100000
WS_ST = 0x400000

L_CNT = 0
L_WQ = 1024
L_Q = 40960
L_STAT = 64
L_OX = 512
L_RED = 16384
L_WO = 24576
L_END = 42240

BUF = dict(x=4, k=6, v=8, wq=10, wo=12, out=14, dbg=16, ws=18)
SIZE = dict(x=3584, k=67108864, v=67108864, wq=3670016, wo=3670016, out=3584, dbg=256, ws=268435456)
SRD = dict(x=68, k=72, v=76, wq=80, wo=84, out=88, ws=92)

SPIN = 100000


def gen(safe=False, stamps=False, only="", pmask=0, pval=0, amp=0, op="", omin=False,
        kvflags="nt", wqflags="nt", woflags="nt", outflags="", dk=8, dv=8, hand=5, kpre=0,
        nf=64, tsync=False, fpre=False, wopos=0, xf="", vland=False, nowo=False, kprio=0, b3b=True, fakex=False, fdelay=0, fsleep=0, b5=True):
    L = []
    A = L.append
    diag = stamps or op

    def vr(r, n=1):
        return f"v{r}" if n == 1 else f"v[{r}:{r+n-1}]"

    W = {1: "dword", 2: "dwordx2", 3: "dwordx3", 4: "dwordx4"}

    def gload(dst, n, voff, buf, imm=0, fl=""):
        if safe:
            A(f"buffer_load_{W[n]} {vr(dst,n)}, v{voff}, s[{SRD[buf]}:{SRD[buf]+3}], 0 offen offset:{imm} {fl}")
        else:
            A(f"global_load_{W[n]} {vr(dst,n)}, v{voff}, s[{BUF[buf]}:{BUF[buf]+1}] offset:{imm} {fl}")

    def gdma(voff, buf, imm=0, fl=""):
        if nowo and buf == "wo": return
        if safe:
            A(f"buffer_load_dwordx4 v{voff}, s[{SRD[buf]}:{SRD[buf]+3}], 0 offen offset:{imm} {fl} lds")
        else:
            A(f"global_load_lds_dwordx4 v{voff}, s[{BUF[buf]}:{BUF[buf]+1}] offset:{imm} {fl}")

    def gstore(src, n, voff, buf, imm=0, fl=""):
        w = "short" if n == 0 else W[n]
        n = max(n, 1)
        if safe:
            A(f"buffer_store_{w} {vr(src,n)}, v{voff}, s[{SRD[buf]}:{SRD[buf]+3}], 0 offen offset:{imm} {fl}")
        else:
            A(f"global_store_{w} v{voff}, {vr(src,n)}, s[{BUF[buf]}:{BUF[buf]+1}] offset:{imm} {fl}")

    def publish(src, voff, between=None):
        uid[0] += 1
        gstore(src, 4, voff, "ws", 0, "")
        if between: between()
        A("s_cmp_eq_u32 s54, 0")
        A(f"s_cbranch_scc1 L_pub{uid[0]}")
        A("s_waitcnt vmcnt(0)")
        gstore(src, 4, voff, "ws", 0, "sc1")
        A(f"L_pub{uid[0]}:")

    def pretouch(dst, addr):
        gload(dst, 1, addr, "ws", 0, "nt"); gload(dst, 1, addr, "ws", 0, "sc1")

    STB = 168
    role = ["k"]
    uid = [0]

    def kernarg_ready():
        A("s_waitcnt lgkmcnt(0)")
        if op: A("s_mov_b32 s46, s42")
        if stamps: A(f"v_writelane_b32 v{STB}, s42, 0")
        if safe:
            for b, s in SRD.items():
                A(f"s_mov_b32 s{s}, s{BUF[b]}"); A(f"s_mov_b32 s{s+1}, s{BUF[b]+1}")
                A(f"s_mov_b32 s{s+2}, {SIZE[b]}"); A(f"s_mov_b32 s{s+3}, 0x20000")

    def stamp(i):
        if op == f"{role[0]}{i}":
            A("s_memrealtime s[42:43]")
            A("s_waitcnt lgkmcnt(0)")
        if stamps and (only == "" or f"{role[0]}{i}" in str(only).split(",")):
            A("s_memrealtime s[40:41]")
            A("s_waitcnt lgkmcnt(0)")
            A(f"v_writelane_b32 v{STB}, s40, {i}")

    def note(sreg, i):
        if stamps: A(f"v_writelane_b32 v{STB}, {sreg}, {i}")

    def finish():
        if stamps:
            A("s_mov_b64 exec, -1")
            A("s_lshl3_add_u32 s40, s2, s3"); A("s_lshl_b32 s40, s40, 7")
            A(f"s_add_u32 s40, s40, {WS_ST}")
            A(f"v_lshl_add_u32 v{STB+1}, v2, 2, s40")
            A("s_mov_b32 exec_hi, 0")
            gstore(STB, 1, STB + 1, "ws")
        if op:
            uid[0] += 1
            oprobe.emit_record(A, gstore, WS_ST)
            if role[0] == "k": oprobe.emit_report(A, gload, WS_ST, uid[0], amp, pmask, pval, omin)
        A("s_endpgm")

    def mfma(d, a, b, c=None):
        cs = "0" if c is None else vr(c, 4)
        A(f"v_mfma_f32_16x16x32_bf16 {vr(d,4)}, {vr(a,4)}, {vr(b,4)}, {cs}")

    def tags():
        A("s_add_u32 s26, s26, 0x01010101")
        A("s_and_b32 s36, s26, 0xff"); A("s_bfe_u32 s37, s26, 0x80008"); A("s_bfe_u32 s38, s26, 0x80010"); A("s_lshr_b32 s39, s26, 24")

    def xred(reg, tmp, op_):
        for sw in ("v_permlane32_swap_b32", "v_permlane16_swap_b32"):
            A(f"v_mov_b32 v{tmp}, v{reg}")
            A("s_nop 1")
            A(f"{sw} v{reg}, v{tmp}")
            A(f"{op_} v{reg}, v{reg}, v{tmp}")

    def tred(r):
        A(f"v_permlane32_swap_b32 v{r}, v{r+2}")
        A(f"v_permlane32_swap_b32 v{r+1}, v{r+3}")
        A(f"v_add_f32 v{r}, v{r}, v{r+2}")
        A(f"v_add_f32 v{r+1}, v{r+1}, v{r+3}")
        A("s_nop 1")
        A(f"v_permlane16_swap_b32 v{r}, v{r+1}")
        A(f"v_add_f32 v{r}, v{r}, v{r+1}")

    def qtags():
        A("s_getreg_b32 s53, hwreg(HW_REG_XCC_ID, 0, 4)")
        if fakex: A("s_bfe_u32 s53, s2, 0x10005")
        for j in range(4):
            A(f"s_bfe_u32 s{56+j}, s53, {0x10000 + j}"); A(f"s_lshl_b32 s{56+j}, s{56+j}, 8"); A(f"s_or_b32 s{56+j}, s{56+j}, s{36+j}")

    def untag8(g, tt, base=36, sh=24):
        for i in range(8): A(f"v_xor_b32 v{g+i}, s{base + (i & 3)}, v{g+i}")
        A(f"v_or3_b32 v{tt}, v{g}, v{g+1}, v{g+2}")
        A(f"v_or3_b32 v{tt}, v{tt}, v{g+3}, v{g+4}")
        A(f"v_or3_b32 v{tt}, v{tt}, v{g+5}, v{g+6}")
        A(f"v_or_b32 v{tt}, v{tt}, v{g+7}")
        A(f"v_lshlrev_b32 v{tt}, {sh}, v{tt}")
        A(f"v_cmp_ne_u32 vcc, 0, v{tt}")

    def spin_step(addr):
        A("s_sub_u32 s27, s27, 1")

    def kvbase(wreg):
        A("s_lshl3_add_u32 s23, s22, s20")
        A("s_lshl_b32 s23, s23, 21")
        A(f"s_lshl2_add_u32 s25, s24, {wreg}")
        A("s_lshl_b32 s25, s25, 12")
        A("s_add_u32 s23, s23, s25")
        A("s_add_u32 s23, s23, 0x180000")
        A("s_mov_b32 s25, 0x20000")

    A(f"; @launch grid=(256,1,1) block=(512,1,1) lds={L_END}")
    A('.amdgcn_target "amdgcn-amd-amdhsa--gfx950"')
    A(".text"); A(f".globl {NAME}"); A(".p2align 8"); A(f".type {NAME},@function"); A(f"{NAME}:")
    if diag:
        A("s_memrealtime s[42:43]")
    A("s_cmpk_ge_u32 s2, 0x100")
    A("s_cbranch_scc1 L_end")
    A("s_load_dwordx16 s[4:19], s[0:1], 0")
    A("v_readfirstlane_b32 s3, v0")
    A("v_and_b32 v2, 63, v0              ; lane")
    A("v_and_b32 v3, 15, v0              ; n")
    A("v_bfe_u32 v4, v0, 4, 2            ; g")
    A("v_and_b32 v10, 3, v0")
    A("s_and_b32 s20, s2, 7              ; hkv")
    A("s_lshr_b32 s22, s2, 6")
    A("s_bfe_u32 s24, s2, 0x30003")
    A("s_lshl3_add_u32 s28, s20, s24")
    A("s_lshr_b32 s3, s3, 6              ; wave")
    A("s_cmp_lt_u32 s3, 4")
    A("s_cbranch_scc1 L_k")
    XR = 24
    A("s_getpc_b64 s[30:31]")
    A("L_pc:")
    A("v_lshlrev_b32 v5, 5, v0")
    A("v_subrev_u32 v5, 8192, v5")
    A("v_min_u32 v5, L_codeend-L_pc-4, v5")
    A("global_load_dword v6, v5, s[30:31]")
    A("s_setprio 3")
    A("v_mov_b32 v8, 0")
    A("v_mov_b32 v9, 0")
    A("ds_write2_b64 v8, v[8:9], v[8:9] offset0:0 offset1:1")
    A("s_and_b32 s33, s3, 3              ; u")
    A("s_cmp_eq_u32 s33, 3")
    A("s_cselect_b32 s34, 1, 3")
    A("v_and_b32 v11, s34, v4")
    A("s_mul_i32 s25, s22, 224")
    A("s_lshl_b32 s27, s33, 6")
    A("s_add_u32 s25, s25, s27           ; 2*(kq*112 + 32u)")
    A("v_mul_u32_u24 v5, 896, v10")
    A("v_lshlrev_b32 v7, 4, v11")
    A("v_add3_u32 v5, v5, v7, s25        ; x offset")
    A("s_lshl_b32 s27, s28, 7")
    A("s_lshl_b32 s25, s25, 12")
    A("s_add_u32 s25, s25, s27")
    A("v_lshrrev_b32 v7, 3, v2")
    A("v_lshlrev_b32 v7, 13, v7")
    A("v_and_b32 v8, 7, v2")
    A("v_lshlrev_b32 v9, 4, v8")
    A("v_add3_u32 v7, v7, v9, s25")
    A("s_lshl_b32 s27, s33, 12")
    A(f"s_add_u32 m0, s27, {L_WQ}")
    A(f"s_mov_b32 s25, {65536-1024}")
    A("s_lshl2_add_u32 s55, s28, s22"); A("s_lshl_b32 s55, s55, 10"); A(f"s_add_u32 s55, s55, {WS_Q1}")
    A("v_lshl_add_u32 v8, v8, 7, s55")
    A("s_cmp_eq_u32 s33, 3")
    kernarg_ready()
    gload(XR, 4, 5, "x", 0, xf)
    gdma(7, "wq", 0, wqflags)
    A("v_add_u32 v7, s25, v7")
    gdma(7, "wq", 1024, wqflags)
    A("s_cbranch_scc1 L_u3")
    A("v_add_u32 v7, s25, v7")
    gdma(7, "wq", 2048, wqflags)
    A("v_add_u32 v7, s25, v7")
    gdma(7, "wq", 3072, wqflags)
    A("s_barrier                         ; B0")
    A("s_branch L_qproj")
    A("L_u3:")
    pretouch(9, 8)
    A("s_barrier                         ; B0")
    A("s_branch L_qproj")

    A("L_k:")
    VK = 100
    kvbase("s3")
    A("v_lshrrev_b32 v5, 1, v3")
    A("v_lshlrev_b32 v5, 9, v5")
    A("v_and_b32 v7, 1, v2")
    A("v_lshl_add_u32 v6, v7, 2, v4")
    A("v_lshlrev_b32 v6, 4, v6")
    A("v_add3_u32 v5, v5, v6, s23        ; K offset")
    kernarg_ready()
    for idx in range(16):
        if idx == kpre:
            A("s_barrier                         ; B0")
            stamp(1)
        if idx >= dk: A(f"s_waitcnt vmcnt({dk-1})")
        U, j = idx >> 2, idx & 3
        gload(VK + 4*idx, 4, 5, "k", j*128, kvflags)
        if j == 3 and U < 3: A("v_add_u32 v5, s25, v5")
        if idx == 7:
            A(f"s_load_dword s26, s[18:19], {WS_E}")
            if kprio: A(f"s_setprio {kprio}")
        if idx == 11:
            A("s_lshl2_add_u32 s27, s20, s3"); A("s_lshl_b32 s27, s27, 13"); A("s_lshl_b32 s29, s22, 8"); A("s_add_u32 s27, s27, s29")
            A(f"s_add_u32 s27, s27, {WS_Q1}")
            A("v_and_b32 v12, 1, v4"); A("v_lshrrev_b32 v13, 1, v4")
            A("v_lshlrev_b32 v9, 12, v12"); A("v_lshl_add_u32 v9, v13, 11, v9"); A("v_lshlrev_b32 v14, 4, v3")
            A("v_add3_u32 v9, v9, v14, s27")
        if idx == 12:
            A("s_lshr_b32 s27, s3, 1"); A("s_mul_i32 s27, s27, 576"); A("s_and_b32 s29, s3, 1"); A("s_lshl_b32 s29, s29, 8"); A("s_add_u32 s27, s27, s29")
            A("v_lshlrev_b32 v15, 7, v12"); A("v_lshl_add_u32 v15, v13, 2, v15"); A("v_lshlrev_b32 v16, 3, v3")
            A("v_add3_u32 v15, v15, v16, s27")
        if idx == 13:
            A("v_bfe_u32 v6, v2, 3, 1            ; h")
            A("v_mul_u32_u24 v17, 576, v6")
            A("v_and_b32 v7, 4, v2               ; 4*c'")
            A("v_add_u32 v7, v7, v4")
            A("v_lshl_add_u32 v17, v7, 4, v17")
            A("s_lshl_b32 s27, s3, 3")
            A("v_lshl_add_u32 v19, v6, 5, s27")
            A("s_lshl_b32 s27, s3, 11")
            A("v_lshl_add_u32 v36, v2, 4, s27")
        if idx == 14:
            A("s_waitcnt lgkmcnt(0)")
            tags()
            qtags()
            A("v_mov_b32 v18, 0xffffff00")
            A("s_mov_b32 s35, 0x3db8aa3b         ; log2(e)/16")
            A("s_lshr_b32 s21, s2, 3             ; r")
    stamp(2)
    QG = 40
    A(f"s_waitcnt vmcnt({hand})")
    gload(QG, 4, 9, "ws", 0, "sc1"); gload(QG + 4, 4, 9, "ws", 1024, "sc1")
    A("s_barrier")
    stamp(3)
    A("s_lshr_b32 s27, s24, 1")
    A("s_lshl2_add_u32 s27, s20, s27")
    A("s_lshl2_add_u32 s27, s27, s3")
    A("s_lshl_b32 s27, s27, 3")
    A("s_and_b32 s29, s24, 1")
    A("s_add_u32 s27, s27, s29           ; (row0 + 32w)/4")
    A("s_mul_i32 s27, s27, 3584")
    A("s_lshl_b32 s29, s22, 8"); A("s_add_u32 s27, s27, s29")
    A("v_lshlrev_b32 v5, 1, v4"); A("v_xor_b32 v5, v5, v3"); A("v_lshlrev_b32 v5, 4, v5")
    A("v_mul_u32_u24 v6, 896, v4")
    A("v_xor_b32 v7, 0x80, v5")
    A("v_add3_u32 v5, v5, v6, s27")
    A(f"s_add_u32 s27, s27, {2*(7168-1024)}")
    A("v_add3_u32 v7, v7, v6, s27")
    A(f"v_add_u32 v6, {7168-1024}, v5")
    A(f"v_add_u32 v8, {7168-1024}, v7")
    A("s_lshl_b32 s27, s3, 12"); A(f"s_add_u32 m0, s27, {L_WO}")
    A("s_cmp_eq_u32 s22, 3")
    A("s_cselect_b32 s48, 0x00ff00ff, -1")
    A("s_cselect_b32 s49, 0xff00ff00, -1")
    A("s_lshl_b32 s32, s20, 5")
    A("s_lshl3_add_u32 s34, s3, s32      ; hkv*32 + w*8")
    A("s_lshl_b32 s27, s34, 11"); A("s_lshl_b32 s29, s24, 8"); A("s_add_u32 s27, s27, s29")
    A(f"s_add_u32 s27, s27, {WS_O1}")
    A("v_lshlrev_b32 v25, 12, v4")
    A("v_add3_u32 v25, v25, v14, s27")
    A("s_lshl_b32 s27, s34, 7"); A("s_lshr_b32 s29, s24, 2"); A("s_lshl_b32 s29, s29, 4"); A("s_add_u32 s27, s27, s29")
    A(f"s_add_u32 s27, s27, {WS_S1}")
    A("v_lshl_add_u32 v26, v4, 8, s27")
    A("v_bfe_u32 v11, v2, 2, 2")
    A("v_lshl_add_u32 v27, v12, 2, v11"); A("s_lshl_b32 s27, s3, 1"); A("v_xor_b32 v27, s27, v27")
    A("v_lshlrev_b32 v27, 5, v27"); A("v_lshl_add_u32 v27, v11, 8, v27")
    A("v_lshl_add_u32 v27, v4, 11, v27"); A("v_lshl_add_u32 v27, v10, 3, v27")
    A("v_xor_b32 v28, 32, v27")
    A("s_lshl_b32 s27, s3, 7")
    A("v_lshlrev_b32 v29, 1, v4"); A("v_add3_u32 v29, v29, v16, s27")
    A("v_lshlrev_b32 v31, 4, v4"); A("v_lshl_add_u32 v30, v10, 7, v31")
    A("s_lshl2_add_u32 s33, s22, s3")
    A("s_lshl_b32 s27, s33, 6"); A("s_add_u32 s27, s27, s28"); A("s_lshl_b32 s27, s27, 9")
    A(f"s_add_u32 s27, s27, {WS_P2}")
    A("v_lshlrev_b32 v32, 6, v10"); A("v_add3_u32 v31, v31, v32, s27")
    A("s_add_u32 s32, s32, s21           ; hkv*32 + r")
    A("s_lshl_b32 s27, s32, 7"); A(f"s_add_u32 s27, s27, {WS_S1}")
    A("v_lshl_add_u32 v33, v2, 4, s27")
    A("v_lshlrev_b32 v34, 5, v2")
    A("s_lshl2_add_u32 s29, s32, s3"); A("s_lshl_b32 s29, s29, 9"); A(f"s_add_u32 s29, s29, {WS_O1}")
    A("v_lshl_add_u32 v35, v10, 7, s29")
    A("v_writelane_b32 v35, s27, 4")
    A("v_mov_b32 v37, 0"); A("v_mov_b32 v38, 1")
    A(f"s_mov_b32 s27, {SPIN}")
    QS = 20; TT = 24
    A("L_qpoll:")
    A("s_waitcnt vmcnt(0)")
    untag8(QG, TT, 56, 23)
    A("s_cbranch_vccnz L_qrare")
    A("L_qok:")
    note("s27", 12)
    A(f"v_pk_add_f32 {vr(QS,2)}, {vr(QG,2)}, {vr(QG+4,2)}")
    A(f"v_pk_add_f32 {vr(QS+2,2)}, {vr(QG+2,2)}, {vr(QG+6,2)}")
    A("s_nop 1")
    A(f"v_permlane32_swap_b32 v{QS}, v{QS+2}")
    A(f"v_permlane32_swap_b32 v{QS+1}, v{QS+3}")
    A(f"v_pk_add_f32 {vr(QS,2)}, {vr(QS,2)}, {vr(QS+2,2)}")
    A(f"v_cvt_pk_bf16_f32 v{QS}, v{QS}, v{QS+1}")
    A(f"ds_write_b32 v15, v{QS} offset:{L_Q}")
    A("s_mov_b64 exec, 1")
    A(f"ds_add_u32 v37, v38 offset:{L_CNT}")
    stamp(4)
    A("s_mov_b64 exec, 0x1f")
    pretouch(QG, 35)
    A("s_mov_b64 exec, -1")
    A("L_qsync:")
    A(f"ds_read_b32 v39, v37 offset:{L_CNT}")
    A("s_waitcnt lgkmcnt(0)")
    A("v_readfirstlane_b32 s54, v39")
    A("s_bitcmp1_b32 s54, 2")
    A("s_cbranch_scc0 L_qsync")
    A("s_lshr_b32 s54, s54, 8")
    stamp(5)
    VQ = 48; D = 64; S = 80
    for j in range(4):
        A(f"ds_read_b128 {vr(VQ+4*j,4)}, v17 offset:{L_Q + 128*j}")
    for j in range(4):
        A(f"s_waitcnt lgkmcnt({3-j})")
        for U in range(4):
            mfma(D + 4*U, VK + 16*U + 4*j, VQ + 4*j, None if j == 0 else D + 4*U)
    A("s_nop 4")
    for U in range(4):
        for r0 in range(2):
            a, b = D + 4*U + 2*r0, D + 4*U + 2*r0 + 1
            A(f"v_add_f32_dpp v{S+2*U+r0}, v{b}, v{a} row_shl:4 row_mask:0xf bank_mask:0x5")
            A(f"v_add_f32_dpp v{S+2*U+r0}, v{a}, v{b} row_shr:4 row_mask:0xf bank_mask:0xa")
    T0 = 48
    for i in range(4):
        A(f"v_cvt_pk_bf16_f32 v{T0+i}, v{S+2*i}, v{S+2*i+1}")
    for i in range(4):
        A(f"v_lshlrev_b32 v{S+2*i}, 16, v{T0+i}")
        A(f"v_and_b32 v{S+2*i+1}, 0xffff0000, v{T0+i}")
    M = 22; Lr = 23
    A(f"v_max3_f32 v{M}, v{S}, v{S+1}, v{S+2}")
    A(f"v_max3_f32 v{M}, v{M}, v{S+3}, v{S+4}")
    A(f"v_max3_f32 v{M}, v{M}, v{S+5}, v{S+6}")
    A(f"v_max_f32 v{M}, v{M}, v{S+7}")
    xred(M, TT, "v_max_f32")
    for i in range(8): A(f"v_sub_f32 v{S+i}, v{S+i}, v{M}")
    for i in range(8): A(f"v_mul_f32 v{S+i}, s35, v{S+i}")
    for i in range(8): A(f"v_exp_f32 v{S+i}, v{S+i}")
    A(f"v_add_f32 v{Lr}, v{S}, v{S+1}")
    A(f"ds_write_b128 v36, {vr(S,4)} offset:{L_RED}")
    A(f"ds_write_b128 v36, {vr(S+4,4)} offset:{L_RED+1024}")
    for i in range(2, 8): A(f"v_add_f32 v{Lr}, v{Lr}, v{S+i}")
    xred(Lr, TT, "v_add_f32")
    A(f"ds_write_b64 v19, {vr(M,2)} offset:{L_STAT}")
    A("v_mov_b32 v38, 1")
    A("s_mov_b64 exec, 1")
    A(f"ds_add_rtn_u32 v38, v37, v38 offset:{L_CNT+8}")
    A("s_waitcnt lgkmcnt(0)")
    A("v_readfirstlane_b32 s27, v38")
    A("s_cmp_eq_u32 s27, 3")
    A("s_cbranch_scc0 L_nostat")
    A("s_mov_b64 exec, 3")
    SB = 48
    A(f"ds_read_b128 {vr(SB,4)}, v34 offset:{L_STAT}")
    A(f"ds_read_b128 {vr(SB+4,4)}, v34 offset:{L_STAT+16}")
    A(f"v_mov_b32 v{SB+10}, s26"); A(f"v_mov_b32 v{SB+11}, s26")
    A("s_waitcnt lgkmcnt(0)")
    A(f"v_max3_f32 v{SB+8}, v{SB}, v{SB+2}, v{SB+4}")
    A(f"v_max_f32 v{SB+8}, v{SB+8}, v{SB+6}")
    for i in range(4): A(f"v_sub_f32 v{SB+2*i}, v{SB+2*i}, v{SB+8}")
    for i in range(4): A(f"v_mul_f32 v{SB+2*i}, s35, v{SB+2*i}")
    for i in range(4): A(f"v_exp_f32 v{SB+2*i}, v{SB+2*i}")
    A(f"v_mul_f32 v{SB+9}, v{SB}, v{SB+1}")
    for i in range(1, 4): A(f"v_fmac_f32 v{SB+9}, v{SB+2*i}, v{SB+1+2*i}")
    publish(SB+8, 33)
    A("L_nostat:")
    A("s_mov_b64 exec, -1")
    if fpre:
        A("s_cmp_eq_u32 s3, 2"); A("s_cbranch_scc0 L_nofpre")
        A("s_cmp_lt_u32 s2, 56"); A("s_cbranch_scc0 L_nofpre")
        A("s_lshr_b32 s29, s2, 2"); A("s_lshl_b32 s29, s29, 15")
        A("s_and_b32 s27, s2, 3"); A("s_lshl_b32 s27, s27, 7"); A("s_add_u32 s29, s29, s27")
        A(f"s_add_u32 s29, s29, {WS_P2}")
        A("v_lshl_add_u32 v35, v2, 9, s29")
        pretouch(41, 35)
        A("L_nofpre:")
    stamp(6)
    A("s_barrier")
    stamp(7)
    GS = 64; GO = 72
    gload(GS, 4, 26, "ws", 0, "sc1"); gload(GS+4, 4, 26, "ws", 128, "sc1")
    A("s_mov_b32 exec_lo, s48"); A("s_mov_b32 exec_hi, s48")
    gdma(5, "wo", 0, woflags); gdma(6, "wo", 1024, woflags)
    A("s_mov_b32 exec_lo, s49"); A("s_mov_b32 exec_hi, s49")
    gdma(7, "wo", 2048, woflags); gdma(8, "wo", 3072, woflags)
    A("s_mov_b64 exec, -1")
    A(f"s_mov_b32 s27, {SPIN}")
    A("s_barrier                         ; B3")
    A(f"s_waitcnt vmcnt({0 if nowo else 4})")
    A("L_spoll:")
    A(f"v_cmp_ne_u32 vcc, s26, v{GS+2}")
    A(f"v_cmp_ne_u32 s[30:31], s26, v{GS+6}")
    A("s_or_b64 vcc, vcc, s[30:31]")
    A("s_cbranch_vccz L_sok")
    spin_step(26)
    gload(GS, 4, 26, "ws", 0, "sc1"); gload(GS+4, 4, 26, "ws", 128, "sc1")
    A("s_waitcnt vmcnt(0)")
    A("s_cbranch_scc0 L_spoll")
    A("L_sok:")
    stamp(8)
    A(f"v_max_f32 v{M}, v{GS}, v{GS+4}")
    xred(M, TT, "v_max_f32")
    A(f"v_sub_f32 v{GS}, v{GS}, v{M}"); A(f"v_sub_f32 v{GS+4}, v{GS+4}, v{M}")
    A(f"v_mul_f32 v{GS}, s35, v{GS}"); A(f"v_mul_f32 v{GS+4}, s35, v{GS+4}")
    A(f"v_exp_f32 v{GS}, v{GS}"); A(f"v_exp_f32 v{GS+4}, v{GS+4}")
    A(f"s_mov_b32 s27, {SPIN}")
    A(f"v_mul_f32 v{Lr}, v{GS}, v{GS+1}")
    A(f"v_fmac_f32 v{Lr}, v{GS+4}, v{GS+5}")
    xred(Lr, TT, "v_add_f32")
    A(f"v_rcp_f32 v{Lr}, v{Lr}")
    A("s_nop 0")
    A(f"v_mul_f32 v{GS}, v{GS}, v{Lr}"); A(f"v_mul_f32 v{GS+4}, v{GS+4}, v{Lr}")
    if b3b: A("s_barrier                         ; B3b: this workgroup's O record is on its way")
    gload(GO, 4, 25, "ws", 0, "sc1"); gload(GO+4, 4, 25, "ws", 2048, "sc1")
    A("L_opoll:")
    A("s_waitcnt vmcnt(0)")
    untag8(GO, TT)
    A("s_cbranch_vccz L_ook")
    spin_step(25)
    gload(GO, 4, 25, "ws", 0, "sc1"); gload(GO+4, 4, 25, "ws", 2048, "sc1")
    A("s_cbranch_scc0 L_opoll")
    A("s_waitcnt vmcnt(0)")
    A("L_ook:")
    note("s27", 14)
    stamp(9)
    for i in range(4): A(f"v_mul_f32 v{GO+i}, v{GO+i}, v{GS}")
    for i in range(4): A(f"v_fmac_f32 v{GO+i}, v{GO+4+i}, v{GS+4}")
    A("s_nop 0")
    tred(GO)
    A(f"v_cvt_pk_bf16_f32 v{GO}, v{GO}, v{GO}")
    A(f"ds_write_b16 v29, v{GO} offset:{L_OX}")
    A("s_cmp_ge_u32 s33, 14")
    A("s_waitcnt lgkmcnt(0)")
    A("s_barrier                         ; B4: o and wo in LDS")
    A("s_cbranch_scc1 L_kend")
    OB = 80; WA = 88; D = 104
    for s in range(2):
        A(f"ds_read_b128 {vr(OB+4*s,4)}, v30 offset:{L_OX + 64*s}")
        for tau in range(2):
            for e in range(2):
                A(f"ds_read_b64_tr_b16 {vr(WA + 8*tau + 4*s + 2*e, 2)}, v{27+tau} offset:{L_WO + s*8192 + e*1024}")
    A("s_waitcnt lgkmcnt(7)")
    mfma(D, WA, OB)
    A("s_waitcnt lgkmcnt(5)")
    mfma(D+4, WA+8, OB)
    A("s_waitcnt lgkmcnt(2)")
    mfma(D, WA+4, OB+4, D)
    A("s_waitcnt lgkmcnt(0)")
    mfma(D+4, WA+12, OB+4, D+4)
    A("s_mov_b32 exec_lo, 0x000f000f")
    A("s_mov_b32 exec_hi, 0x000f000f")
    A("s_nop 3")
    for j in range(4): A(f"v_and_or_b32 v{D+j}, v{D+j}, v18, s{36+j}")
    gstore(D, 4, 31, "ws", 0, "sc1")
    for j in range(4): A(f"v_and_or_b32 v{D+4+j}, v{D+4+j}, v18, s{36+j}")
    gstore(D+4, 4, 31, "ws", 256, "sc1")
    A("L_kend:")
    if b5:
        A("s_waitcnt vmcnt(0)")
        A("s_barrier                         ; B5")
    stamp(10)
    if diag: finish()
    A("L_end:")
    A("s_endpgm")

    A("L_qrare:")
    A(f"v_lshlrev_b32 v{TT}, 1, v{TT}")
    A(f"v_cmp_ne_u32 vcc, 0, v{TT}")
    A("s_cbranch_vccz L_qflush")
    A(f"s_cmp_eq_u32 s27, {SPIN - nf}")
    A("s_cbranch_scc1 L_qflush")
    A("L_qagain:")
    A("s_sub_u32 s27, s27, 1")
    A("s_cbranch_scc1 L_qok")
    gload(QG, 4, 9, "ws", 0, "sc1"); gload(QG + 4, 4, 9, "ws", 1024, "sc1")
    A("s_branch L_qpoll")
    A("L_qflush:")
    A("s_lshl2_add_u32 s29, s28, s22"); A("s_lshl_b32 s29, s29, 10"); A(f"s_add_u32 s29, s29, {WS_Q1}")
    A("v_lshl_add_u32 v39, v2, 4, s29")
    gload(48, 4, 39, "ws", 0, "sc1")
    A("s_waitcnt vmcnt(0)")
    gstore(48, 4, 39, "ws", 0, "sc1")
    A("s_cbranch_vccnz L_qagain")
    for i in range(8): A(f"v_and_b32 v{QG+i}, 0xfffffe00, v{QG+i}")
    A("v_mov_b32 v38, 0x101")
    A("s_branch L_qok")

    role[0] = "v"
    A("L_qproj:")
    A(f"s_load_dword s26, s[18:19], {WS_E}")
    A("v_bfe_u32 v12, v2, 2, 2           ; n>>2")
    A("v_lshlrev_b32 v5, 7, v12")
    A("v_lshl_add_u32 v5, v10, 3, v5")
    A("v_lshl_add_u32 v5, v11, 10, v5")
    A("v_add_u32 v5, m0, v5")
    A("v_lshlrev_b32 v7, 8, v10"); A("v_lshl_add_u32 v7, v12, 6, v7"); A("v_lshlrev_b32 v8, 4, v4")
    A("v_add3_u32 v7, v7, v8, s55")
    A("v_sub_u32 v8, v4, v11")
    A("v_lshl_add_u32 v12, v8, 2, v12")
    for t in range(4): A(f"v_cmp_eq_u32 s[{60+2*t}:{61+2*t}], {t}, v12")
    A("s_lshl_b32 s27, s33, 10")
    A("v_lshlrev_b32 v13, 4, v2")
    A("v_add_u32 v14, s27, v13")
    A("v_mov_b32 v15, 0"); A("v_mov_b32 v16, 1")
    A("v_mov_b32 v17, 0xfffffe00")
    A("v_mov_b32 v18, 0xffffff00")
    XM = 40; WA = 56; QD = 20; QP = 72
    A("s_waitcnt vmcnt(4)")
    stamp(1)
    for t in range(4):
        for i in range(4): A(f"v_cndmask_b32 v{XM+4*t+i}, 0, v{XR+i}, s[{60+2*t}:{61+2*t}]")
    A("s_waitcnt lgkmcnt(0)")
    tags()
    qtags()
    A("s_waitcnt vmcnt(0)")
    for t in range(4):
        for e in range(2):
            A(f"ds_read_b64_tr_b16 {vr(WA+4*t+2*e,2)}, v5 offset:{512*e + 32*t}")
    for t in range(4):
        A(f"s_waitcnt lgkmcnt({6-2*t})")
        mfma(QD, WA + 4*t, XM + 4*t, None if t == 0 else QD)
    A("s_nop 7")
    A(f"ds_write_b128 v14, {vr(QD,4)} offset:{L_RED}")
    A("s_mov_b64 exec, 1")
    A(f"ds_add_rtn_u32 v16, v15, v16 offset:{L_CNT+4}")
    A("s_mov_b64 exec, -1")
    A("s_waitcnt lgkmcnt(0)")
    A("v_readfirstlane_b32 s27, v16")
    A("s_cmp_eq_u32 s27, 3")
    A("s_cbranch_scc0 L_v")
    for u in range(4): A(f"ds_read_b128 {vr(QP+4*u,4)}, v13 offset:{L_RED + 1024*u}")
    A("s_waitcnt lgkmcnt(2)")
    A(f"v_pk_add_f32 {vr(QP,2)}, {vr(QP,2)}, {vr(QP+4,2)}")
    A(f"v_pk_add_f32 {vr(QP+2,2)}, {vr(QP+2,2)}, {vr(QP+6,2)}")
    A("s_waitcnt lgkmcnt(0)")
    A(f"v_pk_add_f32 {vr(QP+8,2)}, {vr(QP+8,2)}, {vr(QP+12,2)}")
    A(f"v_pk_add_f32 {vr(QP+10,2)}, {vr(QP+10,2)}, {vr(QP+14,2)}")
    A(f"v_pk_add_f32 {vr(QP,2)}, {vr(QP,2)}, {vr(QP+8,2)}")
    A(f"v_pk_add_f32 {vr(QP+2,2)}, {vr(QP+2,2)}, {vr(QP+10,2)}")
    for j in range(4): A(f"v_and_or_b32 v{QP+j}, v{QP+j}, v17, s{56+j}")
    gstore(QP, 4, 7, "ws", 0, "")
    A("L_v:")
    stamp(2)
    VV = 100
    A("s_setprio 0")
    kvbase("s33")
    A("v_lshlrev_b32 v9, 4, v3")
    A("v_lshlrev_b32 v11, 10, v4")
    A("v_add3_u32 v9, v9, v11, s23       ; V offset")
    A("v_and_b32 v16, 1, v2")
    A("v_lshlrev_b32 v16, 4, v16")
    A("v_mov_b32 v17, 0xffff")
    A("v_lshlrev_b32 v16, v16, v17")
    A("v_bfe_u32 v17, v2, 1, 2")
    for jj in range(4):
        A(f"v_cmp_eq_u32 vcc, {jj}, v17")
        A("s_nop 1")
        A(f"v_cndmask_b32 v{12+jj}, 0, v16, vcc")
    A("v_bfe_u32 v16, v2, 3, 1           ; h")
    A("v_lshlrev_b32 v25, 5, v16")
    A("s_lshl_b32 s27, s33, 3")
    A("v_add_u32 v26, s27, v25")
    A("s_lshl_b32 s27, s33, 11")
    A("v_lshl_add_u32 v27, v2, 4, s27")
    A("s_and_b32 s31, s33, 1"); A("s_lshl_b32 s27, s31, 10")
    A("s_lshr_b32 s29, s33, 1"); A("s_lshl_b32 s29, s29, 9"); A("s_add_u32 s27, s27, s29")
    A("v_lshl_add_u32 v16, v2, 4, s27")
    A("s_lshr_b32 s21, s2, 3             ; r")
    A("s_lshl_b32 s27, s20, 5"); A("s_add_u32 s27, s27, s21"); A("s_lshl2_add_u32 s27, s27, s33"); A("s_lshl_b32 s27, s27, 9")
    A(f"s_add_u32 s27, s27, {WS_O1}")
    A("v_lshl_add_u32 v17, v2, 4, s27")
    A("s_mov_b32 s35, 0x3db8aa3b         ; log2(e)/16")
    A("s_lshr_b32 s29, s2, 2"); A("s_lshl_b32 s29, s29, 15")
    A("s_and_b32 s30, s2, 3"); A("s_lshl1_add_u32 s30, s30, s31"); A("s_lshl_b32 s30, s30, 6"); A("s_add_u32 s29, s29, s30")
    A(f"s_add_u32 s29, s29, {WS_P2}")
    A("v_lshrrev_b32 v19, 2, v2"); A("v_lshlrev_b32 v19, 11, v19"); A("v_lshlrev_b32 v11, 4, v10")
    A("v_add3_u32 v19, v19, v11, s29")
    A("s_and_b32 s29, s2, 1"); A("s_lshl1_add_u32 s29, s29, s31"); A("s_mul_i32 s29, s29, 896")
    A("s_lshr_b32 s30, s2, 1"); A("s_lshl_b32 s30, s30, 5"); A("s_add_u32 s29, s29, s30")
    A("v_lshlrev_b32 v11, 1, v4"); A("v_lshl_add_u32 v11, v10, 3, v11"); A("v_add_u32 v11, s29, v11")
    A("v_mov_b32 v5, 0")
    A("s_waitcnt vmcnt(0)")
    A("s_barrier                         ; Bk")
    stamp(3)
    for idx in range(16):
        if idx >= dv: A(f"s_waitcnt vmcnt({dv-1})")
        U, j = idx >> 2, idx & 3
        gload(VV + 4*idx, 4, 9, "v", j*256, kvflags)
        if j == 3 and U < 3: A("v_add_u32 v9, s25, v9")
    if vland: A("s_waitcnt vmcnt(0)")
    stamp(4)
    A("s_barrier                         ; Bp")
    stamp(5)
    S = 28; TT = 24; ST = 40; VA = 56; ACC = 88
    A(f"ds_read_b32 v{ST+9}, v5 offset:{L_CNT}")
    A(f"ds_read_b128 {vr(ST,4)}, v25 offset:{L_STAT}")
    A(f"ds_read_b128 {vr(ST+4,4)}, v25 offset:{L_STAT+16}")
    A(f"ds_read_b32 v{ST+8}, v26 offset:{L_STAT}")
    A(f"ds_read_b128 {vr(S,4)}, v27 offset:{L_RED}")
    A(f"ds_read_b128 {vr(S+4,4)}, v27 offset:{L_RED+1024}")
    A("s_waitcnt lgkmcnt(2)")
    A(f"v_readfirstlane_b32 s54, v{ST+9}")
    A(f"v_max3_f32 v{TT}, v{ST}, v{ST+2}, v{ST+4}")
    A(f"v_max_f32 v{TT}, v{TT}, v{ST+6}")
    A(f"v_sub_f32 v{TT}, v{ST+8}, v{TT}")
    A(f"v_mul_f32 v{TT}, s35, v{TT}")
    A(f"v_exp_f32 v{TT}, v{TT}")
    A("s_waitcnt lgkmcnt(0)")
    for i in range(8): A(f"v_mul_f32 v{S+i}, v{S+i}, v{TT}")
    for i in range(8): A(f"v_cvt_pk_bf16_f32 v{S+i}, v{S+i}, v{S+i}")
    def amask(t):
        for j in range(4): A(f"v_and_b32 v{VA+4*t+j}, v{S+t}, v{12+j}")
    A("s_lshr_b32 s54, s54, 8")
    amask(0); amask(1)
    stamp(6)
    for i in range(16):
        t, h = i >> 1, i & 1
        if i >= 16 - dv: A(f"s_waitcnt vmcnt({15-i})")
        mfma(ACC + 4*h, VA + 4*t, VV + 4*i, None if t == 0 else ACC + 4*h)
        if i < 6: amask(i + 2)
    if tsync:
        A("s_add_u32 s44, s42, 1500"); A("s_or_b32 s44, s44, 0x3ff"); A("s_add_u32 s44, s44, 1")
        A("L_tsync:")
        A("s_memrealtime s[40:41]"); A("s_waitcnt lgkmcnt(0)")
        A("s_sub_u32 s45, s40, s44"); A("s_cmp_lt_i32 s45, 0"); A("s_cbranch_scc1 L_tsync")
        note("s44", 13)
    A("s_nop 5")
    A(f"ds_write_b128 v27, {vr(ACC,4)} offset:{L_RED}")
    A("s_nop 0")
    A(f"ds_write_b128 v27, {vr(ACC+4,4)} offset:{L_RED+1024}")
    A("s_waitcnt lgkmcnt(0)")
    stamp(7)
    A("s_barrier")
    A("s_mov_b32 exec_hi, 0")
    R = 40
    for i in range(4): A(f"ds_read_b128 {vr(R+4*i,4)}, v16 offset:{L_RED + 2048*i}")
    A("s_waitcnt lgkmcnt(2)")
    A(f"v_pk_add_f32 {vr(R,2)}, {vr(R,2)}, {vr(R+4,2)}")
    A(f"v_pk_add_f32 {vr(R+2,2)}, {vr(R+2,2)}, {vr(R+6,2)}")
    A("s_waitcnt lgkmcnt(0)")
    A(f"v_pk_add_f32 {vr(R+8,2)}, {vr(R+8,2)}, {vr(R+12,2)}")
    A(f"v_pk_add_f32 {vr(R+10,2)}, {vr(R+10,2)}, {vr(R+14,2)}")
    A(f"v_pk_add_f32 {vr(R,2)}, {vr(R,2)}, {vr(R+8,2)}")
    A(f"v_pk_add_f32 {vr(R+2,2)}, {vr(R+2,2)}, {vr(R+10,2)}")
    for j in range(4): A(f"v_and_or_b32 v{R+j}, v{R+j}, v18, s{36+j}")
    publish(R, 17, (lambda: A("s_barrier                         ; B3b")) if b3b else None)
    A("s_mov_b32 exec_hi, -1")
    stamp(8)
    A("s_barrier                         ; B4")
    A("s_cmp_ge_u32 s2, 56")
    A("s_cbranch_scc1 L_vend")
    A("s_cmp_ge_u32 s33, 2")
    A("s_cbranch_scc1 L_vend")
    F = 56
    if b5: A("s_barrier                         ; B5")
    if fdelay: A(f"s_sleep {fdelay}")
    A(f"s_mov_b32 s27, {SPIN}")
    A("L_fpoll:")
    for j in range(4): gload(F + 4*j, 4, 19, "ws", 512*j, "sc1")
    for j in range(4):
        A(f"s_waitcnt vmcnt({3-j})")
        for i in range(4): A(f"v_xor_b32 v{F+4*j+i}, s{36+i}, v{F+4*j+i}")
        if j == 0:
            A(f"v_or_b32 v{TT}, v{F}, v{F+1}")
            A(f"v_or3_b32 v{TT}, v{TT}, v{F+2}, v{F+3}")
        else:
            A(f"v_or3_b32 v{TT}, v{TT}, v{F+4*j}, v{F+4*j+1}")
            A(f"v_or3_b32 v{TT}, v{TT}, v{F+4*j+2}, v{F+4*j+3}")
            A(f"v_pk_add_f32 {vr(F,2)}, {vr(F,2)}, {vr(F+4*j,2)}")
            A(f"v_pk_add_f32 {vr(F+2,2)}, {vr(F+2,2)}, {vr(F+4*j+2,2)}")
    A(f"v_lshlrev_b32 v{TT}, 24, v{TT}")
    A(f"v_cmp_ne_u32 vcc, 0, v{TT}")
    A("s_cbranch_vccz L_fok")
    if fsleep: A(f"s_sleep {fsleep}")
    A("s_sub_u32 s27, s27, 1")
    A("s_cbranch_scc0 L_fpoll")
    A("L_fok:")
    note("s27", 15)
    stamp(9)
    tred(F)
    A("s_nop 1")
    A(f"v_add_f32_dpp v{F}, v{F}, v{F} row_ror:8 row_mask:0xf bank_mask:0xf")
    A("s_nop 1")
    A(f"v_add_f32_dpp v{F}, v{F}, v{F} row_ror:4 row_mask:0xf bank_mask:0xf")
    A("s_mov_b32 exec_lo, 0x000f000f")
    A("s_mov_b32 exec_hi, 0x000f000f")
    A(f"v_cvt_pk_bf16_f32 v{F}, v{F}, v{F}")
    gstore(F, 0, 11, "out", 0, outflags)
    A("s_or_b32 s29, s2, s33")
    A("s_cbranch_scc1 L_vend2")
    A("s_mov_b64 exec, 1")
    A("v_mov_b32 v19, 0"); A("v_mov_b32 v20, s26")
    gstore(20, 1, 19, "ws", WS_E, "sc1")
    A("L_vend2:")
    if stamps or op == "v10":
        A("s_waitcnt vmcnt(0)")
        stamp(10)
    A("L_vend:")
    finish()
    A("L_codeend:")

    nv = 172 if stamps else 164
    A('.section .rodata,"a"'); A(".p2align 6"); A(f".amdhsa_kernel {NAME}")
    A(f"  .amdhsa_next_free_vgpr {nv}"); A(f"  .amdhsa_next_free_sgpr {96 if safe else 68}"); A(f"  .amdhsa_accum_offset {nv}")
    A("  .amdhsa_group_segment_fixed_size 0"); A("  .amdhsa_kernarg_size 64"); A("  .amdhsa_user_sgpr_count 2")
    A("  .amdhsa_user_sgpr_kernarg_segment_ptr 1"); A("  .amdhsa_system_sgpr_workgroup_id_x 1")
    A("  .amdhsa_float_denorm_mode_32 3")
    A(".end_amdhsa_kernel")
    out = []
    for l in L:
        if l.endswith(":") or l.startswith(".") or l.startswith(";") or l.startswith("  ."):
            out.append(l)
        else:
            out.append("    " + l.rstrip())
    return HEADER + "\n".join(out) + "\n"


if __name__ == "__main__":
    kw = {}
    for a in sys.argv[2:]:
        k, v = a.split("=")
        kw[k] = eval(v) if v in ("True", "False") or v.isdigit() else v.replace("+", " ")
    open(sys.argv[1], "w").write(gen(**kw))
```

```python
import sys, os
sys.path.insert(0, os.path.dirname(os.path.abspath(__file__)))
import oprobe

NAME = "standalone__sliding_block_cached__decode_kernel"

HEADER = """; Kernarg layout for this problem (64 bytes, ptrs only, base s[0:1]):
;   offset  32: d_in[4] wo  shape=(4096, 448) dtype=bfloat16
;   offset  56: d_ws      268435456 bytes workspace
"""

WS_E = 0
WS_S1 = 0x8000
WS_Q1 = 0x10000
WS_O1 = 0x50000
WS_ACC = 0xD0000
WS_ST = 0x400000

L_CNT = 0
L_WQ = 1024
L_Q = 40960
L_STAT = 64
L_OX = 15360
L_RED = 16384
L_WO = 24576
L_END = 42240

BUF = dict(x=4, k=6, v=8, wq=10, wo=12, out=14, dbg=16, ws=18)
SIZE = dict(x=3584, k=67108864, v=67108864, wq=3670016, wo=3670016, out=3584, dbg=256, ws=268435456)
SRD = dict(x=68, k=72, v=76, wq=80, wo=84, out=88, ws=92, dbg=96)

SPIN = 100000


def gen(safe=False, stamps=False, only="", pmask=0, pval=0, amp=0, op="", omin=False,
        kvflags="nt", wqflags="nt", woflags="nt", outflags="", dk=6, dv=8, kpre=0,
        nf=64, tsync=False, xf="", vland=False, nowo=False, kprio=0, b3b=True, fakex=False,
        hs="4:8", gq=0, wgate=-1, kinit=16, lrot=0, nopf=False, f64=True, atf="sc0 sc1"):
    L = []
    A = L.append
    diag = stamps or op

    def vr(r, n=1):
        return f"v{r}" if n == 1 else f"v[{r}:{r+n-1}]"

    W = {1: "dword", 2: "dwordx2", 3: "dwordx3", 4: "dwordx4"}

    def gload(dst, n, voff, buf, imm=0, fl=""):
        if safe:
            A(f"buffer_load_{W[n]} {vr(dst,n)}, v{voff}, s[{SRD[buf]}:{SRD[buf]+3}], 0 offen offset:{imm} {fl}")
        else:
            A(f"global_load_{W[n]} {vr(dst,n)}, v{voff}, s[{BUF[buf]}:{BUF[buf]+1}] offset:{imm} {fl}")

    def gdma(voff, buf, imm=0, fl=""):
        if nowo and buf == "wo": return
        if safe:
            A(f"buffer_load_dwordx4 v{voff}, s[{SRD[buf]}:{SRD[buf]+3}], 0 offen offset:{imm} {fl} lds")
        else:
            A(f"global_load_lds_dwordx4 v{voff}, s[{BUF[buf]}:{BUF[buf]+1}] offset:{imm} {fl}")

    def gstore(src, n, voff, buf, imm=0, fl=""):
        w = "short" if n == 0 else W[n]
        n = max(n, 1)
        if safe:
            A(f"buffer_store_{w} {vr(src,n)}, v{voff}, s[{SRD[buf]}:{SRD[buf]+3}], 0 offen offset:{imm} {fl}")
        else:
            A(f"global_store_{w} v{voff}, {vr(src,n)}, s[{BUF[buf]}:{BUF[buf]+1}] offset:{imm} {fl}")

    def gatomic(dst, src, voff):
        n = 2 if f64 else 1
        t = "f64" if f64 else "f32"
        if safe:
            for i in range(n): A(f"v_mov_b32 v{dst+i}, v{src+i}")
            A(f"buffer_atomic_add_{t} {vr(dst,n)}, v{voff}, s[{SRD['ws']}:{SRD['ws']+3}], 0 offen {atf}")
        else:
            A(f"global_atomic_add_{t} {vr(dst,n)}, v{voff}, {vr(src,n)}, s[18:19] {atf}")

    def publish(src, voff, between=None):
        uid[0] += 1
        gstore(src, 4, voff, "ws", 0, "")
        if between: between()
        A("s_cmp_eq_u32 s54, 0")
        A(f"s_cbranch_scc1 L_pub{uid[0]}")
        A("s_waitcnt vmcnt(0)")
        gstore(src, 4, voff, "ws", 0, "sc1")
        A(f"L_pub{uid[0]}:")

    def pretouch(dst, addr):
        gload(dst, 1, addr, "ws", 0, "nt"); gload(dst, 1, addr, "ws", 0, "sc1")

    STB = 168
    role = ["k"]
    uid = [0]

    def kernarg_ready():
        A("s_waitcnt lgkmcnt(0)")
        if op: A("s_mov_b32 s46, s42")
        if stamps: A(f"v_writelane_b32 v{STB}, s42, 0")
        if safe:
            for b, s in SRD.items():
                A(f"s_mov_b32 s{s}, s{BUF[b]}"); A(f"s_mov_b32 s{s+1}, s{BUF[b]+1}")
                A(f"s_mov_b32 s{s+2}, {SIZE[b]}"); A(f"s_mov_b32 s{s+3}, 0x20000")

    def stamp(i):
        if op == f"{role[0]}{i}":
            A("s_memrealtime s[42:43]")
            A("s_waitcnt lgkmcnt(0)")
        if stamps and (only == "" or f"{role[0]}{i}" in str(only).split(",")):
            A("s_memrealtime s[40:41]")
            A("s_waitcnt lgkmcnt(0)")
            A(f"v_writelane_b32 v{STB}, s40, {i}")

    def note(sreg, i):
        if stamps: A(f"v_writelane_b32 v{STB}, {sreg}, {i}")

    def finish():
        if stamps:
            A("s_mov_b64 exec, -1")
            A("s_lshl3_add_u32 s40, s2, s3"); A("s_lshl_b32 s40, s40, 7")
            A(f"s_add_u32 s40, s40, {WS_ST}")
            A(f"v_lshl_add_u32 v{STB+1}, v2, 2, s40")
            A("s_mov_b32 exec_hi, 0")
            gstore(STB, 1, STB + 1, "ws")
        if op:
            uid[0] += 1
            oprobe.emit_record(A, gstore, WS_ST)
            if role[0] == "k": oprobe.emit_report(A, gload, WS_ST, uid[0], amp, pmask, pval, omin)
        A("s_endpgm")

    def mfma(d, a, b, c=None):
        cs = "0" if c is None else vr(c, 4)
        A(f"v_mfma_f32_16x16x32_bf16 {vr(d,4)}, {vr(a,4)}, {vr(b,4)}, {cs}")

    def tags():
        A("s_add_u32 s26, s26, 0x01010101")
        A("s_and_b32 s36, s26, 0xff"); A("s_bfe_u32 s37, s26, 0x80008"); A("s_bfe_u32 s38, s26, 0x80010"); A("s_lshr_b32 s39, s26, 24")

    def xred(reg, tmp, op_):
        for sw in ("v_permlane32_swap_b32", "v_permlane16_swap_b32"):
            A(f"v_mov_b32 v{tmp}, v{reg}")
            A("s_nop 1")
            A(f"{sw} v{reg}, v{tmp}")
            A(f"{op_} v{reg}, v{reg}, v{tmp}")

    def tred(r):
        A(f"v_permlane32_swap_b32 v{r}, v{r+2}")
        A(f"v_permlane32_swap_b32 v{r+1}, v{r+3}")
        A(f"v_add_f32 v{r}, v{r}, v{r+2}")
        A(f"v_add_f32 v{r+1}, v{r+1}, v{r+3}")
        A("s_nop 1")
        A(f"v_permlane16_swap_b32 v{r}, v{r+1}")
        A(f"v_add_f32 v{r}, v{r}, v{r+1}")

    def qtags():
        A("s_getreg_b32 s53, hwreg(HW_REG_XCC_ID, 0, 4)")
        if fakex: A("s_bfe_u32 s53, s2, 0x10005")
        for j in range(4):
            A(f"s_bfe_u32 s{56+j}, s53, {0x10000 + j}"); A(f"s_lshl_b32 s{56+j}, s{56+j}, 8"); A(f"s_or_b32 s{56+j}, s{56+j}, s{36+j}")

    def untag8(g, tt, base=36, sh=24):
        for i in range(8): A(f"v_xor_b32 v{g+i}, s{base + (i & 3)}, v{g+i}")
        A(f"v_or3_b32 v{tt}, v{g}, v{g+1}, v{g+2}")
        A(f"v_or3_b32 v{tt}, v{tt}, v{g+3}, v{g+4}")
        A(f"v_or3_b32 v{tt}, v{tt}, v{g+5}, v{g+6}")
        A(f"v_or_b32 v{tt}, v{tt}, v{g+7}")
        A(f"v_lshlrev_b32 v{tt}, {sh}, v{tt}")
        A(f"v_cmp_ne_u32 vcc, 0, v{tt}")

    def spin_step(addr):
        A("s_sub_u32 s27, s27, 1")

    def kvbase(wreg):
        A("s_lshl3_add_u32 s23, s22, s20")
        A("s_lshl_b32 s23, s23, 21")
        A(f"s_lshl2_add_u32 s25, s24, {wreg}")
        A("s_lshl_b32 s25, s25, 12")
        A("s_add_u32 s23, s23, s25")
        A("s_add_u32 s23, s23, 0x180000")
        A("s_mov_b32 s25, 0x20000")

    A(f"; @launch grid=(256,1,1) block=(512,1,1) lds={L_END}")
    A('.amdgcn_target "amdgcn-amd-amdhsa--gfx950"')
    A(".text"); A(f".globl {NAME}"); A(".p2align 8"); A(f".type {NAME},@function"); A(f"{NAME}:")
    if diag:
        A("s_memrealtime s[42:43]")
    A("s_cmpk_ge_u32 s2, 0x100")
    A("s_cbranch_scc1 L_end")
    A("s_load_dwordx16 s[4:19], s[0:1], 0")
    if lrot: A(f"s_xor_b32 s2, s2, {lrot << 3}")
    A("v_readfirstlane_b32 s3, v0")
    A("v_and_b32 v2, 63, v0              ; lane")
    A("v_and_b32 v3, 15, v0              ; n")
    A("v_bfe_u32 v4, v0, 4, 2            ; g")
    A("v_and_b32 v10, 3, v0")
    A("s_and_b32 s20, s2, 7              ; hkv")
    A("s_lshr_b32 s22, s2, 6")
    A("s_bfe_u32 s24, s2, 0x30003")
    A("s_lshl3_add_u32 s28, s20, s24")
    A("s_lshr_b32 s3, s3, 6              ; wave")
    A("s_cmp_lt_u32 s3, 4")
    A("s_cbranch_scc1 L_k")
    XR = 24
    A("s_getpc_b64 s[30:31]")
    A("L_pc:")
    A("v_lshlrev_b32 v5, 5, v0")
    A("v_subrev_u32 v5, 8192, v5")
    A("v_min_u32 v5, L_codeend-L_pc-4, v5")
    if not nopf: A("global_load_dword v6, v5, s[30:31]")
    A("s_setprio 3")
    A("v_mov_b32 v8, 0")
    A("v_mov_b32 v9, 0")
    A("ds_write2_b64 v8, v[8:9], v[8:9] offset0:0 offset1:1")
    A("s_and_b32 s33, s3, 3              ; u")
    A("s_cmp_eq_u32 s33, 3")
    A("s_cselect_b32 s34, 1, 3")
    A("v_and_b32 v11, s34, v4")
    A("s_mul_i32 s25, s22, 224")
    A("s_lshl_b32 s27, s33, 6")
    A("s_add_u32 s25, s25, s27           ; 2*(kq*112 + 32u)")
    A("v_mul_u32_u24 v5, 896, v10")
    A("v_lshlrev_b32 v7, 4, v11")
    A("v_add3_u32 v5, v5, v7, s25        ; x offset")
    A("s_lshl_b32 s27, s28, 7")
    A("s_lshl_b32 s25, s25, 12")
    A("s_add_u32 s25, s25, s27")
    A("v_lshrrev_b32 v7, 3, v2")
    A("v_lshlrev_b32 v7, 13, v7")
    A("v_and_b32 v8, 7, v2")
    A("v_lshlrev_b32 v9, 4, v8")
    A("v_add3_u32 v7, v7, v9, s25")
    A("s_lshl_b32 s27, s33, 12")
    A(f"s_add_u32 m0, s27, {L_WQ}")
    A(f"s_mov_b32 s25, {65536-1024}")
    A("s_lshl2_add_u32 s55, s28, s22"); A("s_lshl_b32 s55, s55, 10"); A(f"s_add_u32 s55, s55, {WS_Q1}")
    A("v_lshl_add_u32 v8, v8, 7, s55")
    A("s_cmp_eq_u32 s33, 3")
    kernarg_ready()
    gload(XR, 4, 5, "x", 0, xf)
    gdma(7, "wq", 0, wqflags)
    A("v_add_u32 v7, s25, v7")
    gdma(7, "wq", 1024, wqflags)
    A("s_cbranch_scc1 L_u3")
    A("v_add_u32 v7, s25, v7")
    gdma(7, "wq", 2048, wqflags)
    A("v_add_u32 v7, s25, v7")
    gdma(7, "wq", 3072, wqflags)
    A("s_barrier                         ; B0")
    A("s_branch L_qproj")
    A("L_u3:")
    pretouch(9, 8)
    A("s_barrier                         ; B0")
    A("s_branch L_qproj")

    A("L_k:")
    VK = 100
    kvbase("s3")
    A("v_lshrrev_b32 v5, 1, v3")
    A("v_lshlrev_b32 v5, 9, v5")
    A("v_and_b32 v7, 1, v2")
    A("v_lshl_add_u32 v6, v7, 2, v4")
    A("v_lshlrev_b32 v6, 4, v6")
    A("v_add3_u32 v5, v5, v6, s23        ; K offset")
    kernarg_ready()
    for idx in range(16):
        if idx == kpre:
            A("s_barrier                         ; B0")
            stamp(1)
        if idx >= dk: A(f"s_waitcnt vmcnt({dk-1})")
        elif idx == kinit: A(f"s_waitcnt vmcnt({kinit-1})")
        U, j = idx >> 2, idx & 3
        gload(VK + 4*idx, 4, 5, "k", j*128, kvflags)
        if j == 3 and U < 3: A("v_add_u32 v5, s25, v5")
        if idx == 7:
            A("s_lshl_b32 s50, s20, 7"); A("s_load_dword s26, s[18:19], s50")
            if kprio: A(f"s_setprio {kprio}")
        if idx == 11:
            A("s_lshl2_add_u32 s27, s20, s3"); A("s_lshl_b32 s27, s27, 13"); A("s_lshl_b32 s29, s22, 8"); A("s_add_u32 s27, s27, s29")
            A(f"s_add_u32 s27, s27, {WS_Q1}")
            A("v_and_b32 v12, 1, v4"); A("v_lshrrev_b32 v13, 1, v4")
            A("v_lshlrev_b32 v9, 12, v12"); A("v_lshl_add_u32 v9, v13, 11, v9"); A("v_lshlrev_b32 v14, 4, v3")
            A("v_add3_u32 v9, v9, v14, s27")
        if idx == 12:
            A("s_lshr_b32 s27, s3, 1"); A("s_mul_i32 s27, s27, 576"); A("s_and_b32 s29, s3, 1"); A("s_lshl_b32 s29, s29, 8"); A("s_add_u32 s27, s27, s29")
            A("v_lshlrev_b32 v15, 7, v12"); A("v_lshl_add_u32 v15, v13, 2, v15"); A("v_lshlrev_b32 v16, 3, v3")
            A("v_add3_u32 v15, v15, v16, s27")
        if idx == 13:
            A("v_bfe_u32 v6, v2, 3, 1            ; h")
            A("v_mul_u32_u24 v17, 576, v6")
            A("v_and_b32 v7, 4, v2               ; 4*c'")
            A("v_add_u32 v7, v7, v4")
            A("v_lshl_add_u32 v17, v7, 4, v17")
            A("s_lshl_b32 s27, s3, 3")
            A("v_lshl_add_u32 v19, v6, 5, s27")
            A("s_lshl_b32 s27, s3, 11")
            A("v_lshl_add_u32 v36, v2, 4, s27")
        if idx == 14:
            A("s_waitcnt lgkmcnt(0)")
            tags()
            qtags()
            A("v_mov_b32 v18, 0xffffff00")
            A("s_mov_b32 s35, 0x3db8aa3b         ; log2(e)/16")
            A("s_lshr_b32 s21, s2, 3             ; r")
    stamp(2)
    QG = 40
    steps = [tuple(map(int, x.split(":"))) for x in hs.split(",")]
    for i, (kk, vv) in enumerate(steps):
        A(f"s_waitcnt vmcnt({kk + (2 if i > gq else 0)})")
        if i == gq:
            gload(QG, 4, 9, "ws", 0, "sc1"); gload(QG + 4, 4, 9, "ws", 1024, "sc1")
        A("s_barrier")
        if i == 0: stamp(3)
    A("s_and_b32 s48, s21, 3             ; rg")
    A("s_lshr_b32 s49, s21, 2            ; cj")
    A("s_lshl2_add_u32 s27, s20, s48")
    A("s_lshl2_add_u32 s27, s27, s3")
    A("s_mul_i32 s27, s27, 28672")
    A("s_min_u32 s29, s49, 6"); A("s_lshl_b32 s29, s29, 7"); A("s_add_u32 s27, s27, s29")
    A("v_and_b32 v5, 7, v2"); A("v_lshlrev_b32 v6, 1, v12"); A("v_xor_b32 v5, v5, v6"); A("v_lshlrev_b32 v5, 4, v5")
    A("v_lshrrev_b32 v7, 3, v2"); A("v_mul_u32_u24 v7, 896, v7")
    A("v_xor_b32 v6, 64, v5")
    A("v_add3_u32 v5, v5, v7, s27")
    A(f"s_add_u32 s27, s27, {7168-1024}")
    A("v_add3_u32 v6, v6, v7, s27")
    A(f"v_add_u32 v7, {2*(7168-1024)}, v5")
    A(f"v_add_u32 v8, {2*(7168-1024)}, v6")
    A("s_lshl_b32 s27, s3, 12"); A(f"s_add_u32 m0, s27, {L_WO}")
    A("s_lshl_b32 s32, s20, 5")
    A("s_lshl3_add_u32 s34, s3, s32      ; hkv*32 + w*8")
    A("s_lshl2_add_u32 s27, s34, s48"); A("s_lshl_b32 s27, s27, 9")
    A(f"s_add_u32 s27, s27, {WS_O1}")
    A("v_and_b32 v25, 31, v2"); A("v_lshlrev_b32 v25, 4, v25"); A("v_lshlrev_b32 v26, 13, v13")
    A("v_add3_u32 v25, v25, v26, s27")
    A("v_add_u32 v28, 0x1000, v25")
    A("s_lshl_b32 s27, s34, 7"); A("s_lshr_b32 s29, s48, 1"); A("s_lshl_b32 s29, s29, 4"); A("s_add_u32 s27, s27, s29")
    A(f"s_add_u32 s27, s27, {WS_S1}")
    A("v_lshl_add_u32 v26, v13, 2, v10")
    A("v_lshl_add_u32 v26, v26, 7, s27")
    A("v_bfe_u32 v11, v2, 2, 2")
    A("v_lshrrev_b32 v27, 1, v11"); A("v_lshl_add_u32 v27, v12, 1, v27"); A("v_xor_b32 v27, s3, v27")
    A("v_lshlrev_b32 v27, 5, v27"); A("v_lshl_add_u32 v27, v11, 7, v27")
    A("v_lshl_add_u32 v27, v4, 10, v27"); A("v_lshl_add_u32 v27, v10, 3, v27")
    A("s_lshl_b32 s27, s3, 8")
    A("v_lshlrev_b32 v29, 3, v12"); A("v_lshl_add_u32 v29, v13, 2, v29"); A("v_add3_u32 v29, v29, v14, s27")
    A("v_lshlrev_b32 v30, 4, v4"); A("v_lshl_add_u32 v30, v11, 8, v30")
    A("s_lshl2_add_u32 s33, s49, s3")
    A(f"s_lshl_b32 s27, s33, {11 if f64 else 10}"); A(f"s_add_u32 s27, s27, {WS_ACC}")
    if f64:
        A("v_lshrrev_b32 v31, 3, v2"); A("v_and_b32 v35, 7, v2"); A("v_lshlrev_b32 v31, 8, v31"); A("v_lshlrev_b32 v32, 3, v35")
        A("v_add3_u32 v31, v31, v32, s27"); A(f"v_add_u32 v32, {128-24}, v31")
        A("v_cmp_eq_u32 s[60:61], 4, v35"); A("v_cmp_eq_u32 s[62:63], 3, v35")
    else:
        A("v_lshlrev_b32 v31, 8, v4"); A("v_lshlrev_b32 v32, 2, v3")
        A("v_add3_u32 v31, v31, v32, s27"); A(f"v_add_u32 v32, {128-28}, v31")
        A("v_cmp_eq_u32 s[60:61], 8, v3"); A("v_cmp_eq_u32 s[62:63], 7, v3")
    A("s_lshl_b32 s27, s33, 2"); A("v_mov_b32 v35, s27")
    A("s_lshl_b32 s27, s33, 5")
    A("v_mul_u32_u24 v1, 896, v4"); A("v_lshlrev_b32 v33, 1, v3"); A("v_add3_u32 v1, v1, v33, s27")
    A("s_add_u32 s32, s32, s21           ; hkv*32 + r")
    A("s_lshl_b32 s27, s32, 7"); A(f"s_add_u32 s27, s27, {WS_S1}")
    A("v_lshl_add_u32 v33, v2, 4, s27")
    A("v_lshlrev_b32 v34, 5, v2")
    A("v_mov_b32 v37, 0"); A("v_mov_b32 v38, 1")
    A(f"s_mov_b32 s27, {SPIN}")
    QS = 20; TT = 24
    A("L_qpoll:")
    A("s_waitcnt vmcnt(0)")
    untag8(QG, TT, 56, 23)
    A("s_cbranch_vccnz L_qrare")
    A("L_qok:")
    note("s27", 12)
    A(f"v_pk_add_f32 {vr(QS,2)}, {vr(QG,2)}, {vr(QG+4,2)}")
    A(f"v_pk_add_f32 {vr(QS+2,2)}, {vr(QG+2,2)}, {vr(QG+6,2)}")
    A("s_nop 1")
    A(f"v_permlane32_swap_b32 v{QS}, v{QS+2}")
    A(f"v_permlane32_swap_b32 v{QS+1}, v{QS+3}")
    A(f"v_pk_add_f32 {vr(QS,2)}, {vr(QS,2)}, {vr(QS+2,2)}")
    A(f"v_cvt_pk_bf16_f32 v{QS}, v{QS}, v{QS+1}")
    A(f"ds_write_b32 v15, v{QS} offset:{L_Q}")
    A("s_mov_b64 exec, 1")
    A(f"ds_add_u32 v37, v38 offset:{L_CNT}")
    stamp(4)
    A("s_mov_b64 exec, -1")
    A("L_qsync:")
    A(f"ds_read_b32 v39, v37 offset:{L_CNT}")
    A("s_waitcnt lgkmcnt(0)")
    A("v_readfirstlane_b32 s54, v39")
    A("s_bitcmp1_b32 s54, 2")
    A("s_cbranch_scc0 L_qsync")
    A("s_lshr_b32 s54, s54, 8")
    stamp(5)
    VQ = 48; D = 64; S = 80
    for j in range(4):
        A(f"ds_read_b128 {vr(VQ+4*j,4)}, v17 offset:{L_Q + 128*j}")
    for j in range(4):
        A(f"s_waitcnt lgkmcnt({3-j})")
        for U in range(4):
            mfma(D + 4*U, VK + 16*U + 4*j, VQ + 4*j, None if j == 0 else D + 4*U)
    A("s_nop 4")
    for U in range(4):
        for r0 in range(2):
            a, b = D + 4*U + 2*r0, D + 4*U + 2*r0 + 1
            A(f"v_add_f32_dpp v{S+2*U+r0}, v{b}, v{a} row_shl:4 row_mask:0xf bank_mask:0x5")
            A(f"v_add_f32_dpp v{S+2*U+r0}, v{a}, v{b} row_shr:4 row_mask:0xf bank_mask:0xa")
    T0 = 48
    for i in range(4):
        A(f"v_cvt_pk_bf16_f32 v{T0+i}, v{S+2*i}, v{S+2*i+1}")
    for i in range(4):
        A(f"v_lshlrev_b32 v{S+2*i}, 16, v{T0+i}")
        A(f"v_and_b32 v{S+2*i+1}, 0xffff0000, v{T0+i}")
    M = 22; Lr = 23
    A(f"v_max3_f32 v{M}, v{S}, v{S+1}, v{S+2}")
    A(f"v_max3_f32 v{M}, v{M}, v{S+3}, v{S+4}")
    A(f"v_max3_f32 v{M}, v{M}, v{S+5}, v{S+6}")
    A(f"v_max_f32 v{M}, v{M}, v{S+7}")
    xred(M, TT, "v_max_f32")
    for i in range(8): A(f"v_sub_f32 v{S+i}, v{S+i}, v{M}")
    for i in range(8): A(f"v_mul_f32 v{S+i}, s35, v{S+i}")
    for i in range(8): A(f"v_exp_f32 v{S+i}, v{S+i}")
    A(f"v_add_f32 v{Lr}, v{S}, v{S+1}")
    A(f"ds_write_b128 v36, {vr(S,4)} offset:{L_RED}")
    A(f"ds_write_b128 v36, {vr(S+4,4)} offset:{L_RED+1024}")
    for i in range(2, 8): A(f"v_add_f32 v{Lr}, v{Lr}, v{S+i}")
    xred(Lr, TT, "v_add_f32")
    A(f"ds_write_b64 v19, {vr(M,2)} offset:{L_STAT}")
    A("v_mov_b32 v38, 1")
    A("s_mov_b64 exec, 1")
    A(f"ds_add_rtn_u32 v38, v37, v38 offset:{L_CNT+8}")
    A("s_waitcnt lgkmcnt(0)")
    A("v_readfirstlane_b32 s27, v38")
    A("s_cmp_eq_u32 s27, 3")
    A("s_cbranch_scc0 L_nostat")
    A("s_mov_b64 exec, 3")
    SB = 48
    A(f"ds_read_b128 {vr(SB,4)}, v34 offset:{L_STAT}")
    A(f"ds_read_b128 {vr(SB+4,4)}, v34 offset:{L_STAT+16}")
    A(f"v_mov_b32 v{SB+10}, s26"); A(f"v_mov_b32 v{SB+11}, s26")
    A("s_waitcnt lgkmcnt(0)")
    A(f"v_max3_f32 v{SB+8}, v{SB}, v{SB+2}, v{SB+4}")
    A(f"v_max_f32 v{SB+8}, v{SB+8}, v{SB+6}")
    for i in range(4): A(f"v_sub_f32 v{SB+2*i}, v{SB+2*i}, v{SB+8}")
    for i in range(4): A(f"v_mul_f32 v{SB+2*i}, s35, v{SB+2*i}")
    for i in range(4): A(f"v_exp_f32 v{SB+2*i}, v{SB+2*i}")
    A(f"v_mul_f32 v{SB+9}, v{SB}, v{SB+1}")
    for i in range(1, 4): A(f"v_fmac_f32 v{SB+9}, v{SB+2*i}, v{SB+1+2*i}")
    publish(SB+8, 33)
    A("L_nostat:")
    A("s_mov_b64 exec, -1")
    stamp(6)
    A("s_cmp_ge_u32 s21, 28")
    A("s_barrier")
    A("s_cbranch_scc1 L_kend")
    stamp(7)
    GS = 64; GO = 72; WT = 88; OS = 92
    gload(GS, 3, 26, "ws", 0, "sc1"); gload(GS+3, 1, 35, "dbg", 0, "sc1")
    if wgate >= 0: A("s_barrier                         ; Bw")
    for i in range(4): gdma(5 + i, "wo", 1024*i, woflags)
    A(f"s_mov_b32 s27, {SPIN}")
    A("s_barrier                         ; B3")
    A(f"s_waitcnt vmcnt({0 if nowo else 4})")
    A("L_spoll:")
    A(f"v_cmp_ne_u32 vcc, s26, v{GS+2}")
    A(f"v_cmp_eq_u32 s[30:31], 0, v{GS+3}")
    A("s_or_b64 vcc, vcc, s[30:31]")
    A("s_cbranch_vccz L_sok")
    A("s_sub_u32 s27, s27, 1")
    gload(GS, 3, 26, "ws", 0, "sc1"); gload(GS+3, 1, 35, "dbg", 0, "sc1")
    A("s_waitcnt vmcnt(0)")
    A("s_cbranch_scc0 L_spoll")
    A("L_sok:")
    stamp(8)
    def red8(dst, src, op_):
        A(f"{op_}_dpp v{dst}, v{src}, v{src} quad_perm:[1,0,3,2] row_mask:0xf bank_mask:0xf")
        A("s_nop 1")
        A(f"{op_}_dpp v{dst}, v{dst}, v{dst} quad_perm:[2,3,0,1] row_mask:0xf bank_mask:0xf")
        A(f"v_mov_b32 v{TT}, v{dst}")
        A("s_nop 1")
        A(f"v_permlane32_swap_b32 v{dst}, v{TT}")
        A(f"{op_} v{dst}, v{dst}, v{TT}")
    red8(M, GS, "v_max_f32")
    A(f"v_sub_f32 v{GS}, v{GS}, v{M}")
    A(f"v_mul_f32 v{GS}, s35, v{GS}")
    A(f"v_exp_f32 v{GS}, v{GS}")
    A(f"s_mov_b32 s27, {SPIN}")
    A(f"v_mul_f32 v{GS+1}, v{GS}, v{GS+1}")
    A("s_nop 1")
    red8(Lr, GS+1, "v_add_f32")
    A(f"v_rcp_f32 v{Lr}, v{Lr}")
    A("s_nop 0")
    for j in range(4): A(f"v_mul_f32_dpp v{WT+j}, v{GS}, v{Lr} quad_perm:[{j},{j},{j},{j}] row_mask:0xf bank_mask:0xf")
    if b3b: A("s_barrier                         ; B3b: this workgroup's O record is on its way")
    def oload(j): gload(GO + 4*j, 4, 28 if j & 2 else 25, "ws", 2048*(j & 1), "sc1")
    for j in range(4): oload(j)
    for j in range(4):
        g = GO + 4*j
        A(f"L_opoll{j}:")
        A(f"s_waitcnt vmcnt({3-j})")
        for i in range(4): A(f"v_xor_b32 v{g+i}, s{36+i}, v{g+i}")
        A(f"v_or3_b32 v{TT}, v{g}, v{g+1}, v{g+2}")
        A(f"v_or_b32 v{TT}, v{TT}, v{g+3}")
        A(f"v_cmp_ne_u32_sdwa vcc, v{TT}, v37 src0_sel:BYTE_0 src1_sel:DWORD")
        A(f"s_cbranch_vccnz L_oagain{j}")
        A(f"L_ogot{j}:")
        sel = f"op_sel:[0,{j&1},0] op_sel_hi:[1,{j&1},1]"
        for hh in range(2):
            if j == 0: A(f"v_pk_mul_f32 {vr(OS+2*hh,2)}, {vr(g+2*hh,2)}, {vr(WT,2)} op_sel_hi:[1,0]")
            else: A(f"v_pk_fma_f32 {vr(OS+2*hh,2)}, {vr(g+2*hh,2)}, {vr(WT+(j&2),2)}, {vr(OS+2*hh,2)} {sel}")
    note("s27", 14)
    stamp(9)
    A("s_nop 1")
    A(f"v_permlane32_swap_b32 v{OS}, v{OS+2}")
    A(f"v_permlane32_swap_b32 v{OS+1}, v{OS+3}")
    A(f"v_pk_add_f32 {vr(OS,2)}, {vr(OS,2)}, {vr(OS+2,2)}")
    A(f"v_cvt_pk_bf16_f32 v{OS}, v{OS}, v{OS+1}")
    A(f"ds_write_b32 v29, v{OS} offset:{L_OX}")
    A("s_waitcnt lgkmcnt(0)")
    A("s_barrier                         ; B4: o and wo in LDS")
    OB = 100; WA = 116; D = 132; AT = 136
    for s in range(4):
        A(f"ds_read_b128 {vr(OB+4*s,4)}, v30 offset:{L_OX + 64*s}")
        for e in range(2):
            A(f"ds_read_b64_tr_b16 {vr(WA + 4*s + 2*e, 2)}, v27 offset:{L_WO + s*4096 + e*512}")
    for s in range(4):
        A(f"s_waitcnt lgkmcnt({9-3*s})")
        mfma(D, OB + 4*s, WA + 4*s, None if s == 0 else D)
    m0_, m1_ = (0x1f1f1f1f, 0xf8f8f8f8) if f64 else (0x01ff01ff, 0xff80ff80)
    A(f"s_mov_b32 exec_lo, {m0_}"); A(f"s_mov_b32 exec_hi, {m0_}")
    A("s_nop 5")
    A(f"v_cndmask_b32 v{AT}, v{D}, 1.0, s[60:61]")
    if f64: A(f"v_cvt_f64_f32 {vr(AT,2)}, v{AT}")
    gatomic(AT+4, AT, 31)
    A(f"s_mov_b32 exec_lo, {m1_}"); A(f"s_mov_b32 exec_hi, {m1_}")
    A(f"v_cndmask_b32 v{AT+2}, v{D}, 1.0, s[62:63]")
    if f64: A(f"v_cvt_f64_f32 {vr(AT+2,2)}, v{AT+2}")
    gatomic(AT+6, AT+2, 32)
    A("s_or_b32 s27, s21, s3")
    A("s_cbranch_scc0 L_epoch")
    A("L_epoch_done:")
    A("s_mov_b64 exec, -1")
    stamp(10)
    if f64:
        A("s_waitcnt vmcnt(1)")
        A(f"v_add_f64 {vr(AT,2)}, {vr(AT,2)}, {vr(AT+4,2)}")
        A(f"v_cvt_f32_f64 v{AT}, {vr(AT,2)}")
        A("s_waitcnt vmcnt(0)")
        A(f"v_add_f64 {vr(AT+2,2)}, {vr(AT+2,2)}, {vr(AT+6,2)}")
        A(f"v_cvt_f32_f64 v{AT+2}, {vr(AT+2,2)}")
        A("s_nop 1")
        A(f"v_mov_b32_dpp v{TT}, v{AT} row_newbcast:4 row_mask:0xf bank_mask:0x1")
        A(f"v_mov_b32_dpp v{TT}, v{AT} row_newbcast:12 row_mask:0xf bank_mask:0x4")
        A(f"v_mov_b32_dpp v{TT}, v{AT+2} row_newbcast:3 row_mask:0xf bank_mask:0x2")
        A(f"v_mov_b32_dpp v{TT}, v{AT+2} row_newbcast:11 row_mask:0xf bank_mask:0x8")
        A(f"v_mov_b32_dpp v{AT}, v{AT+2} quad_perm:[0,1,2,3] row_mask:0xf bank_mask:0xa")
        A(f"v_cmp_eq_f32 vcc, 0x42000000, v{TT}")
    else:
        A("s_waitcnt vmcnt(1)")
        A(f"v_mov_b32_dpp v{TT}, v{AT+4} row_newbcast:8 row_mask:0xf bank_mask:0x3")
        A(f"v_add_f32 v{AT}, v{AT+4}, v{D}")
        A("s_waitcnt vmcnt(0)")
        A(f"v_mov_b32_dpp v{TT}, v{AT+6} row_newbcast:7 row_mask:0xf bank_mask:0xc")
        A(f"v_add_f32_dpp v{AT}, v{AT+6}, v{D} quad_perm:[0,1,2,3] row_mask:0xf bank_mask:0xc")
        A(f"v_cmp_eq_f32 vcc, 0x41f80000, v{TT}")
    A(f"v_cvt_pk_bf16_f32 v{AT}, v{AT}, v{AT}")
    stamp(11)
    A("s_and_b64 exec, exec, vcc")
    A("s_cbranch_scc0 L_kend")
    gstore(AT, 0, 1, "out", 0, outflags)
    if stamps or op == "k15":
        A("s_waitcnt vmcnt(0)")
    A("L_kend:")
    stamp(15)
    if diag: finish()
    A("L_end:")
    A("s_endpgm")

    A("L_epoch:")
    A("s_mov_b64 exec, 1")
    A("v_mov_b32 v20, s26"); A("v_mov_b32 v21, s50")
    gstore(20, 1, 21, "ws", WS_E, "")
    A("s_waitcnt vmcnt(1)")
    A("s_branch L_epoch_done")
    for j in range(4):
        A(f"L_oagain{j}:")
        A("s_sub_u32 s27, s27, 1")
        A(f"s_cbranch_scc1 L_ogiveup{j}")
        if j < 3: A("s_waitcnt vmcnt(0)")
        for jj in range(j, 4): oload(jj)
        A(f"s_branch L_opoll{j}")
        A(f"L_ogiveup{j}:")
        A("s_mov_b32 s27, 0")
        A(f"s_branch L_ogot{j}")

    A("L_qrare:")
    A(f"v_lshlrev_b32 v{TT}, 1, v{TT}")
    A(f"v_cmp_ne_u32 vcc, 0, v{TT}")
    A("s_cbranch_vccz L_qflush")
    A(f"s_cmp_eq_u32 s27, {SPIN - nf}")
    A("s_cbranch_scc1 L_qflush")
    A("L_qagain:")
    A("s_sub_u32 s27, s27, 1")
    A("s_cbranch_scc1 L_qok")
    gload(QG, 4, 9, "ws", 0, "sc1"); gload(QG + 4, 4, 9, "ws", 1024, "sc1")
    A("s_branch L_qpoll")
    A("L_qflush:")
    A("s_lshl2_add_u32 s29, s28, s22"); A("s_lshl_b32 s29, s29, 10"); A(f"s_add_u32 s29, s29, {WS_Q1}")
    A("v_lshl_add_u32 v39, v2, 4, s29")
    gload(48, 4, 39, "ws", 0, "sc1")
    A("s_waitcnt vmcnt(0)")
    gstore(48, 4, 39, "ws", 0, "sc1")
    A("s_cbranch_vccnz L_qagain")
    for i in range(8): A(f"v_and_b32 v{QG+i}, 0xfffffe00, v{QG+i}")
    A("v_mov_b32 v38, 0x101")
    A("s_branch L_qok")

    role[0] = "v"
    A("L_qproj:")
    A("s_lshl_b32 s50, s20, 7"); A("s_load_dword s26, s[18:19], s50")
    A("v_bfe_u32 v12, v2, 2, 2           ; n>>2")
    A("v_lshlrev_b32 v5, 7, v12")
    A("v_lshl_add_u32 v5, v10, 3, v5")
    A("v_lshl_add_u32 v5, v11, 10, v5")
    A("v_add_u32 v5, m0, v5")
    A("v_lshlrev_b32 v7, 8, v10"); A("v_lshl_add_u32 v7, v12, 6, v7"); A("v_lshlrev_b32 v8, 4, v4")
    A("v_add3_u32 v7, v7, v8, s55")
    A("v_sub_u32 v8, v4, v11")
    A("v_lshl_add_u32 v12, v8, 2, v12")
    for t in range(4): A(f"v_cmp_eq_u32 s[{60+2*t}:{61+2*t}], {t}, v12")
    A("s_lshl_b32 s27, s33, 10")
    A("v_lshlrev_b32 v13, 4, v2")
    A("v_add_u32 v14, s27, v13")
    A("v_mov_b32 v15, 0"); A("v_mov_b32 v16, 1")
    A("v_mov_b32 v17, 0xfffffe00")
    A("v_mov_b32 v18, 0xffffff00")
    XM = 40; WA = 56; QD = 20; QP = 72
    A("s_waitcnt vmcnt(4)")
    for t in range(4):
        for i in range(4): A(f"v_cndmask_b32 v{XM+4*t+i}, 0, v{XR+i}, s[{60+2*t}:{61+2*t}]")
    A("s_waitcnt lgkmcnt(0)")
    tags()
    qtags()
    A("s_waitcnt vmcnt(0)")
    for t in range(4):
        for e in range(2):
            A(f"ds_read_b64_tr_b16 {vr(WA+4*t+2*e,2)}, v5 offset:{512*e + 32*t}")
    for t in range(4):
        A(f"s_waitcnt lgkmcnt({6-2*t})")
        mfma(QD, WA + 4*t, XM + 4*t, None if t == 0 else QD)
    A("s_nop 7")
    A(f"ds_write_b128 v14, {vr(QD,4)} offset:{L_RED}")
    A("s_mov_b64 exec, 1")
    A(f"ds_add_rtn_u32 v16, v15, v16 offset:{L_CNT+4}")
    A("s_mov_b64 exec, -1")
    A("s_waitcnt lgkmcnt(0)")
    A("v_readfirstlane_b32 s27, v16")
    A("s_cmp_eq_u32 s27, 3")
    A("s_cbranch_scc0 L_v")
    for u in range(4): A(f"ds_read_b128 {vr(QP+4*u,4)}, v13 offset:{L_RED + 1024*u}")
    A("s_waitcnt lgkmcnt(2)")
    A(f"v_pk_add_f32 {vr(QP,2)}, {vr(QP,2)}, {vr(QP+4,2)}")
    A(f"v_pk_add_f32 {vr(QP+2,2)}, {vr(QP+2,2)}, {vr(QP+6,2)}")
    A("s_waitcnt lgkmcnt(0)")
    A(f"v_pk_add_f32 {vr(QP+8,2)}, {vr(QP+8,2)}, {vr(QP+12,2)}")
    A(f"v_pk_add_f32 {vr(QP+10,2)}, {vr(QP+10,2)}, {vr(QP+14,2)}")
    A(f"v_pk_add_f32 {vr(QP,2)}, {vr(QP,2)}, {vr(QP+8,2)}")
    A(f"v_pk_add_f32 {vr(QP+2,2)}, {vr(QP+2,2)}, {vr(QP+10,2)}")
    for j in range(4): A(f"v_and_or_b32 v{QP+j}, v{QP+j}, v17, s{56+j}")
    gstore(QP, 4, 7, "ws", 0, "")
    A("L_v:")
    stamp(2)
    VV = 100
    A("s_setprio 0")
    kvbase("s33")
    A("v_lshlrev_b32 v9, 4, v3")
    A("v_lshlrev_b32 v11, 10, v4")
    A("v_add3_u32 v9, v9, v11, s23       ; V offset")
    A("v_and_b32 v16, 1, v2")
    A("v_lshlrev_b32 v16, 4, v16")
    A("v_mov_b32 v17, 0xffff")
    A("v_lshlrev_b32 v16, v16, v17")
    A("v_bfe_u32 v17, v2, 1, 2")
    for jj in range(4):
        A(f"v_cmp_eq_u32 vcc, {jj}, v17")
        A("s_nop 1")
        A(f"v_cndmask_b32 v{12+jj}, 0, v16, vcc")
    A("v_bfe_u32 v16, v2, 3, 1           ; h")
    A("v_lshlrev_b32 v25, 5, v16")
    A("s_lshl_b32 s27, s33, 3")
    A("v_add_u32 v26, s27, v25")
    A("s_lshl_b32 s27, s33, 11")
    A("v_lshl_add_u32 v27, v2, 4, s27")
    A("s_and_b32 s31, s33, 1"); A("s_lshl_b32 s27, s31, 10")
    A("s_lshr_b32 s29, s33, 1"); A("s_lshl_b32 s29, s29, 9"); A("s_add_u32 s27, s27, s29")
    A("v_lshl_add_u32 v16, v2, 4, s27")
    A("s_lshr_b32 s21, s2, 3             ; r")
    A("s_lshl_b32 s27, s20, 5"); A("s_add_u32 s27, s27, s21"); A("s_lshl2_add_u32 s27, s27, s33"); A("s_lshl_b32 s27, s27, 9")
    A(f"s_add_u32 s27, s27, {WS_O1}")
    A("v_lshl_add_u32 v17, v2, 4, s27")
    A("s_mov_b32 s35, 0x3db8aa3b         ; log2(e)/16")
    A("v_mov_b32 v5, 0")
    A("s_sub_u32 s30, s2, 224")
    A("s_lshl_b32 s29, s33, 8"); A("s_or_b32 s31, s30, s29")
    A("s_cmp_lt_u32 s31, 28")
    A("s_cbranch_scc0 L_noinit")
    A(f"s_lshl_b32 s29, s30, {11 if f64 else 10}"); A(f"s_add_u32 s29, s29, {WS_ACC}")
    A("v_lshl_add_u32 v19, v2, 4, s29")
    for i in range(4): A(f"v_mov_b32 v{28+i}, 0")
    gstore(28, 4, 19, "ws", 0, "sc1")
    if f64: gstore(28, 4, 19, "ws", 1024, "sc1")
    A("L_noinit:")
    A("v_mov_b32 v11, v17")
    A("s_lshl_b32 s27, s20, 5"); A("s_add_u32 s27, s27, s21"); A("s_lshl_b32 s27, s27, 7"); A(f"s_add_u32 s27, s27, {WS_S1}")
    A("v_writelane_b32 v11, s27, 1")
    A("s_mov_b64 exec, 0x01010103")
    pretouch(6, 11)
    A("s_mov_b64 exec, -1")
    A("s_cmp_lt_u32 s31, 28")
    A("s_waitcnt vmcnt(2)")
    A("s_cbranch_scc0 L_noflag")
    A("s_lshl_b32 s29, s30, 2")
    A("v_mov_b32 v19, s29"); A("v_mov_b32 v28, 1")
    A("s_mov_b64 exec, 1")
    gstore(28, 1, 19, "dbg", 0, "sc1")
    A("s_mov_b64 exec, -1")
    A("L_noflag:")
    stamp(1)
    rel = {}
    tot = 0
    for i, (kk, vv) in enumerate(steps):
        rel[tot] = i; tot += vv
    for idx in range(16):
        if idx in rel:
            A("s_barrier                         ; Bk")
            if idx == 0: stamp(3)
        if idx >= max(dv, tot): A(f"s_waitcnt vmcnt({dv-1})")
        elif idx == tot: A(f"s_waitcnt vmcnt({tot-1})")
        U, j = idx >> 2, idx & 3
        gload(VV + 4*idx, 4, 9, "v", j*256, kvflags)
        if j == 3 and U < 3: A("v_add_u32 v9, s25, v9")
    if vland: A("s_waitcnt vmcnt(0)")
    stamp(4)
    A("s_barrier                         ; Bp")
    stamp(5)
    S = 28; TT = 24; ST = 40; VA = 56; ACC = 88
    A(f"ds_read_b32 v{ST+9}, v5 offset:{L_CNT}")
    A(f"ds_read_b128 {vr(ST,4)}, v25 offset:{L_STAT}")
    A(f"ds_read_b128 {vr(ST+4,4)}, v25 offset:{L_STAT+16}")
    A(f"ds_read_b32 v{ST+8}, v26 offset:{L_STAT}")
    A(f"ds_read_b128 {vr(S,4)}, v27 offset:{L_RED}")
    A(f"ds_read_b128 {vr(S+4,4)}, v27 offset:{L_RED+1024}")
    A("s_waitcnt lgkmcnt(2)")
    A(f"v_readfirstlane_b32 s54, v{ST+9}")
    A(f"v_max3_f32 v{TT}, v{ST}, v{ST+2}, v{ST+4}")
    A(f"v_max_f32 v{TT}, v{TT}, v{ST+6}")
    A(f"v_sub_f32 v{TT}, v{ST+8}, v{TT}")
    A(f"v_mul_f32 v{TT}, s35, v{TT}")
    A(f"v_exp_f32 v{TT}, v{TT}")
    A("s_waitcnt lgkmcnt(0)")
    for i in range(8): A(f"v_mul_f32 v{S+i}, v{S+i}, v{TT}")
    for i in range(8): A(f"v_cvt_pk_bf16_f32 v{S+i}, v{S+i}, v{S+i}")
    def amask(t):
        for j in range(4): A(f"v_and_b32 v{VA+4*t+j}, v{S+t}, v{12+j}")
    A("s_lshr_b32 s54, s54, 8")
    amask(0); amask(1)
    stamp(6)
    for i in range(16):
        t, h = i >> 1, i & 1
        if i >= 16 - dv: A(f"s_waitcnt vmcnt({15-i})")
        if 15 - i == wgate: A("s_barrier                         ; Bw")
        mfma(ACC + 4*h, VA + 4*t, VV + 4*i, None if t == 0 else ACC + 4*h)
        if i < 6: amask(i + 2)
    if tsync:
        A("s_add_u32 s44, s42, 1500"); A("s_or_b32 s44, s44, 0x3ff"); A("s_add_u32 s44, s44, 1")
        A("L_tsync:")
        A("s_memrealtime s[40:41]"); A("s_waitcnt lgkmcnt(0)")
        A("s_sub_u32 s45, s40, s44"); A("s_cmp_lt_i32 s45, 0"); A("s_cbranch_scc1 L_tsync")
        note("s44", 13)
    A("s_nop 5")
    A(f"ds_write_b128 v27, {vr(ACC,4)} offset:{L_RED}")
    A("s_nop 0")
    A(f"ds_write_b128 v27, {vr(ACC+4,4)} offset:{L_RED+1024}")
    A("s_waitcnt lgkmcnt(0)")
    stamp(7)
    A("s_barrier")
    A("s_mov_b32 exec_hi, 0")
    R = 40
    for i in range(4): A(f"ds_read_b128 {vr(R+4*i,4)}, v16 offset:{L_RED + 2048*i}")
    A("s_waitcnt lgkmcnt(2)")
    A(f"v_pk_add_f32 {vr(R,2)}, {vr(R,2)}, {vr(R+4,2)}")
    A(f"v_pk_add_f32 {vr(R+2,2)}, {vr(R+2,2)}, {vr(R+6,2)}")
    A("s_waitcnt lgkmcnt(0)")
    A(f"v_pk_add_f32 {vr(R+8,2)}, {vr(R+8,2)}, {vr(R+12,2)}")
    A(f"v_pk_add_f32 {vr(R+10,2)}, {vr(R+10,2)}, {vr(R+14,2)}")
    A(f"v_pk_add_f32 {vr(R,2)}, {vr(R,2)}, {vr(R+8,2)}")
    A(f"v_pk_add_f32 {vr(R+2,2)}, {vr(R+2,2)}, {vr(R+10,2)}")
    for j in range(4): A(f"v_and_or_b32 v{R+j}, v{R+j}, v18, s{36+j}")
    publish(R, 17, (lambda: A("s_barrier                         ; B3b")) if b3b else None)
    stamp(8)
    finish()
    A("L_codeend:")

    nv = 172 if stamps else 164
    A('.section .rodata,"a"'); A(".p2align 6"); A(f".amdhsa_kernel {NAME}")
    A(f"  .amdhsa_next_free_vgpr {nv}"); A(f"  .amdhsa_next_free_sgpr {100 if safe else 68}"); A(f"  .amdhsa_accum_offset {nv}")
    A("  .amdhsa_group_segment_fixed_size 0"); A("  .amdhsa_kernarg_size 64"); A("  .amdhsa_user_sgpr_count 2")
    A("  .amdhsa_user_sgpr_kernarg_segment_ptr 1"); A("  .amdhsa_system_sgpr_workgroup_id_x 1")
    A("  .amdhsa_float_denorm_mode_32 3")
    A(".end_amdhsa_kernel")
    out = []
    for l in L:
        if l.endswith(":") or l.startswith(".") or l.startswith(";") or l.startswith("  ."):
            out.append(l)
        else:
            out.append("    " + l.rstrip())
    return HEADER + "\n".join(out) + "\n"


if __name__ == "__main__":
    kw = {}
    for a in sys.argv[2:]:
        k, v = a.split("=")
        kw[k] = eval(v) if v in ("True", "False") or v.isdigit() else v.replace("+", " ")
    open(sys.argv[1], "w").write(gen(**kw))
```

```python
import sys, os
sys.path.insert(0, os.path.dirname(os.path.abspath(__file__)))
import oprobe

NAME = "standalone__sliding_block_cached__decode_kernel"

HEADER = """; Kernarg layout for this problem (64 bytes, ptrs only, base s[0:1]):
;   offset  24: d_in[3] wq  shape=(448, 4096) dtype=bfloat16
;   offset  32: d_in[4] wo  shape=(4096, 448) dtype=bfloat16
;   offset  56: d_ws      268435456 bytes workspace
"""

WS_E = 0
WS_S1 = 0x8000
WS_Q1 = 0x10000
WS_O1 = 0x50000
WS_ACC = 0xD0000
WS_ST = 0x400000

L_CNT = 0
L_WQ = 1024
L_Q = 40960
L_STAT = 64
L_OX = 42240
L_RED = 16384
L_WO = 24576
L_END = 43520

BUF = dict(x=4, k=6, v=8, wq=10, wo=12, out=14, dbg=16, ws=18)
SIZE = dict(x=3584, k=67108864, v=67108864, wq=3670016, wo=3670016, out=3584, dbg=256, ws=268435456)
SRD = dict(x=68, k=72, v=76, wq=80, wo=84, out=88, ws=92, dbg=96)

SPIN = 100000


def gen(safe=False, stamps=False, only="", pmask=0, pval=0, amp=0, op="", omin=False,
        kvflags="nt", wqflags="nt", woflags="nt", outflags="", dk=6, dv=8, kpre=0,
        nf=64, tsync=False, xf="", vland=False, nowo=False, kprio=0, b3b=True, fakex=False,
        hs="4:8", gq=0, wgate=-1, kinit=16, lrot=0, nopf=False, f64=True, atf="sc0 sc1", noopt=False, noq=False, nowq=False, nox=False, notail=False, osleep=0, opm=1, wo0=0, gq2=-1, hmap=0, cyc="", bs=False, pre=True, tight=True, tgap=0, oxp=True, ogate=4, early=True, searly=False, wsh=True, d12=True, fakeb=False):
    if searly: bs = False
    if not f64: d12 = False
    L = []
    A = L.append
    diag = stamps or op

    def vr(r, n=1):
        return f"v{r}" if n == 1 else f"v[{r}:{r+n-1}]"

    W = {1: "dword", 2: "dwordx2", 3: "dwordx3", 4: "dwordx4"}

    def gload(dst, n, voff, buf, imm=0, fl=""):
        if safe:
            A(f"buffer_load_{W[n]} {vr(dst,n)}, v{voff}, s[{SRD[buf]}:{SRD[buf]+3}], 0 offen offset:{imm} {fl}")
        else:
            A(f"global_load_{W[n]} {vr(dst,n)}, v{voff}, s[{BUF[buf]}:{BUF[buf]+1}] offset:{imm} {fl}")

    def gdma(voff, buf, imm=0, fl=""):
        if nowo and buf == "wo": return
        if nowq and buf == "wq": return
        if safe:
            A(f"buffer_load_dwordx4 v{voff}, s[{SRD[buf]}:{SRD[buf]+3}], 0 offen offset:{imm} {fl} lds")
        else:
            A(f"global_load_lds_dwordx4 v{voff}, s[{BUF[buf]}:{BUF[buf]+1}] offset:{imm} {fl}")

    def gstore(src, n, voff, buf, imm=0, fl=""):
        w = "short" if n == 0 else W[n]
        n = max(n, 1)
        if safe:
            A(f"buffer_store_{w} {vr(src,n)}, v{voff}, s[{SRD[buf]}:{SRD[buf]+3}], 0 offen offset:{imm} {fl}")
        else:
            A(f"global_store_{w} v{voff}, {vr(src,n)}, s[{BUF[buf]}:{BUF[buf]+1}] offset:{imm} {fl}")

    def gatomic(dst, src, voff):
        n = 2 if f64 else 1
        t = "f64" if f64 else "f32"
        if safe:
            for i in range(n): A(f"v_mov_b32 v{dst+i}, v{src+i}")
            A(f"buffer_atomic_add_{t} {vr(dst,n)}, v{voff}, s[{SRD['ws']}:{SRD['ws']+3}], 0 offen {atf}")
        else:
            A(f"global_atomic_add_{t} {vr(dst,n)}, v{voff}, {vr(src,n)}, s[18:19] {atf}")

    def publish(src, voff, between=None):
        uid[0] += 1
        gstore(src, 4, voff, "ws", 0, "")
        if between: between()
        A("s_cmp_eq_u32 s54, 0")
        A(f"s_cbranch_scc1 L_pub{uid[0]}")
        A("s_waitcnt vmcnt(0)")
        gstore(src, 4, voff, "ws", 0, "sc1")
        A(f"L_pub{uid[0]}:")

    def pretouch(dst, addr):
        gload(dst, 1, addr, "ws", 0, "nt"); gload(dst, 1, addr, "ws", 0, "sc1")

    STB = 168
    role = ["k"]
    uid = [0]

    def kernarg_ready():
        A("s_waitcnt lgkmcnt(0)")
        if op: A("s_mov_b32 s46, s42")
        if stamps: A(f"v_writelane_b32 v{STB}, s42, 0")
        if safe:
            for b, s in SRD.items():
                A(f"s_mov_b32 s{s}, s{BUF[b]}"); A(f"s_mov_b32 s{s+1}, s{BUF[b]+1}")
                A(f"s_mov_b32 s{s+2}, {SIZE[b]}"); A(f"s_mov_b32 s{s+3}, 0x20000")

    def stamp(i):
        if op == f"{role[0]}{i}":
            A("s_memrealtime s[42:43]")
            A("s_waitcnt lgkmcnt(0)")
        if stamps and (only == "" or f"{role[0]}{i}" in str(only).split(",")):
            A("s_memrealtime s[40:41]")
            A("s_waitcnt lgkmcnt(0)")
            A(f"v_writelane_b32 v{STB}, s40, {i}")

    def cstamp(name):
        if cyc and name in cyc.split(","):
            k = cyc.split(",").index(name)
            A(f"s_memtime s[{64+2*k}:{65+2*k}]")

    def note(sreg, i):
        if stamps: A(f"v_writelane_b32 v{STB}, {sreg}, {i}")

    def finish():
        if stamps:
            if cyc:
                A("s_waitcnt lgkmcnt(0)"); A("s_sub_u32 s40, s66, s64"); A(f"v_writelane_b32 v{STB}, s40, 20")
            A("s_mov_b64 exec, -1")
            A("s_lshl3_add_u32 s40, s2, s3"); A("s_lshl_b32 s40, s40, 7")
            A(f"s_add_u32 s40, s40, {WS_ST}")
            A(f"v_lshl_add_u32 v{STB+1}, v2, 2, s40")
            A("s_mov_b32 exec_hi, 0")
            gstore(STB, 1, STB + 1, "ws")
        if op:
            uid[0] += 1
            oprobe.emit_record(A, gstore, WS_ST)
            if role[0] == "k": oprobe.emit_report(A, gload, WS_ST, uid[0], amp, pmask, pval, omin)
        A("s_endpgm")

    def mfma(d, a, b, c=None):
        cs = "0" if c is None else vr(c, 4)
        A(f"v_mfma_f32_16x16x32_bf16 {vr(d,4)}, {vr(a,4)}, {vr(b,4)}, {cs}")

    def tags():
        A("s_add_u32 s26, s26, 0x01010101")
        A("s_and_b32 s36, s26, 0xff"); A("s_bfe_u32 s37, s26, 0x80008"); A("s_bfe_u32 s38, s26, 0x80010"); A("s_lshr_b32 s39, s26, 24")

    def xred(reg, tmp, op_):
        for sw in ("v_permlane32_swap_b32", "v_permlane16_swap_b32"):
            A(f"v_mov_b32 v{tmp}, v{reg}")
            A("s_nop 1")
            A(f"{sw} v{reg}, v{tmp}")
            A(f"{op_} v{reg}, v{reg}, v{tmp}")

    def tred(r):
        A(f"v_permlane32_swap_b32 v{r}, v{r+2}")
        A(f"v_permlane32_swap_b32 v{r+1}, v{r+3}")
        A(f"v_add_f32 v{r}, v{r}, v{r+2}")
        A(f"v_add_f32 v{r+1}, v{r+1}, v{r+3}")
        A("s_nop 1")
        A(f"v_permlane16_swap_b32 v{r}, v{r+1}")
        A(f"v_add_f32 v{r}, v{r}, v{r+1}")

    def qtags():
        A("s_getreg_b32 s53, hwreg(HW_REG_XCC_ID, 0, 4)")
        if fakex: A("s_bfe_u32 s53, s2, 0x10005")
        for j in range(4):
            A(f"s_bfe_u32 s{56+j}, s53, {0x10000 + j}"); A(f"s_lshl_b32 s{56+j}, s{56+j}, 8"); A(f"s_or_b32 s{56+j}, s{56+j}, s{36+j}")

    def untag8(g, tt, base=36, sh=24):
        for i in range(8): A(f"v_xor_b32 v{g+i}, s{base + (i & 3)}, v{g+i}")
        A(f"v_or3_b32 v{tt}, v{g}, v{g+1}, v{g+2}")
        A(f"v_or3_b32 v{tt}, v{tt}, v{g+3}, v{g+4}")
        A(f"v_or3_b32 v{tt}, v{tt}, v{g+5}, v{g+6}")
        A(f"v_or_b32 v{tt}, v{tt}, v{g+7}")
        A(f"v_lshlrev_b32 v{tt}, {sh}, v{tt}")
        A(f"v_cmp_ne_u32 vcc, 0, v{tt}")

    def spin_step(addr):
        A("s_sub_u32 s27, s27, 1")

    def kvbase(wreg):
        A("s_lshl3_add_u32 s23, s22, s20")
        A("s_lshl_b32 s23, s23, 21")
        A(f"s_lshl2_add_u32 s25, s24, {wreg}")
        A("s_lshl_b32 s25, s25, 12")
        A("s_add_u32 s23, s23, s25")
        A("s_add_u32 s23, s23, 0x180000")
        A("s_mov_b32 s25, 0x20000")

    A(f"; @launch grid=(256,1,1) block=(512,1,1) lds={L_END}")
    A('.amdgcn_target "amdgcn-amd-amdhsa--gfx950"')
    A(".text"); A(f".globl {NAME}"); A(".p2align 8"); A(f".type {NAME},@function"); A(f"{NAME}:")
    if diag:
        A("s_memrealtime s[42:43]")
    A("s_cmpk_ge_u32 s2, 0x100")
    A("s_cbranch_scc1 L_end")
    A("s_load_dwordx16 s[4:19], s[0:1], 0")
    if lrot: A(f"s_xor_b32 s2, s2, {lrot << 3}")
    if 0 < hmap < 8: A(f"s_xor_b32 s2, s2, {hmap}")
    if hmap == 8:
        A("s_and_b32 s20, s2, 1"); A("s_lshl_b32 s20, s20, 2"); A("s_xor_b32 s2, s2, s20")
    if hmap == 9:
        A("s_and_b32 s20, s2, 2"); A("s_lshl_b32 s20, s20, 1"); A("s_xor_b32 s2, s2, s20")
    A("v_readfirstlane_b32 s3, v0")
    A("v_and_b32 v2, 63, v0              ; lane")
    A("v_and_b32 v3, 15, v0              ; n")
    A("v_bfe_u32 v4, v0, 4, 2            ; g")
    A("v_and_b32 v10, 3, v0")
    A("s_and_b32 s20, s2, 7              ; hkv")
    A("s_lshr_b32 s22, s2, 6")
    A("s_bfe_u32 s24, s2, 0x30003")
    A("s_lshl3_add_u32 s28, s20, s24")
    A("s_lshr_b32 s3, s3, 6              ; wave")
    A("s_cmp_lt_u32 s3, 4")
    A("s_cbranch_scc1 L_k")
    XR = 24
    A("s_getpc_b64 s[30:31]")
    A("L_pc:")
    A("v_lshlrev_b32 v5, 5, v0")
    A("v_subrev_u32 v5, 8192, v5")
    A("v_min_u32 v5, L_codeend-L_pc-4, v5")
    if not nopf: A("global_load_dword v6, v5, s[30:31]")
    A("s_setprio 3")
    A("v_mov_b32 v8, 0")
    A("v_mov_b32 v9, 0")
    A("ds_write2_b64 v8, v[8:9], v[8:9] offset0:0 offset1:1")
    A("s_and_b32 s33, s3, 3              ; u")
    A("s_cmp_eq_u32 s33, 3")
    A("s_cselect_b32 s34, 1, 3")
    A("v_and_b32 v11, s34, v4")
    A("s_mul_i32 s25, s22, 224")
    A("s_lshl_b32 s27, s33, 6")
    A("s_add_u32 s25, s25, s27           ; 2*(kq*112 + 32u)")
    A("v_mul_u32_u24 v5, 896, v10")
    A("v_lshlrev_b32 v7, 4, v11")
    A("v_add3_u32 v5, v5, v7, s25        ; x offset")
    A("s_lshl_b32 s27, s28, 7")
    A("s_lshl_b32 s25, s25, 12")
    A("s_add_u32 s25, s25, s27")
    A("v_lshrrev_b32 v7, 3, v2")
    A("v_lshlrev_b32 v7, 13, v7")
    A("v_and_b32 v8, 7, v2")
    A("v_lshlrev_b32 v9, 4, v8")
    A("v_add3_u32 v7, v7, v9, s25        ; wq offset")
    A("s_lshl_b32 s27, s33, 12")
    A(f"s_add_u32 m0, s27, {L_WQ}")
    A(f"s_mov_b32 s25, {65536-1024}")
    A("s_lshl2_add_u32 s55, s28, s22"); A("s_lshl_b32 s55, s55, 10"); A(f"s_add_u32 s55, s55, {WS_Q1}")
    A("v_lshl_add_u32 v8, v8, 7, s55")
    A("s_cmp_eq_u32 s33, 3")
    kernarg_ready()
    if not nox: gload(XR, 4, 5, "x", 0, xf)
    gdma(7, "wq", 0, wqflags)
    A("v_add_u32 v7, s25, v7")
    gdma(7, "wq", 1024, wqflags)
    A("s_cbranch_scc1 L_u3")
    A("v_add_u32 v7, s25, v7")
    gdma(7, "wq", 2048, wqflags)
    A("v_add_u32 v7, s25, v7")
    gdma(7, "wq", 3072, wqflags)
    A("s_barrier                         ; B0")
    A("s_branch L_qproj")
    A("L_u3:")
    if not noq: pretouch(1, 8)
    A("s_barrier                         ; B0")
    A("s_branch L_qproj")

    A("L_k:")
    VK = 100
    kvbase("s3")
    A("v_lshrrev_b32 v5, 1, v3")
    A("v_lshlrev_b32 v5, 9, v5")
    A("v_and_b32 v7, 1, v2")
    A("v_lshl_add_u32 v6, v7, 2, v4")
    A("v_lshlrev_b32 v6, 4, v6")
    A("v_add3_u32 v97, v5, v6, s23       ; K offset")
    def kconst():
        A("s_lshl_b32 s50, s20, 7"); A("s_load_dword s26, s[18:19], s50")
        if kprio: A(f"s_setprio {kprio}")
        A("s_lshl2_add_u32 s27, s20, s3"); A("s_lshl_b32 s27, s27, 13"); A("s_lshl_b32 s29, s22, 8"); A("s_add_u32 s27, s27, s29")
        A(f"s_add_u32 s27, s27, {WS_Q1}")
        A("v_and_b32 v12, 1, v4"); A("v_lshrrev_b32 v13, 1, v4")
        A("v_lshlrev_b32 v9, 12, v12"); A("v_lshl_add_u32 v9, v13, 11, v9"); A("v_lshlrev_b32 v14, 4, v3")
        A("v_add3_u32 v9, v9, v14, s27")
        A("s_lshr_b32 s27, s3, 1"); A("s_mul_i32 s27, s27, 576"); A("s_and_b32 s29, s3, 1"); A("s_lshl_b32 s29, s29, 8"); A("s_add_u32 s27, s27, s29")
        A("v_lshlrev_b32 v15, 7, v12"); A("v_lshl_add_u32 v15, v13, 2, v15"); A("v_lshlrev_b32 v16, 3, v3")
        A("v_add3_u32 v15, v15, v16, s27")
        A("v_bfe_u32 v6, v2, 3, 1            ; h")
        A("v_mul_u32_u24 v17, 576, v6")
        A("v_and_b32 v7, 4, v2               ; 4*c'")
        A("v_add_u32 v7, v7, v4")
        A("v_lshl_add_u32 v17, v7, 4, v17")
        A("s_lshl_b32 s27, s3, 3")
        A("v_lshl_add_u32 v19, v6, 5, s27")
        A("s_lshl_b32 s27, s3, 11")
        A("v_lshl_add_u32 v36, v2, 4, s27")
        A("s_lshr_b32 s21, s2, 3             ; r")
        A("s_and_b32 s48, s21, 3             ; rg")
        A("s_lshr_b32 s49, s21, 2            ; cj")
        A("s_lshl2_add_u32 s27, s20, s48")
        A("s_lshl2_add_u32 s27, s27, s3")
        A("s_mul_i32 s27, s27, 28672")
        A("s_min_u32 s29, s49, 6"); A("s_lshl_b32 s29, s29, 7"); A("s_add_u32 s27, s27, s29")
        A("v_and_b32 v5, 7, v2"); A("v_lshlrev_b32 v6, 1, v12"); A("v_xor_b32 v5, v5, v6"); A("v_lshlrev_b32 v5, 4, v5")
        A("v_lshrrev_b32 v7, 3, v2"); A("v_mul_u32_u24 v7, 896, v7")
        A("v_xor_b32 v6, 64, v5")
        A("v_add3_u32 v5, v5, v7, s27")
        A(f"s_add_u32 s27, s27, {7168-1024}")
        A("v_add3_u32 v6, v6, v7, s27")
        A(f"v_add_u32 v7, {2*(7168-1024)}, v5")
        A(f"v_add_u32 v8, {2*(7168-1024)}, v6")
        A("s_lshl_b32 s27, s3, 12"); A(f"s_add_u32 m0, s27, {L_WO}")
        A("s_lshl_b32 s32, s20, 5")
        A("s_lshl3_add_u32 s34, s3, s32      ; hkv*32 + w*8")
        A("s_lshl2_add_u32 s27, s34, s48"); A("s_lshl_b32 s27, s27, 9")
        A(f"s_add_u32 s27, s27, {WS_O1}")
        A("v_and_b32 v25, 31, v2"); A("v_lshlrev_b32 v25, 4, v25"); A("v_lshlrev_b32 v26, 13, v13")
        A("v_add3_u32 v25, v25, v26, s27")
        A("v_add_u32 v28, 0x1000, v25")
        A("s_lshl_b32 s27, s34, 7"); A("s_lshr_b32 s29, s48, 1"); A("s_lshl_b32 s29, s29, 4"); A("s_add_u32 s27, s27, s29")
        A(f"s_add_u32 s27, s27, {WS_S1}")
        A("v_lshl_add_u32 v26, v13, 2, v10")
        A("v_lshl_add_u32 v26, v26, 7, s27")
        A("v_bfe_u32 v11, v2, 2, 2")
        A("v_lshrrev_b32 v27, 1, v11"); A("v_lshl_add_u32 v27, v12, 1, v27"); A("v_xor_b32 v27, s3, v27")
        A("v_lshlrev_b32 v27, 5, v27"); A("v_lshl_add_u32 v27, v11, 7, v27")
        A("v_lshl_add_u32 v27, v4, 10, v27"); A("v_lshl_add_u32 v27, v10, 3, v27")
        OXS = 320 if oxp else 256
        A(f"s_mul_i32 s27, s3, {OXS}")
        A("v_lshlrev_b32 v29, 3, v12"); A("v_lshl_add_u32 v29, v13, 2, v29"); A("v_add3_u32 v29, v29, v14, s27")
        A(f"v_mul_u32_u24 v30, {OXS}, v11"); A("v_lshl_add_u32 v30, v4, 4, v30")
        A("s_lshl2_add_u32 s33, s49, s3")
        if d12: A("s_mul_i32 s27, s33, 3072")
        else: A(f"s_lshl_b32 s27, s33, {11 if f64 else 10}")
        A(f"s_add_u32 s27, s27, {WS_ACC}")
        if d12:
            A("v_lshrrev_b32 v31, 3, v2"); A("v_and_b32 v35, 7, v2"); A("v_lshlrev_b32 v31, 8, v31"); A("v_lshlrev_b32 v35, 3, v35")
            A("v_add3_u32 v31, v31, v35, s27")
            A("s_add_u32 s27, s27, 2048"); A("v_lshlrev_b32 v32, 8, v4"); A("v_add3_u32 v32, v32, v35, s27")
            A("s_mov_b32 s60, 0x01800180"); A("s_mov_b32 s61, s60"); A("v_mov_b32 v96, 1.0")
        elif f64:
            A("v_lshrrev_b32 v31, 3, v2"); A("v_and_b32 v35, 7, v2"); A("v_lshlrev_b32 v31, 8, v31"); A("v_lshlrev_b32 v32, 3, v35")
            A("v_add3_u32 v31, v31, v32, s27"); A(f"v_add_u32 v32, {128-24}, v31")
            A("v_cmp_eq_u32 s[60:61], 4, v35"); A("v_cmp_eq_u32 s[62:63], 3, v35")
        else:
            A("v_lshlrev_b32 v31, 8, v4"); A("v_lshlrev_b32 v32, 2, v3")
            A("v_add3_u32 v31, v31, v32, s27"); A(f"v_add_u32 v32, {128-28}, v31")
            A("v_cmp_eq_u32 s[60:61], 8, v3"); A("v_cmp_eq_u32 s[62:63], 7, v3")
        A("s_lshl_b32 s27, s33, 2"); A("v_mov_b32 v35, s27")
        A("s_lshl_b32 s27, s33, 5")
        A("v_mul_u32_u24 v1, 896, v4"); A("v_lshlrev_b32 v33, 1, v3"); A("v_add3_u32 v1, v1, v33, s27")
        A("s_add_u32 s32, s32, s21           ; hkv*32 + r")
        A("s_lshl_b32 s27, s32, 7"); A(f"s_add_u32 s27, s27, {WS_S1}")
        A("v_lshl_add_u32 v33, v2, 4, s27")
        A("v_lshlrev_b32 v34, 5, v2")
        A("v_mov_b32 v37, 0"); A("v_mov_b32 v38, 1")
        A("s_waitcnt lgkmcnt(0)")
        tags()
        qtags()
        A("v_mov_b32 v18, 0xffffff00")
        A("s_mov_b32 s35, 0x3db8aa3b         ; log2(e)/16")
    kernarg_ready()
    for idx in range(16):
        if idx == kpre:
            A("s_barrier                         ; B0")
            stamp(1)
        if idx >= dk: A(f"s_waitcnt vmcnt({dk-1})")
        elif idx == kinit: A(f"s_waitcnt vmcnt({kinit-1})")
        U, j = idx >> 2, idx & 3
        gload(VK + 4*idx, 4, 97, "k", j*128, kvflags)
        if j == 3 and U < 3: A("v_add_u32 v97, s25, v97")
        if idx == dk - 1: kconst()
    stamp(2)
    QG = 40
    steps = [tuple(map(int, x.split(":"))) for x in hs.split(",")]
    for i, (kk, vv) in enumerate(steps):
        A(f"s_waitcnt vmcnt({kk + (2 if i > gq else 0) + (2 if 0 <= gq2 < i else 0)})")
        if i == gq2:
            gload(88, 4, 9, "ws", 0, "sc1"); gload(92, 4, 9, "ws", 1024, "sc1")
        if i == gq and not noq:
            gload(QG, 4, 9, "ws", 0, "sc1"); gload(QG + 4, 4, 9, "ws", 1024, "sc1")
        A("s_barrier")
        if i == 0: stamp(3)
    A(f"s_mov_b32 s27, {SPIN}")
    QS = 20; TT = 24
    if gq2 == len(steps):
        gload(88, 4, 9, "ws", 0, "sc1"); gload(92, 4, 9, "ws", 1024, "sc1")
    A(f"s_waitcnt vmcnt({2 if gq2 >= 0 else 0})")
    A("L_qpoll:")
    untag8(QG, TT, 56, 23)
    if not noq: A("s_cbranch_vccnz L_qrare")
    A("L_qok:")
    note("s27", 12)
    A(f"v_pk_add_f32 {vr(QS,2)}, {vr(QG,2)}, {vr(QG+4,2)}")
    A(f"v_pk_add_f32 {vr(QS+2,2)}, {vr(QG+2,2)}, {vr(QG+6,2)}")
    A("s_nop 1")
    A(f"v_permlane32_swap_b32 v{QS}, v{QS+2}")
    A(f"v_permlane32_swap_b32 v{QS+1}, v{QS+3}")
    A(f"v_pk_add_f32 {vr(QS,2)}, {vr(QS,2)}, {vr(QS+2,2)}")
    A(f"v_cvt_pk_bf16_f32 v{QS}, v{QS}, v{QS+1}")
    A(f"ds_write_b32 v15, v{QS} offset:{L_Q}")
    A("s_mov_b64 exec, 1")
    A(f"ds_add_u32 v37, v38 offset:{L_CNT}")
    stamp(4)
    A("s_mov_b64 exec, -1")
    for i in range(wo0): gdma(5 + i, "wo", 1024*i, woflags)
    A("L_qsync:")
    A(f"ds_read_b32 v39, v37 offset:{L_CNT}")
    A("s_waitcnt lgkmcnt(0)")
    A("v_readfirstlane_b32 s54, v39")
    A("s_bitcmp1_b32 s54, 2")
    A("s_cbranch_scc0 L_qsync")
    A("s_lshr_b32 s54, s54, 8")
    stamp(5)
    VQ = 48; D = 64; S = 80
    for j in range(4):
        A(f"ds_read_b128 {vr(VQ+4*j,4)}, v17 offset:{L_Q + 128*j}")
    for j in range(4):
        A(f"s_waitcnt lgkmcnt({3-j})")
        for U in range(4):
            mfma(D + 4*U, VK + 16*U + 4*j, VQ + 4*j, None if j == 0 else D + 4*U)
    A("s_nop 4")
    for half in range(2):
        for U in range(4):
            for r0 in range(2):
                a, b = D + 4*U + 2*r0, D + 4*U + 2*r0 + 1
                if half == 0: A(f"v_add_f32_dpp v{S+2*U+r0}, v{b}, v{a} row_shl:4 row_mask:0xf bank_mask:0x5")
                else: A(f"v_add_f32_dpp v{S+2*U+r0}, v{a}, v{b} row_shr:4 row_mask:0xf bank_mask:0xa")
    T0 = 48
    for i in range(4):
        A(f"v_cvt_pk_bf16_f32 v{T0+i}, v{S+2*i}, v{S+2*i+1}")
    for i in range(4):
        A(f"v_lshlrev_b32 v{S+2*i}, 16, v{T0+i}")
        A(f"v_and_b32 v{S+2*i+1}, 0xffff0000, v{T0+i}")
    M = 22; Lr = 23
    A(f"v_max3_f32 v{M}, v{S}, v{S+1}, v{S+2}")
    A(f"v_max3_f32 v{M}, v{M}, v{S+3}, v{S+4}")
    A(f"v_max3_f32 v{M}, v{M}, v{S+5}, v{S+6}")
    A(f"v_max_f32 v{M}, v{M}, v{S+7}")
    xred(M, TT, "v_max_f32")
    for i in range(8): A(f"v_sub_f32 v{S+i}, v{S+i}, v{M}")
    for i in range(8): A(f"v_mul_f32 v{S+i}, s35, v{S+i}")
    for i in range(8): A(f"v_exp_f32 v{S+i}, v{S+i}")
    A(f"v_add_f32 v{Lr}, v{S}, v{S+1}")
    A(f"ds_write_b128 v36, {vr(S,4)} offset:{L_RED}")
    A(f"ds_write_b128 v36, {vr(S+4,4)} offset:{L_RED+1024}")
    for i in range(2, 8): A(f"v_add_f32 v{Lr}, v{Lr}, v{S+i}")
    xred(Lr, TT, "v_add_f32")
    A(f"ds_write_b64 v19, {vr(M,2)} offset:{L_STAT}")
    A("v_mov_b32 v38, 1")
    A("s_mov_b64 exec, 1")
    A(f"ds_add_rtn_u32 v38, v37, v38 offset:{L_CNT+8}")
    A("s_waitcnt lgkmcnt(0)")
    A("v_readfirstlane_b32 s27, v38")
    A("s_cmp_eq_u32 s27, 3")
    A("s_cbranch_scc0 L_nostat")
    A("s_mov_b64 exec, 3")
    SB = 48
    A(f"ds_read_b128 {vr(SB,4)}, v34 offset:{L_STAT}")
    A(f"ds_read_b128 {vr(SB+4,4)}, v34 offset:{L_STAT+16}")
    A(f"v_mov_b32 v{SB+10}, s26"); A(f"v_mov_b32 v{SB+11}, s26")
    A("s_waitcnt lgkmcnt(0)")
    A(f"v_max3_f32 v{SB+8}, v{SB}, v{SB+2}, v{SB+4}")
    A(f"v_max_f32 v{SB+8}, v{SB+8}, v{SB+6}")
    for i in range(4): A(f"v_sub_f32 v{SB+2*i}, v{SB+2*i}, v{SB+8}")
    for i in range(4): A(f"v_mul_f32 v{SB+2*i}, s35, v{SB+2*i}")
    for i in range(4): A(f"v_exp_f32 v{SB+2*i}, v{SB+2*i}")
    A(f"v_mul_f32 v{SB+9}, v{SB}, v{SB+1}")
    for i in range(1, 4): A(f"v_fmac_f32 v{SB+9}, v{SB+2*i}, v{SB+1+2*i}")
    publish(SB+8, 33)
    if searly:
        A("s_mov_b64 exec, 1")
        A("v_mov_b32 v38, 4")
        A(f"ds_add_u32 v37, v38 offset:{L_CNT+8}")
    A("L_nostat:")
    A("s_mov_b64 exec, -1")
    GS = 64
    if searly:
        A("L_ssync:")
        A(f"ds_read_b32 v39, v37 offset:{L_CNT+8}")
        A("s_waitcnt lgkmcnt(0)")
        A("v_cmp_gt_u32 vcc, 8, v39")
        A("s_cbranch_vccnz L_ssync")
        gload(GS, 3, 26, "ws", 0, "sc1"); gload(GS+3, 1, 35, "dbg", 0, "sc1")
    stamp(6)
    A(f"s_cmp_ge_u32 s21, {0 if notail else 28}")
    A("s_barrier")
    A("s_cbranch_scc1 L_kend")
    stamp(7)
    GS = 64; GO = 72; WT = 88; OS = 92; MS = 52
    if not searly: gload(GS, 3, 26, "ws", 0, "sc1"); gload(GS+3, 1, 35, "dbg", 0, "sc1")
    if bs: A("s_barrier")
    if wgate >= 0: A("s_barrier                         ; Bw")
    for i in range(wo0, 4): gdma(5 + i, "wo", 1024*i, woflags)
    A(f"s_mov_b32 s27, {SPIN}")
    if not searly and not fakeb:
        A("s_barrier                         ; B3")
        cstamp("kb3")
    def oload(j, dst=None): gload(GO + 4*j if dst is None else dst, 4, 28 if j & 2 else 25, "ws", 2048*(j & 1), "sc1")
    def ofirst():
        if b3b: A("s_barrier                         ; B3b: this workgroup's O record is on its way")
        if ogate >= 0: A(f"s_waitcnt vmcnt({ogate})")
        cstamp("oiss")
        for j in range(4): oload(j)
    if ogate < 0: ofirst()
    A(f"s_waitcnt vmcnt({(4 if ogate < 0 else 0) + (0 if nowo else 4 - wo0)})")
    A("L_spoll:")
    A(f"v_cmp_ne_u32 vcc, s26, v{GS+2}")
    A(f"v_cmp_eq_u32 s[30:31], 0, v{GS+3}")
    A("s_or_b64 vcc, vcc, s[30:31]")
    A("s_cbranch_scc1 L_sagain")
    A("L_sok:")
    if wsh: ofirst()
    stamp(8)
    def red8(dst, src, op_):
        A(f"{op_}_dpp v{dst}, v{src}, v{src} quad_perm:[1,0,3,2] row_mask:0xf bank_mask:0xf")
        A("s_nop 1")
        A(f"{op_}_dpp v{dst}, v{dst}, v{dst} quad_perm:[2,3,0,1] row_mask:0xf bank_mask:0xf")
        A(f"v_mov_b32 v{TT}, v{dst}")
        A("s_nop 1")
        A(f"v_permlane32_swap_b32 v{dst}, v{TT}")
        A(f"{op_} v{dst}, v{dst}, v{TT}")
    red8(M, GS, "v_max_f32")
    A(f"v_sub_f32 v{GS}, v{GS}, v{M}")
    A(f"v_mul_f32 v{GS}, s35, v{GS}")
    A(f"v_exp_f32 v{GS}, v{GS}")
    if searly: A(f"s_cmp_eq_u32 s27, {SPIN}")
    A(f"s_mov_b32 s27, {SPIN}")
    A(f"v_mul_f32 v{GS+1}, v{GS}, v{GS+1}")
    A("s_nop 1")
    red8(Lr, GS+1, "v_add_f32")
    A(f"v_rcp_f32 v{Lr}, v{Lr}")
    A("s_nop 0")
    for j in range(4): A(f"v_mul_f32_dpp v{WT+j}, v{GS}, v{Lr} quad_perm:[{j},{j},{j},{j}] row_mask:0xf bank_mask:0xf")
    if searly:
        A("s_cbranch_scc0 L_b3done")
        A("s_barrier                         ; B3")
        cstamp("kb3")
        A("L_b3done:")
    if ogate >= 0 and not wsh: ofirst()
    OB = 100; WA = 116; D = 132; AT = 136; SA = 148; SB2 = 152
    def woread(s):
        for e in range(2):
            A(f"ds_read_b64_tr_b16 {vr(WA + 4*s + 2*e, 2)}, v27 offset:{L_WO + s*4096 + e*512}")
    if pre:
        A("s_waitcnt vmcnt(4)")
        A("s_barrier                         ; Bt: wo in LDS")
        for s in range(4): woread(s)
    def ocheck(j, dst, src=None):
        g = GO + 4*j
        for i in range(4): A(f"v_xor_b32 v{g+i}, s{36+i}, v{(g if src is None else src)+i}")
        A(f"v_or3_b32 v{TT}, v{g}, v{g+1}, v{g+2}")
        A(f"v_or_b32 v{TT}, v{TT}, v{g+3}")
        A(f"v_cmp_ne_u32_sdwa {dst}, v{TT}, v37 src0_sel:BYTE_0 src1_sel:DWORD")
    for j in range(4):
        A(f"s_waitcnt vmcnt({3-j})")
        ocheck(j, f"s[{MS+2*j}:{MS+1+2*j}]")
    stamp(16)
    A("L_otest:")
    A(f"s_or_b64 s[30:31], s[{MS}:{MS+1}], s[{MS+2}:{MS+3}]")
    A(f"s_or_b64 s[32:33], s[{MS+4}:{MS+5}], s[{MS+6}:{MS+7}]")
    A("s_or_b64 vcc, s[32:33], s[30:31]")
    A("s_cbranch_scc1 L_oagain")
    A("L_ogot:")
    A("s_mov_b64 exec, -1")
    cstamp("ogot")
    for j in range(4):
        g = GO + 4*j
        sel = f"op_sel:[0,{j&1},0] op_sel_hi:[1,{j&1},1]"
        for hh in range(2):
            if j == 0: A(f"v_pk_mul_f32 {vr(OS+2*hh,2)}, {vr(g+2*hh,2)}, {vr(WT,2)} op_sel_hi:[1,0]")
            else: A(f"v_pk_fma_f32 {vr(OS+2*hh,2)}, {vr(g+2*hh,2)}, {vr(WT+(j&2),2)}, {vr(OS+2*hh,2)} {sel}")
    note("s27", 14)
    stamp(9)
    A("s_nop 1")
    A(f"v_permlane32_swap_b32 v{OS}, v{OS+2}")
    A(f"v_permlane32_swap_b32 v{OS+1}, v{OS+3}")
    A(f"v_pk_add_f32 {vr(OS,2)}, {vr(OS,2)}, {vr(OS+2,2)}")
    A(f"v_cvt_pk_bf16_f32 v{OS}, v{OS}, v{OS+1}")
    A(f"ds_write_b32 v29, v{OS} offset:{L_OX}")
    A("s_waitcnt lgkmcnt(0)")
    cstamp("b4a")
    A("s_barrier                         ; B4: o and wo in LDS")
    cstamp("b4")
    for s in range(4):
        A(f"ds_read_b128 {vr(OB+4*s,4)}, v30 offset:{L_OX + 64*s}")
        if not pre: woread(s)
    for s in range(4):
        A(f"s_waitcnt lgkmcnt({(3-s) if pre else (9-3*s)})")
        mfma(D, OB + 4*s, WA + 4*s, None if s == 0 else D)
    if d12:
        A("s_mov_b32 vcc_lo, 0x00200020"); A("s_mov_b32 vcc_hi, 0x00200020")
        A("s_nop 5")
        A(f"v_cndmask_b32 v{AT}, v{D}, 1.0, s[60:61]")
        A(f"v_cndmask_b32_dpp v{AT+2}, v{D}, v96, vcc row_shl:1 row_mask:0xf bank_mask:0xf")
        A(f"v_cvt_f64_f32 {vr(AT,2)}, v{AT}")
        cstamp("at0")
        gatomic(AT+4, AT, 31)
        A(f"v_cvt_f64_f32 {vr(AT+2,2)}, v{AT+2}")
        A("s_mov_b32 exec_lo, 0x00e000e0"); A("s_mov_b32 exec_hi, 0x00e000e0")
        gatomic(AT+6, AT+2, 32)
        A("s_not_b64 vcc, s[60:61]")
    else:
        m0_, m1_ = (0x1f1f1f1f, 0xf8f8f8f8) if f64 else (0x01ff01ff, 0xff80ff80)
        A(f"s_mov_b32 exec_lo, {m0_}"); A(f"s_mov_b32 exec_hi, {m0_}")
        A("s_nop 5")
        A(f"v_cndmask_b32 v{AT}, v{D}, 1.0, s[60:61]")
        if f64: A(f"v_cvt_f64_f32 {vr(AT,2)}, v{AT}")
        cstamp("at0")
        gatomic(AT+4, AT, 31)
        A(f"s_mov_b32 exec_lo, {m1_}"); A(f"s_mov_b32 exec_hi, {m1_}")
        A(f"v_cndmask_b32 v{AT+2}, v{D}, 1.0, s[62:63]")
        if f64: A(f"v_cvt_f64_f32 {vr(AT+2,2)}, v{AT+2}")
        gatomic(AT+6, AT+2, 32)
    A("s_or_b32 s27, s21, s3")
    A("s_cbranch_scc0 L_epoch")
    A("L_epoch_done:")
    A("s_mov_b64 exec, -1")
    stamp(10)
    if d12:
        A("s_waitcnt vmcnt(1)")
        A(f"v_add_f64 {vr(AT,2)}, {vr(AT,2)}, {vr(AT+4,2)}")
        A(f"v_cvt_f32_f64 v{AT}, {vr(AT,2)}")
        A("s_waitcnt vmcnt(0)")
        A(f"v_add_f64 {vr(AT+2,2)}, {vr(AT+2,2)}, {vr(AT+6,2)}")
        A(f"v_mov_b32_dpp v{TT}, v{AT} row_newbcast:7 row_mask:0xf bank_mask:0x3")
        A(f"v_cvt_f32_f64 v{AT+2}, {vr(AT+2,2)}")
        A("s_nop 0")
        A(f"v_mov_b32_dpp v{TT}, v{AT} row_newbcast:8 row_mask:0xf bank_mask:0xc")
        A(f"v_cndmask_b32_dpp v{AT}, v{AT+2}, v{AT}, vcc row_shr:1 row_mask:0xf bank_mask:0xf")
        A(f"v_cvt_pk_bf16_f32 v{AT}, v{AT}, v{AT}")
        A(f"v_cndmask_b32_dpp v{TT}, v{AT+2}, v{TT}, vcc row_newbcast:5 row_mask:0xf bank_mask:0xf")
        A(f"v_cmp_eq_f32 vcc, 0x42000000, v{TT}")
    elif f64:
        A("s_waitcnt vmcnt(1)")
        A(f"v_add_f64 {vr(AT,2)}, {vr(AT,2)}, {vr(AT+4,2)}")
        A(f"v_cvt_f32_f64 v{AT}, {vr(AT,2)}")
        A("s_waitcnt vmcnt(0)")
        A(f"v_add_f64 {vr(AT+2,2)}, {vr(AT+2,2)}, {vr(AT+6,2)}")
        A(f"v_cvt_f32_f64 v{AT+2}, {vr(AT+2,2)}")
        A("s_nop 1")
        A(f"v_mov_b32_dpp v{TT}, v{AT} row_newbcast:4 row_mask:0xf bank_mask:0x1")
        A(f"v_mov_b32_dpp v{TT}, v{AT} row_newbcast:12 row_mask:0xf bank_mask:0x4")
        A(f"v_mov_b32_dpp v{TT}, v{AT+2} row_newbcast:3 row_mask:0xf bank_mask:0x2")
        A(f"v_mov_b32_dpp v{TT}, v{AT+2} row_newbcast:11 row_mask:0xf bank_mask:0x8")
        A(f"v_mov_b32_dpp v{AT}, v{AT+2} quad_perm:[0,1,2,3] row_mask:0xf bank_mask:0xa")
        A(f"v_cmp_eq_f32 vcc, 0x42000000, v{TT}")
    else:
        A("s_waitcnt vmcnt(1)")
        A(f"v_mov_b32_dpp v{TT}, v{AT+4} row_newbcast:8 row_mask:0xf bank_mask:0x3")
        A(f"v_add_f32 v{AT}, v{AT+4}, v{D}")
        A("s_waitcnt vmcnt(0)")
        A(f"v_mov_b32_dpp v{TT}, v{AT+6} row_newbcast:7 row_mask:0xf bank_mask:0xc")
        A(f"v_add_f32_dpp v{AT}, v{AT+6}, v{D} quad_perm:[0,1,2,3] row_mask:0xf bank_mask:0xc")
        A(f"v_cmp_eq_f32 vcc, 0x41f80000, v{TT}")
    if not d12: A(f"v_cvt_pk_bf16_f32 v{AT}, v{AT}, v{AT}")
    cstamp("atret")
    stamp(11)
    A("s_and_b64 exec, exec, vcc")
    A("s_cbranch_scc0 L_kend")
    gstore(AT, 0, 1, "out", 0, outflags)
    if stamps or op == "k15":
        A("s_waitcnt vmcnt(0)")
    A("L_kend:")
    stamp(15)
    if diag: finish()
    A("L_end:")
    A("s_endpgm")

    A("L_epoch:")
    A("s_mov_b64 exec, 1")
    A("v_mov_b32 v20, s26"); A("v_mov_b32 v21, s50")
    gstore(20, 1, 21, "ws", WS_E, "")
    A("s_waitcnt vmcnt(1)")
    A("s_branch L_epoch_done")
    A("L_oagain:")
    A("s_sub_u32 s27, s27, 1")
    A("s_cbranch_scc1 L_ogot")
    cstamp("oag")
    if tight:
        A("s_cmp_eq_u64 s[30:31], 0")
        A("s_cbranch_scc1 L_ohi")
        A("s_cmp_eq_u64 s[32:33], 0")
        A("s_cbranch_scc0 L_oall")
        A(f"s_cmp_eq_u64 s[{MS}:{MS+1}], 0"); A("s_cbranch_scc1 L_tight1")
        A(f"s_cmp_eq_u64 s[{MS+2}:{MS+3}], 0"); A("s_cbranch_scc1 L_tight0")
        A("s_branch L_oall")
        A("L_ohi:")
        A(f"s_cmp_eq_u64 s[{MS+4}:{MS+5}], 0"); A("s_cbranch_scc1 L_tight3")
        A(f"s_cmp_eq_u64 s[{MS+6}:{MS+7}], 0"); A("s_cbranch_scc1 L_tight2")
        A("L_oall:")
    for j in range(4):
        A(f"s_mov_b64 exec, s[{MS+2*j}:{MS+1+2*j}]")
        A(f"s_cbranch_execz L_oskipa{j}")
        oload(j)
        A(f"L_oskipa{j}:")
    A("s_waitcnt vmcnt(0)")
    for j in range(4):
        A(f"s_mov_b64 exec, s[{MS+2*j}:{MS+1+2*j}]")
        A(f"s_cbranch_execz L_oskipb{j}")
        ocheck(j, f"s[{MS+2*j}:{MS+1+2*j}]")
        A(f"L_oskipb{j}:")
    A("s_branch L_otest")
    if tight:
        for j in range(4):
            A(f"L_tight{j}:")
            A(f"s_mov_b64 exec, s[{MS+2*j}:{MS+1+2*j}]")
            oload(j, SA)
            if tgap: A(f"s_sleep {tgap}")
            A(f"L_tloop{j}:")
            oload(j, SB2)
            A("s_waitcnt vmcnt(1)")
            ocheck(j, "vcc", SA)
            A("s_cbranch_vccz L_ogot")
            oload(j, SA)
            A("s_sub_u32 s27, s27, 1")
            A("s_waitcnt vmcnt(1)")
            ocheck(j, "vcc", SB2)
            A("s_cbranch_vccz L_ogot")
            A(f"s_cbranch_scc0 L_tloop{j}")
            A("s_branch L_ogot")
    A("L_sagain:")
    A("s_sub_u32 s27, s27, 1")
    A("s_cbranch_scc1 L_sok")
    gload(GS, 3, 26, "ws", 0, "sc1"); gload(GS+3, 1, 35, "dbg", 0, "sc1")
    if searly:
        A(f"s_cmp_eq_u32 s27, {SPIN - 1}")
        A("s_cbranch_scc0 L_sagain2")
        A("s_barrier                         ; B3")
        A("L_sagain2:")
    A("s_waitcnt vmcnt(0)")
    A("s_branch L_spoll")

    A("L_qrare:")
    A(f"v_lshlrev_b32 v{TT}, 1, v{TT}")
    A(f"v_cmp_ne_u32 vcc, 0, v{TT}")
    A("s_cbranch_vccz L_qflush")
    A(f"s_cmp_eq_u32 s27, {SPIN - nf}")
    A("s_cbranch_scc1 L_qflush")
    A("L_qagain:")
    A("s_sub_u32 s27, s27, 1")
    A("s_cbranch_scc1 L_qok")
    if gq2 >= 0:
        A(f"s_cmp_eq_u32 s27, {SPIN - 1}")
        A("s_cbranch_scc0 L_qload")
        A("s_waitcnt vmcnt(0)")
        for i in range(8): A(f"v_mov_b32 v{QG+i}, v{88+i}")
        A("s_branch L_qpoll")
        A("L_qload:")
    gload(QG, 4, 9, "ws", 0, "sc1"); gload(QG + 4, 4, 9, "ws", 1024, "sc1")
    A("s_waitcnt vmcnt(0)")
    A("s_branch L_qpoll")
    A("L_qflush:")
    A("s_lshl2_add_u32 s29, s28, s22"); A("s_lshl_b32 s29, s29, 10"); A(f"s_add_u32 s29, s29, {WS_Q1}")
    A("v_lshl_add_u32 v39, v2, 4, s29")
    gload(48, 4, 39, "ws", 0, "sc1")
    A("s_waitcnt vmcnt(0)")
    gstore(48, 4, 39, "ws", 0, "sc1")
    A("s_cbranch_vccnz L_qagain")
    for i in range(8): A(f"v_and_b32 v{QG+i}, 0xfffffe00, v{QG+i}")
    A("v_mov_b32 v38, 0x101")
    A("s_branch L_qok")

    role[0] = "v"
    def acc_init():
        A("s_sub_u32 s52, s2, 224")
        A(f"s_xor_b32 s29, s33, {3 if early else 0}"); A("s_lshl_b32 s29, s29, 8"); A("s_or_b32 s51, s52, s29")
        A("s_cmp_lt_u32 s51, 28")
        A("s_cbranch_scc0 L_noinit")
        for i in range(4): A(f"v_mov_b32 v{28+i}, 0")
        if d12:
            A("s_mul_i32 s29, s52, 3072"); A(f"s_add_u32 s29, s29, {WS_ACC}")
            A("v_lshrrev_b32 v19, 2, v2"); A("v_lshlrev_b32 v19, 8, v19"); A("v_lshlrev_b32 v12, 4, v10")
            A("v_add3_u32 v19, v19, v12, s29")
            A("s_mov_b32 exec_hi, 0xffff")
            gstore(28, 4, 19, "ws", 0, "sc1")
            A("s_mov_b32 exec_hi, -1")
        else:
            A(f"s_lshl_b32 s29, s52, {11 if f64 else 10}"); A(f"s_add_u32 s29, s29, {WS_ACC}")
            A("v_lshl_add_u32 v19, v2, 4, s29")
            gstore(28, 4, 19, "ws", 0, "sc1")
            if f64: gstore(28, 4, 19, "ws", 1024, "sc1")
        A("L_noinit:")
    A("L_qproj:")
    if early: acc_init()
    A("s_lshl_b32 s50, s20, 7"); A("s_load_dword s26, s[18:19], s50")
    A("v_bfe_u32 v12, v2, 2, 2           ; n>>2")
    A("v_lshlrev_b32 v5, 7, v12")
    A("v_lshl_add_u32 v5, v10, 3, v5")
    A("v_lshl_add_u32 v5, v11, 10, v5")
    A("v_add_u32 v5, m0, v5")
    A("v_lshlrev_b32 v7, 8, v10"); A("v_lshl_add_u32 v7, v12, 6, v7"); A("v_lshlrev_b32 v8, 4, v4")
    A("v_add3_u32 v7, v7, v8, s55")
    A("v_sub_u32 v8, v4, v11")
    A("v_lshl_add_u32 v12, v8, 2, v12")
    for t in range(4): A(f"v_cmp_eq_u32 s[{60+2*t}:{61+2*t}], {t}, v12")
    A("s_lshl_b32 s27, s33, 10")
    A("v_lshlrev_b32 v13, 4, v2")
    A("v_add_u32 v14, s27, v13")
    A("v_mov_b32 v15, 0"); A("v_mov_b32 v16, 1")
    A("v_mov_b32 v17, 0xfffffe00")
    A("v_mov_b32 v18, 0xffffff00")
    XM = 40; WA = 56; QD = 20; QP = 72
    A("s_waitcnt vmcnt(4)")
    for t in range(4):
        for i in range(4): A(f"v_cndmask_b32 v{XM+4*t+i}, 0, v{XR+i}, s[{60+2*t}:{61+2*t}]")
    A("s_waitcnt lgkmcnt(0)")
    tags()
    qtags()
    if early:
        A("s_cmp_eq_u32 s33, 3")
        A("s_waitcnt vmcnt(2)")
        A("s_cbranch_scc1 L_wqin")
        A("s_waitcnt vmcnt(0)")
        A("L_wqin:")
    else:
        A("s_waitcnt vmcnt(0)")
    for t in range(4):
        for e in range(2):
            A(f"ds_read_b64_tr_b16 {vr(WA+4*t+2*e,2)}, v5 offset:{512*e + 32*t}")
    for t in range(4):
        A(f"s_waitcnt lgkmcnt({6-2*t})")
        mfma(QD, WA + 4*t, XM + 4*t, None if t == 0 else QD)
    A("s_nop 7")
    A(f"ds_write_b128 v14, {vr(QD,4)} offset:{L_RED}")
    A("s_mov_b64 exec, 1")
    A(f"ds_add_rtn_u32 v16, v15, v16 offset:{L_CNT+4}")
    A("s_mov_b64 exec, -1")
    A("s_waitcnt lgkmcnt(0)")
    A("v_readfirstlane_b32 s27, v16")
    A("s_cmp_eq_u32 s27, 3")
    A("s_cbranch_scc0 L_v")
    for u in range(4): A(f"ds_read_b128 {vr(QP+4*u,4)}, v13 offset:{L_RED + 1024*u}")
    A("s_waitcnt lgkmcnt(2)")
    A(f"v_pk_add_f32 {vr(QP,2)}, {vr(QP,2)}, {vr(QP+4,2)}")
    A(f"v_pk_add_f32 {vr(QP+2,2)}, {vr(QP+2,2)}, {vr(QP+6,2)}")
    A("s_waitcnt lgkmcnt(0)")
    A(f"v_pk_add_f32 {vr(QP+8,2)}, {vr(QP+8,2)}, {vr(QP+12,2)}")
    A(f"v_pk_add_f32 {vr(QP+10,2)}, {vr(QP+10,2)}, {vr(QP+14,2)}")
    A(f"v_pk_add_f32 {vr(QP,2)}, {vr(QP,2)}, {vr(QP+8,2)}")
    A(f"v_pk_add_f32 {vr(QP+2,2)}, {vr(QP+2,2)}, {vr(QP+10,2)}")
    for j in range(4): A(f"v_and_or_b32 v{QP+j}, v{QP+j}, v17, s{56+j}")
    if not noq: gstore(QP, 4, 7, "ws", 0, "")
    A("L_v:")
    stamp(2)
    VV = 100
    A("s_setprio 0")
    kvbase("s33")
    A("v_lshlrev_b32 v9, 4, v3")
    A("v_lshlrev_b32 v11, 10, v4")
    A("v_add3_u32 v9, v9, v11, s23       ; V offset")
    A("v_and_b32 v16, 1, v2")
    A("v_lshlrev_b32 v16, 4, v16")
    A("v_mov_b32 v17, 0xffff")
    A("v_lshlrev_b32 v16, v16, v17")
    A("v_bfe_u32 v17, v2, 1, 2")
    for jj in range(4):
        A(f"v_cmp_eq_u32 vcc, {jj}, v17")
        A("s_nop 1")
        A(f"v_cndmask_b32 v{12+jj}, 0, v16, vcc")
    A("v_bfe_u32 v16, v2, 3, 1           ; h")
    A("v_lshlrev_b32 v25, 5, v16")
    A("s_lshl_b32 s27, s33, 3")
    A("v_add_u32 v26, s27, v25")
    A("s_lshl_b32 s27, s33, 11")
    A("v_lshl_add_u32 v27, v2, 4, s27")
    A("s_and_b32 s31, s33, 1"); A("s_lshl_b32 s27, s31, 10")
    A("s_lshr_b32 s29, s33, 1"); A("s_lshl_b32 s29, s29, 9"); A("s_add_u32 s27, s27, s29")
    A("v_lshl_add_u32 v16, v2, 4, s27")
    A("s_lshr_b32 s21, s2, 3             ; r")
    A("s_lshl_b32 s27, s20, 5"); A("s_add_u32 s27, s27, s21"); A("s_lshl2_add_u32 s27, s27, s33"); A("s_lshl_b32 s27, s27, 9")
    A(f"s_add_u32 s27, s27, {WS_O1}")
    A("v_lshl_add_u32 v17, v2, 4, s27")
    A("s_mov_b32 s35, 0x3db8aa3b         ; log2(e)/16")
    A("v_mov_b32 v5, 0")
    if not early: acc_init()
    A("s_cmp_lt_u32 s51, 28")
    A("s_waitcnt vmcnt(0)")
    A("s_cbranch_scc0 L_noflag")
    A("s_lshl_b32 s29, s52, 2")
    A("v_mov_b32 v19, s29"); A("v_mov_b32 v28, 1")
    A("s_mov_b64 exec, 1")
    gstore(28, 1, 19, "dbg", 0, "sc1")
    A("s_mov_b64 exec, -1")
    A("L_noflag:")
    A("v_mov_b32 v11, v17")
    A("s_lshl_b32 s27, s20, 5"); A("s_add_u32 s27, s27, s21"); A("s_lshl_b32 s27, s27, 7"); A(f"s_add_u32 s27, s27, {WS_S1}")
    A("v_writelane_b32 v11, s27, 1")
    A("s_mov_b64 exec, 0x01010103")
    if not noopt: pretouch(6, 11)
    A("s_mov_b64 exec, -1")
    stamp(1)
    rel = {}
    tot = 0
    for i, (kk, vv) in enumerate(steps):
        rel[tot] = i; tot += vv
    for idx in range(16):
        if idx in rel:
            A("s_barrier                         ; Bk")
            if idx == 0: stamp(3)
        if idx >= max(dv, tot): A(f"s_waitcnt vmcnt({dv-1})")
        elif idx == tot: A(f"s_waitcnt vmcnt({tot-1})")
        U, j = idx >> 2, idx & 3
        gload(VV + 4*idx, 4, 9, "v", j*256, kvflags)
        if j == 3 and U < 3: A("v_add_u32 v9, s25, v9")
    if vland: A("s_waitcnt vmcnt(0)")
    stamp(4)
    A("s_barrier                         ; Bp")
    stamp(5)
    S = 28; TT = 24; ST = 40; VA = 56; ACC = 88
    A(f"ds_read_b32 v{ST+9}, v5 offset:{L_CNT}")
    A(f"ds_read_b128 {vr(ST,4)}, v25 offset:{L_STAT}")
    A(f"ds_read_b128 {vr(ST+4,4)}, v25 offset:{L_STAT+16}")
    A(f"ds_read_b32 v{ST+8}, v26 offset:{L_STAT}")
    A(f"ds_read_b128 {vr(S,4)}, v27 offset:{L_RED}")
    A(f"ds_read_b128 {vr(S+4,4)}, v27 offset:{L_RED+1024}")
    if bs: A("s_barrier                         ; Bs")
    A("s_waitcnt lgkmcnt(2)")
    A(f"v_readfirstlane_b32 s54, v{ST+9}")
    A(f"v_max3_f32 v{TT}, v{ST}, v{ST+2}, v{ST+4}")
    A(f"v_max_f32 v{TT}, v{TT}, v{ST+6}")
    A(f"v_sub_f32 v{TT}, v{ST+8}, v{TT}")
    A(f"v_mul_f32 v{TT}, s35, v{TT}")
    A(f"v_exp_f32 v{TT}, v{TT}")
    A("s_waitcnt lgkmcnt(0)")
    for i in range(8): A(f"v_mul_f32 v{S+i}, v{S+i}, v{TT}")
    for i in range(8): A(f"v_cvt_pk_bf16_f32 v{S+i}, v{S+i}, v{S+i}")
    def amask(t):
        for j in range(4): A(f"v_and_b32 v{VA+4*t+j}, v{S+t}, v{12+j}")
    A("s_lshr_b32 s54, s54, 8")
    amask(0); amask(1)
    stamp(6)
    for i in range(16):
        t, h = i >> 1, i & 1
        if i >= 16 - dv: A(f"s_waitcnt vmcnt({15-i})")
        if 15 - i == wgate: A("s_barrier                         ; Bw")
        if i == 15: cstamp("vland")
        mfma(ACC + 4*h, VA + 4*t, VV + 4*i, None if t == 0 else ACC + 4*h)
        if i < 6: amask(i + 2)
    if tsync:
        A("s_add_u32 s44, s42, 1500"); A("s_or_b32 s44, s44, 0x3ff"); A("s_add_u32 s44, s44, 1")
        A("L_tsync:")
        A("s_memrealtime s[40:41]"); A("s_waitcnt lgkmcnt(0)")
        A("s_sub_u32 s45, s40, s44"); A("s_cmp_lt_i32 s45, 0"); A("s_cbranch_scc1 L_tsync")
        note("s44", 13)
    if fakeb:
        R = 40
        mfma(ACC, VA, VV, ACC)
        A("s_nop 7")
        for i in range(8): A(f"v_add_f32 v{R+(i&3)}, v{ACC+i}, v{ACC+i}")
        A("s_mov_b32 exec_hi, 0")
    else:
        A("s_nop 5")
        A(f"ds_write_b128 v27, {vr(ACC,4)} offset:{L_RED}")
        A("s_nop 0")
        A(f"ds_write_b128 v27, {vr(ACC+4,4)} offset:{L_RED+1024}")
        A("s_waitcnt lgkmcnt(0)")
        stamp(7)
        cstamp("b3a")
        A("s_barrier")
        cstamp("b3")
        A("s_mov_b32 exec_hi, 0")
        R = 40
        for i in range(4): A(f"ds_read_b128 {vr(R+4*i,4)}, v16 offset:{L_RED + 2048*i}")
        A("s_waitcnt lgkmcnt(2)")
        A(f"v_pk_add_f32 {vr(R,2)}, {vr(R,2)}, {vr(R+4,2)}")
        A(f"v_pk_add_f32 {vr(R+2,2)}, {vr(R+2,2)}, {vr(R+6,2)}")
        A("s_waitcnt lgkmcnt(0)")
        A(f"v_pk_add_f32 {vr(R+8,2)}, {vr(R+8,2)}, {vr(R+12,2)}")
        A(f"v_pk_add_f32 {vr(R+10,2)}, {vr(R+10,2)}, {vr(R+14,2)}")
        A(f"v_pk_add_f32 {vr(R,2)}, {vr(R,2)}, {vr(R+8,2)}")
        A(f"v_pk_add_f32 {vr(R+2,2)}, {vr(R+2,2)}, {vr(R+10,2)}")
    for j in range(4): A(f"v_and_or_b32 v{R+j}, v{R+j}, v18, s{36+j}")
    cstamp("o1st")
    publish(R, 17, (lambda: A("s_barrier                         ; B3b")) if b3b else None)
    if pre: A("s_barrier                         ; Bt")
    stamp(8)
    finish()
    A("L_codeend:")

    nv = 172 if stamps else 164
    A('.section .rodata,"a"'); A(".p2align 6"); A(f".amdhsa_kernel {NAME}")
    A(f"  .amdhsa_next_free_vgpr {nv}"); A(f"  .amdhsa_next_free_sgpr {100 if safe else 68}"); A(f"  .amdhsa_accum_offset {nv}")
    A("  .amdhsa_group_segment_fixed_size 0"); A("  .amdhsa_kernarg_size 64"); A("  .amdhsa_user_sgpr_count 2")
    A("  .amdhsa_user_sgpr_kernarg_segment_ptr 1"); A("  .amdhsa_system_sgpr_workgroup_id_x 1")
    A("  .amdhsa_float_denorm_mode_32 3")
    A(".end_amdhsa_kernel")
    out = []
    for l in L:
        if l.endswith(":") or l.startswith(".") or l.startswith(";") or l.startswith("  ."):
            out.append(l)
        else:
            out.append("    " + l.rstrip())
    return HEADER + "\n".join(out) + "\n"


if __name__ == "__main__":
    kw = {}
    for a in sys.argv[2:]:
        k, v = a.split("=")
        kw[k] = eval(v) if v in ("True", "False") or v.isdigit() else v.replace("+", " ")
    open(sys.argv[1], "w").write(gen(**kw))
```

```python
import sys, os
sys.path.insert(0, os.path.dirname(os.path.abspath(__file__)))
import oprobe

NAME = "standalone__sliding_block_cached__decode_kernel"

HEADER = """; Kernarg layout for this problem (64 bytes, ptrs only, base s[0:1]):
;   offset  24: d_in[3] wq  shape=(448, 4096) dtype=bfloat16
;   offset  32: d_in[4] wo  shape=(4096, 448) dtype=bfloat16
;   offset  56: d_ws      268435456 bytes workspace
"""

WS_E = 0
WS_S1 = 0x8000
WS_Q1 = 0x10000
WS_O1 = 0x50000
WS_ACC = 0xD0000
WS_ST = 0x400000

L_CNT = 0
L_WQ = 1024
L_Q = 40960
L_STAT = 64
L_OX = 42240
L_RED = 16384
L_WO = 24576
L_END = 43520

BUF = dict(x=4, k=6, v=8, wq=10, wo=12, out=14, dbg=16, ws=18)
SIZE = dict(x=3584, k=67108864, v=67108864, wq=3670016, wo=3670016, out=3584, dbg=256, ws=268435456)
SRD = dict(x=68, k=72, v=76, wq=80, wo=84, out=88, ws=92, dbg=96)

SPIN = 100000


def gen(safe=False, stamps=False, only="", pmask=0, pval=0, amp=0, op="", omin=False,
        kvflags="nt", wqflags="nt", woflags="nt", outflags="", dk=7, dv=8, kpre=0,
        nf=64, tsync=False, xf="", vland=False, nowo=False, kprio=0, b3b=True, fakex=False,
        hs="6:8", gq=0, wgate=-1, kinit=16, lrot=0, nopf=False, f64=True, atf="sc0 sc1", noopt=False, noq=False, nowq=False, nox=False, notail=False, osleep=0, opm=1, wo0=0, gq2=-1, hmap=0, cyc="", bs=False, pre=True, tight=True, tgap=0, oxp=True, ogate=4, early=True, searly=False, wsh=True, d12=True, fakeb=False, pfm=31, xpos=1, s1u=True, qpt=0, qsc1=False, opm2=0, vord="0123", sw0=0, sw1=0, kb="W0_W1_C0_C1_C2_U0_U1", ptonly=""):
    if searly: bs = False
    assert f64 and d12 and early
    kp = {b: 12 + i for i, b in enumerate(kb.split("_"))}
    assert sorted(kp) == sorted("W0 W1 C0 C1 C2 U0 U1".split())
    L = []
    A = L.append
    diag = stamps or op

    def vr(r, n=1):
        return f"v{r}" if n == 1 else f"v[{r}:{r+n-1}]"

    W = {1: "dword", 2: "dwordx2", 3: "dwordx3", 4: "dwordx4"}

    def gload(dst, n, voff, buf, imm=0, fl=""):
        if safe:
            A(f"buffer_load_{W[n]} {vr(dst,n)}, v{voff}, s[{SRD[buf]}:{SRD[buf]+3}], 0 offen offset:{imm} {fl}")
        else:
            A(f"global_load_{W[n]} {vr(dst,n)}, v{voff}, s[{BUF[buf]}:{BUF[buf]+1}] offset:{imm} {fl}")

    def gdma(voff, buf, imm=0, fl=""):
        if nowo and buf == "wo": return
        if nowq and buf == "wq": return
        if safe:
            A(f"buffer_load_dwordx4 v{voff}, s[{SRD[buf]}:{SRD[buf]+3}], 0 offen offset:{imm} {fl} lds")
        else:
            A(f"global_load_lds_dwordx4 v{voff}, s[{BUF[buf]}:{BUF[buf]+1}] offset:{imm} {fl}")

    def gstore(src, n, voff, buf, imm=0, fl=""):
        w = "short" if n == 0 else W[n]
        n = max(n, 1)
        if safe:
            A(f"buffer_store_{w} {vr(src,n)}, v{voff}, s[{SRD[buf]}:{SRD[buf]+3}], 0 offen offset:{imm} {fl}")
        else:
            A(f"global_store_{w} v{voff}, {vr(src,n)}, s[{BUF[buf]}:{BUF[buf]+1}] offset:{imm} {fl}")

    def gatomic(dst, src, voff):
        n = 2 if f64 else 1
        t = "f64" if f64 else "f32"
        if safe:
            for i in range(n): A(f"v_mov_b32 v{dst+i}, v{src+i}")
            A(f"buffer_atomic_add_{t} {vr(dst,n)}, v{voff}, s[{SRD['ws']}:{SRD['ws']+3}], 0 offen {atf}")
        else:
            A(f"global_atomic_add_{t} {vr(dst,n)}, v{voff}, {vr(src,n)}, s[18:19] {atf}")

    def publish(src, voff, between=None):
        uid[0] += 1
        gstore(src, 4, voff, "ws", 0, "")
        if between: between()
        A("s_cmp_eq_u32 s54, 0")
        A(f"s_cbranch_scc1 L_pub{uid[0]}")
        A("s_waitcnt vmcnt(0)")
        gstore(src, 4, voff, "ws", 0, "sc1")
        A(f"L_pub{uid[0]}:")

    def pretouch(dst, addr):
        gload(dst, 1, addr, "ws", 0, "sc1")

    STB = 168
    role = ["k"]
    uid = [0]

    def kernarg_ready():
        A("s_waitcnt lgkmcnt(0)")
        if op: A("s_mov_b32 s46, s42")
        if stamps: A(f"v_writelane_b32 v{STB}, s42, 0")
        if safe:
            for b, s in SRD.items():
                A(f"s_mov_b32 s{s}, s{BUF[b]}"); A(f"s_mov_b32 s{s+1}, s{BUF[b]+1}")
                A(f"s_mov_b32 s{s+2}, {SIZE[b]}"); A(f"s_mov_b32 s{s+3}, 0x20000")

    def stamp(i):
        if op == f"{role[0]}{i}":
            A("s_memrealtime s[42:43]")
            A("s_waitcnt lgkmcnt(0)")
        if stamps and (only == "" or f"{role[0]}{i}" in str(only).split(",")):
            A("s_memrealtime s[40:41]")
            A("s_waitcnt lgkmcnt(0)")
            A(f"v_writelane_b32 v{STB}, s40, {i}")

    def cstamp(name):
        if cyc and name in cyc.split(","):
            k = cyc.split(",").index(name)
            A(f"s_memtime s[{64+2*k}:{65+2*k}]")

    def note(sreg, i):
        if stamps: A(f"v_writelane_b32 v{STB}, {sreg}, {i}")

    def finish():
        if stamps:
            if cyc:
                A("s_waitcnt lgkmcnt(0)"); A("s_sub_u32 s40, s66, s64"); A(f"v_writelane_b32 v{STB}, s40, 20")
            A("s_mov_b64 exec, -1")
            A("s_lshl3_add_u32 s40, s2, s3"); A("s_lshl_b32 s40, s40, 7")
            A(f"s_add_u32 s40, s40, {WS_ST}")
            A(f"v_lshl_add_u32 v{STB+1}, v2, 2, s40")
            A("s_mov_b32 exec_hi, 0")
            gstore(STB, 1, STB + 1, "ws")
        if op:
            uid[0] += 1
            oprobe.emit_record(A, gstore, WS_ST)
            if role[0] == "k": oprobe.emit_report(A, gload, WS_ST, uid[0], amp, pmask, pval, omin)
        A("s_endpgm")

    def mfma(d, a, b, c=None):
        cs = "0" if c is None else vr(c, 4)
        A(f"v_mfma_f32_16x16x32_bf16 {vr(d,4)}, {vr(a,4)}, {vr(b,4)}, {cs}")

    def tags():
        A("s_add_u32 s26, s26, 0x01010101")
        A("s_and_b32 s36, s26, 0xff"); A("s_bfe_u32 s37, s26, 0x80008"); A("s_bfe_u32 s38, s26, 0x80010"); A("s_lshr_b32 s39, s26, 24")

    def xred(reg, tmp, op_):
        for sw in ("v_permlane32_swap_b32", "v_permlane16_swap_b32"):
            A(f"v_mov_b32 v{tmp}, v{reg}")
            A("s_nop 1")
            A(f"{sw} v{reg}, v{tmp}")
            A(f"{op_} v{reg}, v{reg}, v{tmp}")

    def tred(r):
        A(f"v_permlane32_swap_b32 v{r}, v{r+2}")
        A(f"v_permlane32_swap_b32 v{r+1}, v{r+3}")
        A(f"v_add_f32 v{r}, v{r}, v{r+2}")
        A(f"v_add_f32 v{r+1}, v{r+1}, v{r+3}")
        A("s_nop 1")
        A(f"v_permlane16_swap_b32 v{r}, v{r+1}")
        A(f"v_add_f32 v{r}, v{r}, v{r+1}")

    def qtags():
        A("s_getreg_b32 s53, hwreg(HW_REG_XCC_ID, 0, 4)")
        if fakex: A("s_bfe_u32 s53, s2, 0x10005")
        for j in range(4):
            A(f"s_bfe_u32 s{56+j}, s53, {0x10000 + j}"); A(f"s_lshl_b32 s{56+j}, s{56+j}, 8"); A(f"s_or_b32 s{56+j}, s{56+j}, s{36+j}")

    def untag8(g, tt, base=36, sh=24):
        for i in range(8): A(f"v_xor_b32 v{g+i}, s{base + (i & 3)}, v{g+i}")
        A(f"v_or3_b32 v{tt}, v{g}, v{g+1}, v{g+2}")
        A(f"v_or3_b32 v{tt}, v{tt}, v{g+3}, v{g+4}")
        A(f"v_or3_b32 v{tt}, v{tt}, v{g+5}, v{g+6}")
        A(f"v_or_b32 v{tt}, v{tt}, v{g+7}")
        A(f"v_lshlrev_b32 v{tt}, {sh}, v{tt}")
        A(f"v_cmp_ne_u32 vcc, 0, v{tt}")

    def spin_step(addr):
        A("s_sub_u32 s27, s27, 1")

    def kvbase(wreg):
        A("s_lshl3_add_u32 s23, s22, s20")
        A("s_lshl_b32 s23, s23, 21")
        if kb == "W0_W1_C0_C1_C2_U0_U1":
            A(f"s_lshl2_add_u32 s25, s24, {wreg}")
            A("s_lshl_b32 s25, s25, 12")
            A("s_add_u32 s23, s23, s25")
        else:
            assert kp["W1"] == kp["W0"] + 1 and kp["C2"] == kp["C1"] + 1
            A(f"s_lshl_b32 s25, {wreg}, {kp['W0']}"); A("s_add_u32 s23, s23, s25")
            if kp["C1"] == kp["C0"] + 1:
                A(f"s_lshl_b32 s25, s24, {kp['C0']}"); A("s_add_u32 s23, s23, s25")
            else:
                A("s_and_b32 s25, s24, 1"); A(f"s_lshl_b32 s25, s25, {kp['C0']}"); A("s_add_u32 s23, s23, s25")
                A("s_lshr_b32 s25, s24, 1"); A(f"s_lshl_b32 s25, s25, {kp['C1']}"); A("s_add_u32 s23, s23, s25")
        A("s_add_u32 s23, s23, 0x180000")
        A(f"s_mov_b32 s25, {1 << kp['U0']}")

    def ustep(reg, U):
        if sw0 or sw1:
            m0 = (1 << kp["U0"]) | (sw0 << 12); m1 = (1 << kp["U1"]) | (sw1 << 12)
            A(f"v_xor_b32 v{reg}, {m0 ^ (m1 if U == 1 else 0)}, v{reg}")
            return
        d = (1 << kp["U1"]) - (1 << kp["U0"])
        if U == 1 and d != 1 << kp["U0"]: A(f"v_add_u32 v{reg}, {d & 0xffffffff}, v{reg}")
        else: A(f"v_add_u32 v{reg}, s25, v{reg}")

    A(f"; @launch grid=(256,1,1) block=(512,1,1) lds={L_END}")
    A('.amdgcn_target "amdgcn-amd-amdhsa--gfx950"')
    A(".text"); A(f".globl {NAME}"); A(".p2align 8"); A(f".type {NAME},@function"); A(f"{NAME}:")
    if diag:
        A("s_memrealtime s[42:43]")
    A("s_cmpk_ge_u32 s2, 0x100")
    A("s_cbranch_scc1 L_end")
    A("s_load_dwordx16 s[4:19], s[0:1], 0")
    if lrot: A(f"s_xor_b32 s2, s2, {lrot << 3}")
    if 0 < hmap < 8: A(f"s_xor_b32 s2, s2, {hmap}")
    if hmap == 8:
        A("s_and_b32 s20, s2, 1"); A("s_lshl_b32 s20, s20, 2"); A("s_xor_b32 s2, s2, s20")
    if hmap == 9:
        A("s_and_b32 s20, s2, 2"); A("s_lshl_b32 s20, s20, 1"); A("s_xor_b32 s2, s2, s20")
    A("v_readfirstlane_b32 s3, v0")
    A("v_and_b32 v2, 63, v0              ; lane")
    A("v_and_b32 v3, 15, v0              ; n")
    A("v_bfe_u32 v4, v0, 4, 2            ; g")
    A("v_and_b32 v10, 3, v0")
    A("s_and_b32 s20, s2, 7              ; hkv")
    A("s_lshr_b32 s22, s2, 6")
    A("s_bfe_u32 s24, s2, 0x30003")
    A("s_lshl3_add_u32 s28, s20, s24")
    A("s_lshr_b32 s3, s3, 6              ; wave")
    A("s_cmp_lt_u32 s3, 4")
    A("s_cbranch_scc1 L_k")
    XR = 24
    A("s_getpc_b64 s[30:31]")
    A("L_pc:")
    A("v_lshlrev_b32 v5, 5, v0")
    A("v_subrev_u32 v5, 8192, v5")
    A("v_min_u32 v5, L_codeend-L_pc-4, v5")
    if pfm:
        A(f"s_and_b32 s27, s2, {pfm << 3}"); A("s_cbranch_scc1 L_nopf")
    if not nopf: A("global_load_dword v6, v5, s[30:31]")
    if pfm: A("L_nopf:")
    A("s_setprio 3")
    A("v_mov_b32 v8, 0")
    A("v_mov_b32 v9, 0")
    A("ds_write2_b64 v8, v[8:9], v[8:9] offset0:0 offset1:1")
    A("s_and_b32 s33, s3, 3              ; u")
    A("s_cmp_eq_u32 s33, 3")
    A("s_cselect_b32 s34, 1, 3")
    A("v_and_b32 v11, s34, v4")
    A("s_mul_i32 s25, s22, 224")
    A("s_lshl_b32 s27, s33, 6")
    A("s_add_u32 s25, s25, s27           ; 2*(kq*112 + 32u)")
    A("v_mul_u32_u24 v5, 896, v10")
    A("v_lshlrev_b32 v7, 4, v11")
    A("v_add3_u32 v5, v5, v7, s25        ; x offset")
    A("s_lshl_b32 s27, s28, 7")
    A("s_lshl_b32 s25, s25, 12")
    A("s_add_u32 s25, s25, s27")
    A("v_lshrrev_b32 v7, 3, v2")
    A("v_lshlrev_b32 v7, 13, v7")
    A("v_and_b32 v8, 7, v2")
    A("v_lshlrev_b32 v9, 4, v8")
    A("v_add3_u32 v7, v7, v9, s25        ; wq offset")
    A("s_lshl_b32 s27, s33, 12")
    A(f"s_add_u32 m0, s27, {L_WQ}")
    A(f"s_mov_b32 s25, {65536-1024}")
    A("s_cmp_eq_u32 s33, 3")
    kernarg_ready()
    if xpos == 0 and not nox: gload(XR, 4, 5, "x", 0, xf)
    gdma(7, "wq", 0, wqflags)
    A("v_add_u32 v7, s25, v7")
    gdma(7, "wq", 1024, wqflags)
    A("s_cbranch_scc1 L_u3")
    A("v_add_u32 v7, s25, v7")
    gdma(7, "wq", 2048, wqflags)
    A("v_add_u32 v7, s25, v7")
    gdma(7, "wq", 3072, wqflags)
    A("L_u3:")
    if xpos == 1 and not nox: gload(XR, 4, 5, "x", 0, xf)
    A("s_barrier                         ; B0")
    A("s_branch L_qproj")

    A("L_k:")
    VK = 100
    kvbase("s3")
    A("v_lshrrev_b32 v5, 1, v3")
    A("v_lshlrev_b32 v5, 9, v5")
    A("v_and_b32 v7, 1, v2")
    A("v_lshl_add_u32 v6, v7, 2, v4")
    A("v_lshlrev_b32 v6, 4, v6")
    A("v_add3_u32 v97, v5, v6, s23       ; K offset")
    def kconst():
        A("s_lshl_b32 s50, s20, 7"); A("s_load_dword s26, s[18:19], s50")
        if kprio: A(f"s_setprio {kprio}")
        A("s_lshl2_add_u32 s27, s20, s3"); A("s_lshl_b32 s27, s27, 13"); A("s_lshl_b32 s29, s22, 8"); A("s_add_u32 s27, s27, s29")
        A(f"s_add_u32 s27, s27, {WS_Q1}")
        A("v_and_b32 v12, 1, v4"); A("v_lshrrev_b32 v13, 1, v4")
        A("v_lshlrev_b32 v9, 12, v12"); A("v_lshl_add_u32 v9, v13, 11, v9"); A("v_lshlrev_b32 v14, 4, v3")
        A("v_add3_u32 v9, v9, v14, s27")
        A("s_lshr_b32 s27, s3, 1"); A("s_mul_i32 s27, s27, 576"); A("s_and_b32 s29, s3, 1"); A("s_lshl_b32 s29, s29, 8"); A("s_add_u32 s27, s27, s29")
        A("v_lshlrev_b32 v15, 7, v12"); A("v_lshl_add_u32 v15, v13, 2, v15"); A("v_lshlrev_b32 v16, 3, v3")
        A("v_add3_u32 v15, v15, v16, s27")
        A("v_bfe_u32 v6, v2, 3, 1            ; h")
        A("v_mul_u32_u24 v17, 576, v6")
        A("v_and_b32 v7, 4, v2               ; 4*c'")
        A("v_add_u32 v7, v7, v4")
        A("v_lshl_add_u32 v17, v7, 4, v17")
        A("s_lshl_b32 s27, s3, 3")
        A("v_lshl_add_u32 v19, v6, 5, s27")
        A("s_lshl_b32 s27, s3, 11")
        A("v_lshl_add_u32 v36, v2, 4, s27")
        A("s_lshr_b32 s21, s2, 3             ; r")
        A("s_and_b32 s48, s21, 3             ; rg")
        A("s_lshr_b32 s49, s21, 2            ; cj")
        A("s_lshl2_add_u32 s27, s20, s48")
        A("s_lshl2_add_u32 s27, s27, s3")
        A("s_mul_i32 s27, s27, 28672")
        A("s_min_u32 s29, s49, 6"); A("s_lshl_b32 s29, s29, 7"); A("s_add_u32 s27, s27, s29")
        A("v_and_b32 v5, 7, v2"); A("v_lshlrev_b32 v6, 1, v12"); A("v_xor_b32 v5, v5, v6"); A("v_lshlrev_b32 v5, 4, v5")
        A("v_lshrrev_b32 v7, 3, v2"); A("v_mul_u32_u24 v7, 896, v7")
        A("v_xor_b32 v6, 64, v5")
        A("v_add3_u32 v5, v5, v7, s27")
        A(f"s_add_u32 s27, s27, {7168-1024}")
        A("v_add3_u32 v6, v6, v7, s27")
        A(f"v_add_u32 v7, {2*(7168-1024)}, v5")
        A(f"v_add_u32 v8, {2*(7168-1024)}, v6")
        A("s_lshl_b32 s27, s3, 12"); A(f"s_add_u32 m0, s27, {L_WO}")
        A("s_lshl_b32 s32, s20, 5")
        A("s_lshl3_add_u32 s34, s3, s32      ; hkv*32 + w*8")
        A("s_lshl2_add_u32 s27, s34, s48"); A("s_lshl_b32 s27, s27, 9")
        A(f"s_add_u32 s27, s27, {WS_O1}")
        A("v_and_b32 v25, 31, v2"); A("v_lshlrev_b32 v25, 4, v25"); A("v_lshlrev_b32 v26, 13, v13")
        A("v_add3_u32 v25, v25, v26, s27")
        A("v_add_u32 v28, 0x1000, v25")
        A("s_lshl_b32 s27, s34, 7"); A("s_lshr_b32 s29, s48, 1"); A("s_lshl_b32 s29, s29, 4"); A("s_add_u32 s27, s27, s29")
        A(f"s_add_u32 s27, s27, {WS_S1}")
        A("v_lshl_add_u32 v26, v13, 2, v10")
        A("v_lshl_add_u32 v26, v26, 7, s27")
        A("v_bfe_u32 v11, v2, 2, 2")
        A("v_lshrrev_b32 v27, 1, v11"); A("v_lshl_add_u32 v27, v12, 1, v27"); A("v_xor_b32 v27, s3, v27")
        A("v_lshlrev_b32 v27, 5, v27"); A("v_lshl_add_u32 v27, v11, 7, v27")
        A("v_lshl_add_u32 v27, v4, 10, v27"); A("v_lshl_add_u32 v27, v10, 3, v27")
        OXS = 320 if oxp else 256
        A(f"s_mul_i32 s27, s3, {OXS}")
        A("v_lshlrev_b32 v29, 3, v12"); A("v_lshl_add_u32 v29, v13, 2, v29"); A("v_add3_u32 v29, v29, v14, s27")
        A(f"v_mul_u32_u24 v30, {OXS}, v11"); A("v_lshl_add_u32 v30, v4, 4, v30")
        A("s_lshl2_add_u32 s33, s49, s3")
        if d12: A("s_mul_i32 s27, s33, 3072")
        else: A(f"s_lshl_b32 s27, s33, {11 if f64 else 10}")
        A(f"s_add_u32 s27, s27, {WS_ACC}")
        if d12:
            A("v_lshrrev_b32 v31, 3, v2"); A("v_and_b32 v35, 7, v2"); A("v_lshlrev_b32 v31, 8, v31"); A("v_lshlrev_b32 v35, 3, v35")
            A("v_add3_u32 v31, v31, v35, s27")
            A("s_add_u32 s27, s27, 2048"); A("v_lshlrev_b32 v32, 8, v4"); A("v_add3_u32 v32, v32, v35, s27")
            A("s_mov_b32 s60, 0x01800180"); A("s_mov_b32 s61, s60"); A("v_mov_b32 v96, 1.0")
        elif f64:
            A("v_lshrrev_b32 v31, 3, v2"); A("v_and_b32 v35, 7, v2"); A("v_lshlrev_b32 v31, 8, v31"); A("v_lshlrev_b32 v32, 3, v35")
            A("v_add3_u32 v31, v31, v32, s27"); A(f"v_add_u32 v32, {128-24}, v31")
            A("v_cmp_eq_u32 s[60:61], 4, v35"); A("v_cmp_eq_u32 s[62:63], 3, v35")
        else:
            A("v_lshlrev_b32 v31, 8, v4"); A("v_lshlrev_b32 v32, 2, v3")
            A("v_add3_u32 v31, v31, v32, s27"); A(f"v_add_u32 v32, {128-28}, v31")
            A("v_cmp_eq_u32 s[60:61], 8, v3"); A("v_cmp_eq_u32 s[62:63], 7, v3")
        A("s_lshl_b32 s27, s33, 2"); A("v_mov_b32 v35, s27")
        A("s_lshl_b32 s27, s33, 5")
        A("v_mul_u32_u24 v1, 896, v4"); A("v_lshlrev_b32 v33, 1, v3"); A("v_add3_u32 v1, v1, v33, s27")
        A("s_add_u32 s32, s32, s21           ; hkv*32 + r")
        A("s_lshl_b32 s27, s32, 7"); A(f"s_add_u32 s27, s27, {WS_S1}")
        A("v_lshl_add_u32 v33, v2, 4, s27")
        A("v_lshlrev_b32 v34, 5, v2")
        A("v_mov_b32 v37, 0"); A("v_mov_b32 v38, 1")
        A("s_waitcnt lgkmcnt(0)")
        tags()
        qtags()
        A("v_mov_b32 v18, 0xffffff00")
        A("s_mov_b32 s35, 0x3db8aa3b         ; log2(e)/16")
    kernarg_ready()
    for idx in range(16):
        if idx == kpre:
            A("s_barrier                         ; B0")
            stamp(1)
        if idx >= dk: A(f"s_waitcnt vmcnt({dk-1})")
        elif idx == kinit: A(f"s_waitcnt vmcnt({kinit-1})")
        U, j = idx >> 2, idx & 3
        gload(VK + 4*idx, 4, 97, "k", j*128, kvflags)
        if j == 3 and U < 3: ustep(97, U)
        if idx == dk - 1: kconst()
    stamp(2)
    QG = 40
    steps = [tuple(map(int, x.split(":"))) for x in hs.split(",")]
    for i, (kk, vv) in enumerate(steps):
        A(f"s_waitcnt vmcnt({kk + (2 if i > gq else 0) + (2 if 0 <= gq2 < i else 0)})")
        if i == gq2:
            gload(88, 4, 9, "ws", 0, "sc1"); gload(92, 4, 9, "ws", 1024, "sc1")
        if i == gq and not noq:
            gload(QG, 4, 9, "ws", 0, "sc1"); gload(QG + 4, 4, 9, "ws", 1024, "sc1")
        A("s_barrier")
        if i == 0: stamp(3)
    A(f"s_mov_b32 s27, {SPIN}")
    QS = 20; TT = 24
    if gq2 == len(steps):
        gload(88, 4, 9, "ws", 0, "sc1"); gload(92, 4, 9, "ws", 1024, "sc1")
    A(f"s_waitcnt vmcnt({2 if gq2 >= 0 else 0})")
    A("L_qpoll:")
    untag8(QG, TT, 56, 23)
    if not noq: A("s_cbranch_vccnz L_qrare")
    A("L_qok:")
    note("s27", 12)
    A(f"v_pk_add_f32 {vr(QS,2)}, {vr(QG,2)}, {vr(QG+4,2)}")
    A(f"v_pk_add_f32 {vr(QS+2,2)}, {vr(QG+2,2)}, {vr(QG+6,2)}")
    A("s_nop 1")
    A(f"v_permlane32_swap_b32 v{QS}, v{QS+2}")
    A(f"v_permlane32_swap_b32 v{QS+1}, v{QS+3}")
    A(f"v_pk_add_f32 {vr(QS,2)}, {vr(QS,2)}, {vr(QS+2,2)}")
    A(f"v_cvt_pk_bf16_f32 v{QS}, v{QS}, v{QS+1}")
    A(f"ds_write_b32 v15, v{QS} offset:{L_Q}")
    A("s_mov_b64 exec, 1")
    A(f"ds_add_u32 v37, v38 offset:{L_CNT}")
    stamp(4)
    A("s_mov_b64 exec, -1")
    for i in range(wo0): gdma(5 + i, "wo", 1024*i, woflags)
    if opm2 == 2:
        A("s_lshl2_add_u32 s29, s32, s3"); A("s_lshl_b32 s29, s29, 9"); A(f"s_add_u32 s29, s29, {WS_O1}")
        A("v_lshl_add_u32 v98, v10, 7, s29")
        A("s_mov_b64 exec, 0xf")
        pretouch(99, 98)
        A("s_mov_b64 exec, -1")
    A("L_qsync:")
    A(f"ds_read_b32 v39, v37 offset:{L_CNT}")
    A("s_waitcnt lgkmcnt(0)")
    A("v_readfirstlane_b32 s54, v39")
    A("s_bitcmp1_b32 s54, 2")
    A("s_cbranch_scc0 L_qsync")
    A("s_lshr_b32 s54, s54, 8")
    stamp(5)
    VQ = 48; D = 64; S = 80
    for j in range(4):
        A(f"ds_read_b128 {vr(VQ+4*j,4)}, v17 offset:{L_Q + 128*j}")
    for j in range(4):
        A(f"s_waitcnt lgkmcnt({3-j})")
        for U in range(4):
            mfma(D + 4*U, VK + 16*U + 4*j, VQ + 4*j, None if j == 0 else D + 4*U)
    A("s_nop 4")
    for half in range(2):
        for U in range(4):
            for r0 in range(2):
                a, b = D + 4*U + 2*r0, D + 4*U + 2*r0 + 1
                if half == 0: A(f"v_add_f32_dpp v{S+2*U+r0}, v{b}, v{a} row_shl:4 row_mask:0xf bank_mask:0x5")
                else: A(f"v_add_f32_dpp v{S+2*U+r0}, v{a}, v{b} row_shr:4 row_mask:0xf bank_mask:0xa")
    T0 = 48
    for i in range(4):
        A(f"v_cvt_pk_bf16_f32 v{T0+i}, v{S+2*i}, v{S+2*i+1}")
    for i in range(4):
        A(f"v_lshlrev_b32 v{S+2*i}, 16, v{T0+i}")
        A(f"v_and_b32 v{S+2*i+1}, 0xffff0000, v{T0+i}")
    M = 22; Lr = 23
    A(f"v_max3_f32 v{M}, v{S}, v{S+1}, v{S+2}")
    A(f"v_max3_f32 v{M}, v{M}, v{S+3}, v{S+4}")
    A(f"v_max3_f32 v{M}, v{M}, v{S+5}, v{S+6}")
    A(f"v_max_f32 v{M}, v{M}, v{S+7}")
    xred(M, TT, "v_max_f32")
    for i in range(8): A(f"v_sub_f32 v{S+i}, v{S+i}, v{M}")
    for i in range(8): A(f"v_mul_f32 v{S+i}, s35, v{S+i}")
    for i in range(8): A(f"v_exp_f32 v{S+i}, v{S+i}")
    A(f"v_add_f32 v{Lr}, v{S}, v{S+1}")
    A(f"ds_write_b128 v36, {vr(S,4)} offset:{L_RED}")
    A(f"ds_write_b128 v36, {vr(S+4,4)} offset:{L_RED+1024}")
    for i in range(2, 8): A(f"v_add_f32 v{Lr}, v{Lr}, v{S+i}")
    xred(Lr, TT, "v_add_f32")
    A(f"ds_write_b64 v19, {vr(M,2)} offset:{L_STAT}")
    A("v_mov_b32 v38, 1")
    A("s_mov_b64 exec, 1")
    A(f"ds_add_rtn_u32 v38, v37, v38 offset:{L_CNT+8}")
    A("s_waitcnt lgkmcnt(0)")
    A("v_readfirstlane_b32 s27, v38")
    A("s_cmp_eq_u32 s27, 3")
    A("s_cbranch_scc0 L_nostat")
    A("s_mov_b64 exec, 3")
    SB = 48
    A(f"ds_read_b128 {vr(SB,4)}, v34 offset:{L_STAT}")
    A(f"ds_read_b128 {vr(SB+4,4)}, v34 offset:{L_STAT+16}")
    A(f"v_mov_b32 v{SB+10}, s26"); A(f"v_mov_b32 v{SB+11}, s26")
    A("s_waitcnt lgkmcnt(0)")
    A(f"v_max3_f32 v{SB+8}, v{SB}, v{SB+2}, v{SB+4}")
    A(f"v_max_f32 v{SB+8}, v{SB+8}, v{SB+6}")
    for i in range(4): A(f"v_sub_f32 v{SB+2*i}, v{SB+2*i}, v{SB+8}")
    for i in range(4): A(f"v_mul_f32 v{SB+2*i}, s35, v{SB+2*i}")
    for i in range(4): A(f"v_exp_f32 v{SB+2*i}, v{SB+2*i}")
    A(f"v_mul_f32 v{SB+9}, v{SB}, v{SB+1}")
    for i in range(1, 4): A(f"v_fmac_f32 v{SB+9}, v{SB+2*i}, v{SB+1+2*i}")
    publish(SB+8, 33)
    if searly:
        A("s_mov_b64 exec, 1")
        A("v_mov_b32 v38, 4")
        A(f"ds_add_u32 v37, v38 offset:{L_CNT+8}")
    A("L_nostat:")
    A("s_mov_b64 exec, -1")
    GS = 64
    if searly:
        A("L_ssync:")
        A(f"ds_read_b32 v39, v37 offset:{L_CNT+8}")
        A("s_waitcnt lgkmcnt(0)")
        A("v_cmp_gt_u32 vcc, 8, v39")
        A("s_cbranch_vccnz L_ssync")
        gload(GS, 3, 26, "ws", 0, "sc1"); gload(GS+3, 1, 35, "dbg", 0, "sc1")
    stamp(6)
    A(f"s_cmp_ge_u32 s21, {0 if notail else 28}")
    A("s_barrier")
    A("s_cbranch_scc1 L_kend")
    stamp(7)
    GS = 64; GO = 72; WT = 88; OS = 92; MS = 52
    if not searly: gload(GS, 3, 26, "ws", 0, "sc1"); gload(GS+3, 1, 35, "dbg", 0, "sc1")
    if bs: A("s_barrier")
    if wgate >= 0: A("s_barrier                         ; Bw")
    for i in range(wo0, 4): gdma(5 + i, "wo", 1024*i, woflags)
    A(f"s_mov_b32 s27, {SPIN}")
    if not searly and not fakeb:
        A("s_barrier                         ; B3")
        cstamp("kb3")
    def oload(j, dst=None): gload(GO + 4*j if dst is None else dst, 4, 28 if j & 2 else 25, "ws", 2048*(j & 1), "sc1")
    def ofirst():
        if b3b: A("s_barrier                         ; B3b: this workgroup's O record is on its way")
        if ogate >= 0: A(f"s_waitcnt vmcnt({ogate})")
        cstamp("oiss")
        for j in range(4): oload(j)
    if ogate < 0: ofirst()
    A(f"s_waitcnt vmcnt({(4 if ogate < 0 else 0) + (0 if nowo else 4 - wo0)})")
    A("L_spoll:")
    A(f"v_cmp_ne_u32 vcc, s26, v{GS+2}")
    A(f"v_cmp_eq_u32 s[30:31], 0, v{GS+3}")
    A("s_or_b64 vcc, vcc, s[30:31]")
    A("s_cbranch_scc1 L_sagain")
    A("L_sok:")
    if wsh: ofirst()
    stamp(8)
    def red8(dst, src, op_):
        A(f"{op_}_dpp v{dst}, v{src}, v{src} quad_perm:[1,0,3,2] row_mask:0xf bank_mask:0xf")
        A("s_nop 1")
        A(f"{op_}_dpp v{dst}, v{dst}, v{dst} quad_perm:[2,3,0,1] row_mask:0xf bank_mask:0xf")
        A(f"v_mov_b32 v{TT}, v{dst}")
        A("s_nop 1")
        A(f"v_permlane32_swap_b32 v{dst}, v{TT}")
        A(f"{op_} v{dst}, v{dst}, v{TT}")
    red8(M, GS, "v_max_f32")
    A(f"v_sub_f32 v{GS}, v{GS}, v{M}")
    A(f"v_mul_f32 v{GS}, s35, v{GS}")
    A(f"v_exp_f32 v{GS}, v{GS}")
    if searly: A(f"s_cmp_eq_u32 s27, {SPIN}")
    A(f"s_mov_b32 s27, {SPIN}")
    A(f"v_mul_f32 v{GS+1}, v{GS}, v{GS+1}")
    A("s_nop 1")
    red8(Lr, GS+1, "v_add_f32")
    A(f"v_rcp_f32 v{Lr}, v{Lr}")
    A("s_nop 0")
    for j in range(4): A(f"v_mul_f32_dpp v{WT+j}, v{GS}, v{Lr} quad_perm:[{j},{j},{j},{j}] row_mask:0xf bank_mask:0xf")
    if searly:
        A("s_cbranch_scc0 L_b3done")
        A("s_barrier                         ; B3")
        cstamp("kb3")
        A("L_b3done:")
    if ogate >= 0 and not wsh: ofirst()
    OB = 100; WA = 116; D = 132; AT = 136; SA = 148; SB2 = 152
    def woread(s):
        for e in range(2):
            A(f"ds_read_b64_tr_b16 {vr(WA + 4*s + 2*e, 2)}, v27 offset:{L_WO + s*4096 + e*512}")
    if pre:
        A("s_waitcnt vmcnt(4)")
        A("s_barrier                         ; Bt: wo in LDS")
        for s in range(4): woread(s)
    def ocheck(j, dst, src=None):
        g = GO + 4*j
        for i in range(4): A(f"v_xor_b32 v{g+i}, s{36+i}, v{(g if src is None else src)+i}")
        A(f"v_or3_b32 v{TT}, v{g}, v{g+1}, v{g+2}")
        A(f"v_or_b32 v{TT}, v{TT}, v{g+3}")
        A(f"v_cmp_ne_u32_sdwa {dst}, v{TT}, v37 src0_sel:BYTE_0 src1_sel:DWORD")
    for j in range(4):
        A(f"s_waitcnt vmcnt({3-j})")
        ocheck(j, f"s[{MS+2*j}:{MS+1+2*j}]")
    stamp(16)
    A("L_otest:")
    A(f"s_or_b64 s[30:31], s[{MS}:{MS+1}], s[{MS+2}:{MS+3}]")
    A(f"s_or_b64 s[32:33], s[{MS+4}:{MS+5}], s[{MS+6}:{MS+7}]")
    A("s_or_b64 vcc, s[32:33], s[30:31]")
    A("s_cbranch_scc1 L_oagain")
    A("L_ogot:")
    A("s_mov_b64 exec, -1")
    cstamp("ogot")
    for j in range(4):
        g = GO + 4*j
        sel = f"op_sel:[0,{j&1},0] op_sel_hi:[1,{j&1},1]"
        for hh in range(2):
            if j == 0: A(f"v_pk_mul_f32 {vr(OS+2*hh,2)}, {vr(g+2*hh,2)}, {vr(WT,2)} op_sel_hi:[1,0]")
            else: A(f"v_pk_fma_f32 {vr(OS+2*hh,2)}, {vr(g+2*hh,2)}, {vr(WT+(j&2),2)}, {vr(OS+2*hh,2)} {sel}")
    note("s27", 14)
    stamp(9)
    A("s_nop 1")
    A(f"v_permlane32_swap_b32 v{OS}, v{OS+2}")
    A(f"v_permlane32_swap_b32 v{OS+1}, v{OS+3}")
    A(f"v_pk_add_f32 {vr(OS,2)}, {vr(OS,2)}, {vr(OS+2,2)}")
    A(f"v_cvt_pk_bf16_f32 v{OS}, v{OS}, v{OS+1}")
    A(f"ds_write_b32 v29, v{OS} offset:{L_OX}")
    A("s_waitcnt lgkmcnt(0)")
    cstamp("b4a")
    A("s_barrier                         ; B4: o and wo in LDS")
    cstamp("b4")
    for s in range(4):
        A(f"ds_read_b128 {vr(OB+4*s,4)}, v30 offset:{L_OX + 64*s}")
        if not pre: woread(s)
    for s in range(4):
        A(f"s_waitcnt lgkmcnt({(3-s) if pre else (9-3*s)})")
        mfma(D, OB + 4*s, WA + 4*s, None if s == 0 else D)
    if d12:
        A("s_mov_b32 vcc_lo, 0x00200020"); A("s_mov_b32 vcc_hi, 0x00200020")
        A("s_nop 5")
        A(f"v_cndmask_b32 v{AT}, v{D}, 1.0, s[60:61]")
        A(f"v_cndmask_b32_dpp v{AT+2}, v{D}, v96, vcc row_shl:1 row_mask:0xf bank_mask:0xf")
        A(f"v_cvt_f64_f32 {vr(AT,2)}, v{AT}")
        cstamp("at0")
        gatomic(AT+4, AT, 31)
        A(f"v_cvt_f64_f32 {vr(AT+2,2)}, v{AT+2}")
        A("s_mov_b32 exec_lo, 0x00e000e0"); A("s_mov_b32 exec_hi, 0x00e000e0")
        gatomic(AT+6, AT+2, 32)
        A("s_not_b64 vcc, s[60:61]")
    else:
        m0_, m1_ = (0x1f1f1f1f, 0xf8f8f8f8) if f64 else (0x01ff01ff, 0xff80ff80)
        A(f"s_mov_b32 exec_lo, {m0_}"); A(f"s_mov_b32 exec_hi, {m0_}")
        A("s_nop 5")
        A(f"v_cndmask_b32 v{AT}, v{D}, 1.0, s[60:61]")
        if f64: A(f"v_cvt_f64_f32 {vr(AT,2)}, v{AT}")
        cstamp("at0")
        gatomic(AT+4, AT, 31)
        A(f"s_mov_b32 exec_lo, {m1_}"); A(f"s_mov_b32 exec_hi, {m1_}")
        A(f"v_cndmask_b32 v{AT+2}, v{D}, 1.0, s[62:63]")
        if f64: A(f"v_cvt_f64_f32 {vr(AT+2,2)}, v{AT+2}")
        gatomic(AT+6, AT+2, 32)
    A("s_or_b32 s27, s21, s3")
    A("s_cbranch_scc0 L_epoch")
    A("L_epoch_done:")
    A("s_mov_b64 exec, -1")
    stamp(10)
    if d12:
        A("s_waitcnt vmcnt(1)")
        A(f"v_add_f64 {vr(AT,2)}, {vr(AT,2)}, {vr(AT+4,2)}")
        A(f"v_cvt_f32_f64 v{AT}, {vr(AT,2)}")
        A("s_waitcnt vmcnt(0)")
        A(f"v_add_f64 {vr(AT+2,2)}, {vr(AT+2,2)}, {vr(AT+6,2)}")
        A(f"v_mov_b32_dpp v{TT}, v{AT} row_newbcast:7 row_mask:0xf bank_mask:0x3")
        A(f"v_cvt_f32_f64 v{AT+2}, {vr(AT+2,2)}")
        A("s_nop 0")
        A(f"v_mov_b32_dpp v{TT}, v{AT} row_newbcast:8 row_mask:0xf bank_mask:0xc")
        A(f"v_cndmask_b32_dpp v{AT}, v{AT+2}, v{AT}, vcc row_shr:1 row_mask:0xf bank_mask:0xf")
        A(f"v_cvt_pk_bf16_f32 v{AT}, v{AT}, v{AT}")
        A(f"v_cndmask_b32_dpp v{TT}, v{AT+2}, v{TT}, vcc row_newbcast:5 row_mask:0xf bank_mask:0xf")
        A(f"v_cmp_eq_f32 vcc, 0x42000000, v{TT}")
    elif f64:
        A("s_waitcnt vmcnt(1)")
        A(f"v_add_f64 {vr(AT,2)}, {vr(AT,2)}, {vr(AT+4,2)}")
        A(f"v_cvt_f32_f64 v{AT}, {vr(AT,2)}")
        A("s_waitcnt vmcnt(0)")
        A(f"v_add_f64 {vr(AT+2,2)}, {vr(AT+2,2)}, {vr(AT+6,2)}")
        A(f"v_cvt_f32_f64 v{AT+2}, {vr(AT+2,2)}")
        A("s_nop 1")
        A(f"v_mov_b32_dpp v{TT}, v{AT} row_newbcast:4 row_mask:0xf bank_mask:0x1")
        A(f"v_mov_b32_dpp v{TT}, v{AT} row_newbcast:12 row_mask:0xf bank_mask:0x4")
        A(f"v_mov_b32_dpp v{TT}, v{AT+2} row_newbcast:3 row_mask:0xf bank_mask:0x2")
        A(f"v_mov_b32_dpp v{TT}, v{AT+2} row_newbcast:11 row_mask:0xf bank_mask:0x8")
        A(f"v_mov_b32_dpp v{AT}, v{AT+2} quad_perm:[0,1,2,3] row_mask:0xf bank_mask:0xa")
        A(f"v_cmp_eq_f32 vcc, 0x42000000, v{TT}")
    else:
        A("s_waitcnt vmcnt(1)")
        A(f"v_mov_b32_dpp v{TT}, v{AT+4} row_newbcast:8 row_mask:0xf bank_mask:0x3")
        A(f"v_add_f32 v{AT}, v{AT+4}, v{D}")
        A("s_waitcnt vmcnt(0)")
        A(f"v_mov_b32_dpp v{TT}, v{AT+6} row_newbcast:7 row_mask:0xf bank_mask:0xc")
        A(f"v_add_f32_dpp v{AT}, v{AT+6}, v{D} quad_perm:[0,1,2,3] row_mask:0xf bank_mask:0xc")
        A(f"v_cmp_eq_f32 vcc, 0x41f80000, v{TT}")
    if not d12: A(f"v_cvt_pk_bf16_f32 v{AT}, v{AT}, v{AT}")
    cstamp("atret")
    stamp(11)
    A("s_and_b64 exec, exec, vcc")
    A("s_cbranch_scc0 L_kend")
    gstore(AT, 0, 1, "out", 0, outflags)
    if stamps or op == "k15":
        A("s_waitcnt vmcnt(0)")
    A("L_kend:")
    stamp(15)
    if diag: finish()
    A("L_end:")
    A("s_endpgm")

    A("L_epoch:")
    A("s_mov_b64 exec, 1")
    A("v_mov_b32 v20, s26"); A("v_mov_b32 v21, s50")
    gstore(20, 1, 21, "ws", WS_E, "")
    A("s_waitcnt vmcnt(1)")
    A("s_branch L_epoch_done")
    A("L_oagain:")
    A("s_sub_u32 s27, s27, 1")
    A("s_cbranch_scc1 L_ogot")
    cstamp("oag")
    if tight:
        A("s_cmp_eq_u64 s[30:31], 0")
        A("s_cbranch_scc1 L_ohi")
        A("s_cmp_eq_u64 s[32:33], 0")
        A("s_cbranch_scc0 L_oall")
        A(f"s_cmp_eq_u64 s[{MS}:{MS+1}], 0"); A("s_cbranch_scc1 L_tight1")
        A(f"s_cmp_eq_u64 s[{MS+2}:{MS+3}], 0"); A("s_cbranch_scc1 L_tight0")
        A("s_branch L_oall")
        A("L_ohi:")
        A(f"s_cmp_eq_u64 s[{MS+4}:{MS+5}], 0"); A("s_cbranch_scc1 L_tight3")
        A(f"s_cmp_eq_u64 s[{MS+6}:{MS+7}], 0"); A("s_cbranch_scc1 L_tight2")
        A("L_oall:")
    for j in range(4):
        A(f"s_mov_b64 exec, s[{MS+2*j}:{MS+1+2*j}]")
        A(f"s_cbranch_execz L_oskipa{j}")
        oload(j)
        A(f"L_oskipa{j}:")
    A("s_waitcnt vmcnt(0)")
    for j in range(4):
        A(f"s_mov_b64 exec, s[{MS+2*j}:{MS+1+2*j}]")
        A(f"s_cbranch_execz L_oskipb{j}")
        ocheck(j, f"s[{MS+2*j}:{MS+1+2*j}]")
        A(f"L_oskipb{j}:")
    A("s_branch L_otest")
    if tight:
        for j in range(4):
            A(f"L_tight{j}:")
            A(f"s_mov_b64 exec, s[{MS+2*j}:{MS+1+2*j}]")
            oload(j, SA)
            if tgap: A(f"s_sleep {tgap}")
            A(f"L_tloop{j}:")
            oload(j, SB2)
            A("s_waitcnt vmcnt(1)")
            ocheck(j, "vcc", SA)
            A("s_cbranch_vccz L_ogot")
            oload(j, SA)
            A("s_sub_u32 s27, s27, 1")
            A("s_waitcnt vmcnt(1)")
            ocheck(j, "vcc", SB2)
            A("s_cbranch_vccz L_ogot")
            A(f"s_cbranch_scc0 L_tloop{j}")
            A("s_branch L_ogot")
    A("L_sagain:")
    A("s_sub_u32 s27, s27, 1")
    A("s_cbranch_scc1 L_sok")
    gload(GS, 3, 26, "ws", 0, "sc1"); gload(GS+3, 1, 35, "dbg", 0, "sc1")
    if searly:
        A(f"s_cmp_eq_u32 s27, {SPIN - 1}")
        A("s_cbranch_scc0 L_sagain2")
        A("s_barrier                         ; B3")
        A("L_sagain2:")
    A("s_waitcnt vmcnt(0)")
    A("s_branch L_spoll")

    A("L_qrare:")
    A(f"v_lshlrev_b32 v{TT}, 1, v{TT}")
    A(f"v_cmp_ne_u32 vcc, 0, v{TT}")
    A("s_cbranch_vccz L_qflush")
    A(f"s_cmp_eq_u32 s27, {SPIN - nf}")
    A("s_cbranch_scc1 L_qflush")
    A("L_qagain:")
    A("s_sub_u32 s27, s27, 1")
    A("s_cbranch_scc1 L_qok")
    if gq2 >= 0:
        A(f"s_cmp_eq_u32 s27, {SPIN - 1}")
        A("s_cbranch_scc0 L_qload")
        A("s_waitcnt vmcnt(0)")
        for i in range(8): A(f"v_mov_b32 v{QG+i}, v{88+i}")
        A("s_branch L_qpoll")
        A("L_qload:")
    gload(QG, 4, 9, "ws", 0, "sc1"); gload(QG + 4, 4, 9, "ws", 1024, "sc1")
    A("s_waitcnt vmcnt(0)")
    A("s_branch L_qpoll")
    A("L_qflush:")
    A("s_lshl2_add_u32 s29, s28, s22"); A("s_lshl_b32 s29, s29, 10"); A(f"s_add_u32 s29, s29, {WS_Q1}")
    A("v_lshl_add_u32 v39, v2, 4, s29")
    gload(48, 4, 39, "ws", 0, "sc1")
    A("s_waitcnt vmcnt(0)")
    gstore(48, 4, 39, "ws", 0, "sc1")
    A("s_cbranch_vccnz L_qagain")
    for i in range(8): A(f"v_and_b32 v{QG+i}, 0xfffffe00, v{QG+i}")
    A("v_mov_b32 v38, 0x101")
    A("s_branch L_qok")

    role[0] = "v"
    def acc_init():
        A("s_sub_u32 s52, s2, 224")
        A(f"s_xor_b32 s29, s33, {3 if early else 0}"); A("s_lshl_b32 s29, s29, 8"); A("s_or_b32 s51, s52, s29")
        A("s_cmp_lt_u32 s51, 28")
        A("s_cbranch_scc0 L_noinit")
        for i in range(4): A(f"v_mov_b32 v{28+i}, 0")
        if d12:
            A("s_mul_i32 s29, s52, 3072"); A(f"s_add_u32 s29, s29, {WS_ACC}")
            A("v_lshrrev_b32 v19, 2, v2"); A("v_lshlrev_b32 v19, 8, v19"); A("v_lshlrev_b32 v12, 4, v10")
            A("v_add3_u32 v19, v19, v12, s29")
            A("s_mov_b32 exec_hi, 0xffff")
            gstore(28, 4, 19, "ws", 0, "sc1")
            A("s_mov_b32 exec_hi, -1")
        else:
            A(f"s_lshl_b32 s29, s52, {11 if f64 else 10}"); A(f"s_add_u32 s29, s29, {WS_ACC}")
            A("v_lshl_add_u32 v19, v2, 4, s29")
            gstore(28, 4, 19, "ws", 0, "sc1")
            if f64: gstore(28, 4, 19, "ws", 1024, "sc1")
        A("L_noinit:")
    A("L_qproj:")
    if qpt == 2:
        A("s_cmp_eq_u32 s33, 2"); A("s_cbranch_scc0 L_noqpt")
        A("s_lshl2_add_u32 s55, s28, s22"); A("s_lshl_b32 s55, s55, 10"); A(f"s_add_u32 s55, s55, {WS_Q1}")
        A("v_lshl_add_u32 v8, v8, 7, s55")
        A("s_mov_b64 exec, 0xff")
        pretouch(1, 8)
        A("s_mov_b64 exec, -1")
        A("L_noqpt:")
    if early: acc_init()
    A("s_lshl_b32 s50, s20, 7"); A("s_load_dword s26, s[18:19], s50")
    A("v_bfe_u32 v12, v2, 2, 2           ; n>>2")
    A("v_lshlrev_b32 v5, 7, v12")
    A("v_lshl_add_u32 v5, v10, 3, v5")
    A("v_lshl_add_u32 v5, v11, 10, v5")
    A("v_add_u32 v5, m0, v5")
    A("v_lshlrev_b32 v7, 8, v10"); A("v_lshl_add_u32 v7, v12, 6, v7"); A("v_lshlrev_b32 v8, 4, v4")
    A("s_lshl2_add_u32 s55, s28, s22"); A("s_lshl_b32 s55, s55, 10"); A(f"s_add_u32 s55, s55, {WS_Q1}")
    A("v_add3_u32 v7, v7, v8, s55")
    A("v_sub_u32 v8, v4, v11")
    A("v_lshl_add_u32 v12, v8, 2, v12")
    for t in range(4): A(f"v_cmp_eq_u32 s[{60+2*t}:{61+2*t}], {t}, v12")
    A("s_lshl_b32 s27, s33, 10")
    A("v_lshlrev_b32 v13, 4, v2")
    A("v_add_u32 v14, s27, v13")
    A("v_mov_b32 v15, 0"); A("v_mov_b32 v16, 1")
    A("v_mov_b32 v17, 0xfffffe00")
    A("v_mov_b32 v18, 0xffffff00")
    XM = 40; WA = 56; QD = 20; QP = 72
    A("s_waitcnt lgkmcnt(0)")
    tags()
    qtags()
    A("s_cmp_lt_u32 s51, 28")
    A("s_waitcnt vmcnt(1)")
    A("s_cbranch_scc1 L_wqin")
    if qpt == 2:
        A("s_cmp_eq_u32 s33, 2"); A("s_cbranch_scc1 L_wqin")
    A("s_waitcnt vmcnt(0)")
    A("L_wqin:")
    for t in range(4):
        for e in range(2):
            A(f"ds_read_b64_tr_b16 {vr(WA+4*t+2*e,2)}, v5 offset:{512*e + 32*t}")
    for t in range(4):
        for i in range(4): A(f"v_cndmask_b32 v{XM+4*t+i}, 0, v{XR+i}, s[{60+2*t}:{61+2*t}]")
    for t in range(4):
        A(f"s_waitcnt lgkmcnt({6-2*t})")
        mfma(QD, WA + 4*t, XM + 4*t, None if t == 0 else QD)
    A("s_nop 7")
    A(f"ds_write_b128 v14, {vr(QD,4)} offset:{L_RED}")
    A("s_mov_b64 exec, 1")
    A(f"ds_add_rtn_u32 v16, v15, v16 offset:{L_CNT+4}")
    A("s_mov_b64 exec, -1")
    A("s_waitcnt lgkmcnt(0)")
    A("v_readfirstlane_b32 s27, v16")
    A("s_cmp_eq_u32 s27, 3")
    A("s_cbranch_scc0 L_v")
    for u in range(4): A(f"ds_read_b128 {vr(QP+4*u,4)}, v13 offset:{L_RED + 1024*u}")
    A("s_waitcnt lgkmcnt(2)")
    A(f"v_pk_add_f32 {vr(QP,2)}, {vr(QP,2)}, {vr(QP+4,2)}")
    A(f"v_pk_add_f32 {vr(QP+2,2)}, {vr(QP+2,2)}, {vr(QP+6,2)}")
    A("s_waitcnt lgkmcnt(0)")
    A(f"v_pk_add_f32 {vr(QP+8,2)}, {vr(QP+8,2)}, {vr(QP+12,2)}")
    A(f"v_pk_add_f32 {vr(QP+10,2)}, {vr(QP+10,2)}, {vr(QP+14,2)}")
    A(f"v_pk_add_f32 {vr(QP,2)}, {vr(QP,2)}, {vr(QP+8,2)}")
    A(f"v_pk_add_f32 {vr(QP+2,2)}, {vr(QP+2,2)}, {vr(QP+10,2)}")
    for j in range(4): A(f"v_and_or_b32 v{QP+j}, v{QP+j}, v17, s{56+j}")
    if not noq: gstore(QP, 4, 7, "ws", 0, "sc1" if qsc1 else "")
    A("L_v:")
    stamp(2)
    VV = 100
    A("s_setprio 0")
    kvbase("s33")
    A("v_lshlrev_b32 v9, 4, v3")
    A("v_lshlrev_b32 v11, 10, v4")
    A("v_add3_u32 v9, v9, v11, s23       ; V offset")
    A("v_and_b32 v16, 1, v2")
    A("v_lshlrev_b32 v16, 4, v16")
    A("v_mov_b32 v17, 0xffff")
    A("v_lshlrev_b32 v16, v16, v17")
    A("v_bfe_u32 v17, v2, 1, 2")
    for jj in range(4):
        A(f"v_cmp_eq_u32 vcc, {jj}, v17")
        A("s_nop 1")
        A(f"v_cndmask_b32 v{12+jj}, 0, v16, vcc")
    A("v_bfe_u32 v16, v2, 3, 1           ; h")
    A("v_lshlrev_b32 v25, 5, v16")
    A("s_lshl_b32 s27, s33, 3")
    A("v_add_u32 v26, s27, v25")
    A("s_lshl_b32 s27, s33, 11")
    A("v_lshl_add_u32 v27, v2, 4, s27")
    A("s_and_b32 s31, s33, 1"); A("s_lshl_b32 s27, s31, 10")
    A("s_lshr_b32 s29, s33, 1"); A("s_lshl_b32 s29, s29, 9"); A("s_add_u32 s27, s27, s29")
    A("v_lshl_add_u32 v16, v2, 4, s27")
    A("s_lshr_b32 s21, s2, 3             ; r")
    A("s_lshl_b32 s27, s20, 5"); A("s_add_u32 s27, s27, s21"); A("s_lshl2_add_u32 s27, s27, s33"); A("s_lshl_b32 s27, s27, 9")
    A(f"s_add_u32 s27, s27, {WS_O1}")
    A("v_lshl_add_u32 v17, v2, 4, s27")
    A("s_mov_b32 s35, 0x3db8aa3b         ; log2(e)/16")
    A("v_mov_b32 v5, 0")
    if not early: acc_init()
    A("s_cmp_lt_u32 s51, 28")
    if not qsc1: A("s_waitcnt vmcnt(0)")
    A("s_cbranch_scc0 L_noflag")
    if qsc1: A("s_waitcnt vmcnt(0)")
    A("s_lshl_b32 s29, s52, 2")
    A("v_mov_b32 v19, s29"); A("v_mov_b32 v28, 1")
    A("s_mov_b64 exec, 1")
    gstore(28, 1, 19, "dbg", 0, "sc1")
    A("s_mov_b64 exec, -1")
    A("L_noflag:")
    if opm2:
        A("s_lshl_b32 s27, s20, 5"); A("s_add_u32 s27, s27, s21"); A("s_lshl_b32 s27, s27, 7"); A(f"s_add_u32 s27, s27, {WS_S1 - 512}")
        A("v_lshl_add_u32 v11, v2, 4, s27")
        A("s_mov_b32 exec_hi, 0"); A("v_mov_b32 v11, v17")
        A("s_not_b32 s27, s26")
        A("s_mov_b32 exec_hi, -1")
        for i in range(4): A(f"v_mov_b32 v{32+i}, s27")
        A("s_cmp_eq_u32 s33, 0"); A("s_cselect_b32 exec_hi, 0xff, 0")
        gstore(32, 4, 11, "ws", 0, "sc1")
        A("s_mov_b32 exec_hi, -1")
    else:
        A("v_mov_b32 v11, v17")
        A("s_lshl_b32 s27, s20, 5"); A("s_add_u32 s27, s27, s21"); A("s_lshl_b32 s27, s27, 7"); A(f"s_add_u32 s27, s27, {WS_S1}")
        A("v_writelane_b32 v11, s27, 1")
        if s1u:
            A("s_cmp_eq_u32 s33, 0"); A("s_cselect_b32 s27, 2, 0"); A("s_or_b32 exec_lo, s27, 0x01010101"); A("s_mov_b32 exec_hi, 0")
        else:
            A(f"s_mov_b64 exec, {0x2 if ptonly == 's' else 0x01010103}")
        if not noopt: pretouch(6, 11)
        A("s_mov_b64 exec, -1")
    stamp(1)
    rel = {}
    tot = 0
    for i, (kk, vv) in enumerate(steps):
        rel[tot] = i; tot += vv
    for idx in range(16):
        if idx in rel:
            A("s_barrier                         ; Bk")
            if idx == 0: stamp(3)
        if idx >= max(dv, tot): A(f"s_waitcnt vmcnt({dv-1})")
        elif idx == tot: A(f"s_waitcnt vmcnt({tot-1})")
        U, j = idx >> 2, idx & 3
        def um(u): return ((u & 1) << kp["U0"]) | ((u >> 1) << kp["U1"])
        vo = [int(ch) for ch in str(vord).zfill(4)]
        if idx == 0 and vo[0]: A(f"v_xor_b32 v9, {um(vo[0])}, v9")
        gload(VV + 4*idx, 4, 9, "v", j*256, kvflags)
        if j == 3 and U < 3:
            if vo == [0, 1, 2, 3]: ustep(9, U)
            else: A(f"v_xor_b32 v9, {um(vo[U]) ^ um(vo[U+1])}, v9")
    if vland: A("s_waitcnt vmcnt(0)")
    stamp(4)
    A("s_barrier                         ; Bp")
    stamp(5)
    S = 28; TT = 24; ST = 40; VA = 56; ACC = 88
    A(f"ds_read_b32 v{ST+9}, v5 offset:{L_CNT}")
    A(f"ds_read_b128 {vr(ST,4)}, v25 offset:{L_STAT}")
    A(f"ds_read_b128 {vr(ST+4,4)}, v25 offset:{L_STAT+16}")
    A(f"ds_read_b32 v{ST+8}, v26 offset:{L_STAT}")
    A(f"ds_read_b128 {vr(S,4)}, v27 offset:{L_RED}")
    A(f"ds_read_b128 {vr(S+4,4)}, v27 offset:{L_RED+1024}")
    if bs: A("s_barrier                         ; Bs")
    A("s_waitcnt lgkmcnt(2)")
    A(f"v_readfirstlane_b32 s54, v{ST+9}")
    A(f"v_max3_f32 v{TT}, v{ST}, v{ST+2}, v{ST+4}")
    A(f"v_max_f32 v{TT}, v{TT}, v{ST+6}")
    A(f"v_sub_f32 v{TT}, v{ST+8}, v{TT}")
    A(f"v_mul_f32 v{TT}, s35, v{TT}")
    A(f"v_exp_f32 v{TT}, v{TT}")
    A("s_waitcnt lgkmcnt(0)")
    for i in range(8): A(f"v_mul_f32 v{S+i}, v{S+i}, v{TT}")
    for i in range(8): A(f"v_cvt_pk_bf16_f32 v{S+i}, v{S+i}, v{S+i}")
    def amask(t):
        for j in range(4): A(f"v_and_b32 v{VA+4*t+j}, v{S + 2*vo[t >> 1] + (t & 1)}, v{12+j}")
    A("s_lshr_b32 s54, s54, 8")
    amask(0); amask(1)
    stamp(6)
    for i in range(16):
        t, h = i >> 1, i & 1
        if i >= 16 - dv: A(f"s_waitcnt vmcnt({15-i})")
        if 15 - i == wgate: A("s_barrier                         ; Bw")
        if i == 15: cstamp("vland")
        mfma(ACC + 4*h, VA + 4*t, VV + 4*i, None if t == 0 else ACC + 4*h)
        if i < 6: amask(i + 2)
    if tsync:
        A("s_add_u32 s44, s42, 1500"); A("s_or_b32 s44, s44, 0x3ff"); A("s_add_u32 s44, s44, 1")
        A("L_tsync:")
        A("s_memrealtime s[40:41]"); A("s_waitcnt lgkmcnt(0)")
        A("s_sub_u32 s45, s40, s44"); A("s_cmp_lt_i32 s45, 0"); A("s_cbranch_scc1 L_tsync")
        note("s44", 13)
    if fakeb:
        R = 40
        mfma(ACC, VA, VV, ACC)
        A("s_nop 7")
        for i in range(8): A(f"v_add_f32 v{R+(i&3)}, v{ACC+i}, v{ACC+i}")
        A("s_mov_b32 exec_hi, 0")
    else:
        A("s_nop 5")
        A(f"ds_write_b128 v27, {vr(ACC,4)} offset:{L_RED}")
        A("s_nop 0")
        A(f"ds_write_b128 v27, {vr(ACC+4,4)} offset:{L_RED+1024}")
        A("s_waitcnt lgkmcnt(0)")
        stamp(7)
        cstamp("b3a")
        A("s_barrier")
        cstamp("b3")
        A("s_mov_b32 exec_hi, 0")
        R = 40
        for i in range(4): A(f"ds_read_b128 {vr(R+4*i,4)}, v16 offset:{L_RED + 2048*i}")
        A("s_waitcnt lgkmcnt(2)")
        A(f"v_pk_add_f32 {vr(R,2)}, {vr(R,2)}, {vr(R+4,2)}")
        A(f"v_pk_add_f32 {vr(R+2,2)}, {vr(R+2,2)}, {vr(R+6,2)}")
        A("s_waitcnt lgkmcnt(0)")
        A(f"v_pk_add_f32 {vr(R+8,2)}, {vr(R+8,2)}, {vr(R+12,2)}")
        A(f"v_pk_add_f32 {vr(R+10,2)}, {vr(R+10,2)}, {vr(R+14,2)}")
        A(f"v_pk_add_f32 {vr(R,2)}, {vr(R,2)}, {vr(R+8,2)}")
        A(f"v_pk_add_f32 {vr(R+2,2)}, {vr(R+2,2)}, {vr(R+10,2)}")
    for j in range(4): A(f"v_and_or_b32 v{R+j}, v{R+j}, v18, s{36+j}")
    cstamp("o1st")
    publish(R, 17, (lambda: A("s_barrier                         ; B3b")) if b3b else None)
    if pre: A("s_barrier                         ; Bt")
    stamp(8)
    finish()
    A("L_codeend:")

    nv = 172 if stamps else 164
    A('.section .rodata,"a"'); A(".p2align 6"); A(f".amdhsa_kernel {NAME}")
    A(f"  .amdhsa_next_free_vgpr {nv}"); A(f"  .amdhsa_next_free_sgpr {100 if safe else 68}"); A(f"  .amdhsa_accum_offset {nv}")
    A("  .amdhsa_group_segment_fixed_size 0"); A("  .amdhsa_kernarg_size 64"); A("  .amdhsa_user_sgpr_count 2")
    A("  .amdhsa_user_sgpr_kernarg_segment_ptr 1"); A("  .amdhsa_system_sgpr_workgroup_id_x 1")
    A("  .amdhsa_float_denorm_mode_32 3")
    A(".end_amdhsa_kernel")
    out = []
    for l in L:
        if l.endswith(":") or l.startswith(".") or l.startswith(";") or l.startswith("  ."):
            out.append(l)
        else:
            out.append("    " + l.rstrip())
    return HEADER + "\n".join(out) + "\n"


if __name__ == "__main__":
    kw = {}
    for a in sys.argv[2:]:
        k, v = a.split("=")
        kw[k] = v if k == "vord" else eval(v) if v in ("True", "False") or v.isdigit() else v.replace("+", " ")
    open(sys.argv[1], "w").write(gen(**kw))
```

```python
import sys, os
sys.path.insert(0, os.path.dirname(os.path.abspath(__file__)))
import oprobe

NAME = "standalone__sliding_block_cached__decode_kernel"

HEADER = """; Kernarg layout for this problem (64 bytes, ptrs only, base s[0:1]):
;
; Records in d_ws carry a tag (previous launch's tag + 0x01010101) in every 16 bytes, so readers poll the data
"""

G_E = 0
G_O = 0x1000
G_S = 0x11000
G_Q = 0x12000
WS_ST = 0x4000000

L_CNT = 0
L_STAT = 64
L_WQ = 1024
L_RED = 16384
L_WO = 24576
L_Q = 40960
L_OX = 42240
L_END = 43520

BUF = dict(x=4, k=6, v=8, wq=10, wo=12, out=14, dbg=16, ws=18)
SIZE = dict(x=3584, k=67108864, v=67108864, wq=3670016, wo=3670016, out=3584, dbg=256, ws=268435456)
SRD = dict(x=68, k=72, v=76, wq=80, wo=84, out=88, ws=92, dbg=96)

SPIN = 100000


def gen(safe=False, stamps=False, only="", pmask=0, pval=0, amp=0, op="", omin=False, cyc="", fakex=False,
        dk=7, dv=8, hs="6:8", gq=0, nf=64, pfm=31, kb="W0_W1_C0_C1_C2_U0_U1", gsh=17, acc=0x20000, gbase=0,
        ptpos=7, qpt=False, kc=200, kc0=3, spt="", sstep=64, e0=True, elate=True, bq=0):
    kp = {b: 12 + i for i, b in enumerate(kb.split("_"))}
    assert sorted(kp) == sorted("W0 W1 C0 C1 C2 U0 U1".split())
    if gsh == 17: acc = max(acc, 0x100000)
    WS_ACC = acc
    L = []
    A = L.append
    diag = stamps or op

    def C(text):
        A("; " + text)

    def vr(r, n=1):
        return f"v{r}" if n == 1 else f"v[{r}:{r+n-1}]"

    W = {1: "dword", 2: "dwordx2", 3: "dwordx3", 4: "dwordx4"}

    def gload(dst, n, voff, buf, imm=0, fl=""):
        if safe:
            A(f"buffer_load_{W[n]} {vr(dst,n)}, v{voff}, s[{SRD[buf]}:{SRD[buf]+3}], 0 offen offset:{imm} {fl}")
        else:
            A(f"global_load_{W[n]} {vr(dst,n)}, v{voff}, s[{BUF[buf]}:{BUF[buf]+1}] offset:{imm} {fl}")

    def gdma(voff, buf, imm=0, fl="nt"):
        if safe:
            A(f"buffer_load_dwordx4 v{voff}, s[{SRD[buf]}:{SRD[buf]+3}], 0 offen offset:{imm} {fl} lds")
        else:
            A(f"global_load_lds_dwordx4 v{voff}, s[{BUF[buf]}:{BUF[buf]+1}] offset:{imm} {fl}")

    def gstore(src, n, voff, buf, imm=0, fl=""):
        w = "short" if n == 0 else W[n]
        n = max(n, 1)
        if safe:
            A(f"buffer_store_{w} {vr(src,n)}, v{voff}, s[{SRD[buf]}:{SRD[buf]+3}], 0 offen offset:{imm} {fl}")
        else:
            A(f"global_store_{w} v{voff}, {vr(src,n)}, s[{BUF[buf]}:{BUF[buf]+1}] offset:{imm} {fl}")

    def gatomic(dst, src, voff):
        if safe:
            for i in range(2): A(f"v_mov_b32 v{dst+i}, v{src+i}")
            A(f"buffer_atomic_add_f64 {vr(dst,2)}, v{voff}, s[{SRD['ws']}:{SRD['ws']+3}], 0 offen sc0 sc1")
        else:
            A(f"global_atomic_add_f64 {vr(dst,2)}, v{voff}, {vr(src,2)}, s[18:19] sc0 sc1")

    def publish(src, voff, between=None):
        uid[0] += 1
        gstore(src, 4, voff, "ws")
        if between: between()
        A("s_cmp_eq_u32 s54, 0")
        A(f"s_cbranch_scc1 L_pub{uid[0]}")
        A("s_waitcnt vmcnt(0)")
        gstore(src, 4, voff, "ws", 0, "sc1")
        A(f"L_pub{uid[0]}:")

    STB = 168
    role = ["k"]
    uid = [0]

    def kernarg_ready():
        A("s_waitcnt lgkmcnt(0)")
        if op: A("s_mov_b32 s46, s42")
        if stamps: A(f"v_writelane_b32 v{STB}, s42, 0")
        if safe:
            for b, s in SRD.items():
                A(f"s_mov_b32 s{s}, s{BUF[b]}"); A(f"s_mov_b32 s{s+1}, s{BUF[b]+1}")
                A(f"s_mov_b32 s{s+2}, {SIZE[b]}"); A(f"s_mov_b32 s{s+3}, 0x20000")

    def stamp(i):
        if op == f"{role[0]}{i}":
            A("s_memrealtime s[42:43]")
            A("s_waitcnt lgkmcnt(0)")
        if stamps and (only == "" or f"{role[0]}{i}" in str(only).split(",")):
            A("s_memrealtime s[40:41]")
            A("s_waitcnt lgkmcnt(0)")
            A(f"v_writelane_b32 v{STB}, s40, {i}")

    def cstamp(name):
        if cyc and name in cyc.split(","):
            k = cyc.split(",").index(name)
            A(f"s_memtime s[{64+2*k}:{65+2*k}]")

    def note(sreg, i):
        if stamps: A(f"v_writelane_b32 v{STB}, {sreg}, {i}")

    def finish():
        if stamps:
            if cyc:
                A("s_waitcnt lgkmcnt(0)"); A("s_sub_u32 s40, s66, s64"); A(f"v_writelane_b32 v{STB}, s40, 20")
            A("s_mov_b64 exec, -1")
            A("s_lshl3_add_u32 s40, s2, s3"); A("s_lshl_b32 s40, s40, 7")
            A(f"s_add_u32 s40, s40, {WS_ST}")
            A(f"v_lshl_add_u32 v{STB+1}, v2, 2, s40")
            A("s_mov_b32 exec_hi, 0")
            gstore(STB, 1, STB + 1, "ws")
        if op:
            uid[0] += 1
            oprobe.emit_record(A, gstore, WS_ST)
            if role[0] == "k": oprobe.emit_report(A, gload, WS_ST, uid[0], amp, pmask, pval, omin)
        A("s_endpgm")

    def mfma(d, a, b, c=None):
        cs = "0" if c is None else vr(c, 4)
        A(f"v_mfma_f32_16x16x32_bf16 {vr(d,4)}, {vr(a,4)}, {vr(b,4)}, {cs}")

    def group_base():
        A(f"s_lshl_b32 s50, s20, {gsh}")
        if gbase: A(f"s_add_u32 s50, s50, {gbase}")

    def tags():
        C("s26 = tag, s36..s39 = its bytes, s56..s59 = the same plus one bit of this XCD's id (Q records)")
        A("s_add_u32 s26, s26, 0x01010101")
        A("s_and_b32 s36, s26, 0xff"); A("s_bfe_u32 s37, s26, 0x80008"); A("s_bfe_u32 s38, s26, 0x80010"); A("s_lshr_b32 s39, s26, 24")
        for j in range(4): A(f"s_or_b32 s{56+j}, s{56+j}, s{36+j}")

    def xcd_bits():
        A("s_getreg_b32 s53, hwreg(HW_REG_XCC_ID, 0, 4)")
        if fakex: A("s_bfe_u32 s53, s2, 0x10005")
        for j in range(4):
            A(f"s_lshl_b32 s{56+j}, s53, {8-j}"); A(f"s_and_b32 s{56+j}, s{56+j}, 0x100")

    def xred(reg, tmp, op_):
        for sw in ("v_permlane32_swap_b32", "v_permlane16_swap_b32"):
            A(f"v_mov_b32 v{tmp}, v{reg}")
            A("s_nop 1")
            A(f"{sw} v{reg}, v{tmp}")
            A(f"{op_} v{reg}, v{reg}, v{tmp}")

    def sum4(r):
        A("s_waitcnt lgkmcnt(2)")
        A(f"v_pk_add_f32 {vr(r,2)}, {vr(r,2)}, {vr(r+4,2)}")
        A(f"v_pk_add_f32 {vr(r+2,2)}, {vr(r+2,2)}, {vr(r+6,2)}")
        A("s_waitcnt lgkmcnt(0)")
        A(f"v_pk_add_f32 {vr(r+8,2)}, {vr(r+8,2)}, {vr(r+12,2)}")
        A(f"v_pk_add_f32 {vr(r+10,2)}, {vr(r+10,2)}, {vr(r+14,2)}")
        A(f"v_pk_add_f32 {vr(r,2)}, {vr(r,2)}, {vr(r+8,2)}")
        A(f"v_pk_add_f32 {vr(r+2,2)}, {vr(r+2,2)}, {vr(r+10,2)}")

    def halves(r):
        A("s_nop 1")
        A(f"v_permlane32_swap_b32 v{r}, v{r+2}")
        A(f"v_permlane32_swap_b32 v{r+1}, v{r+3}")
        A(f"v_pk_add_f32 {vr(r,2)}, {vr(r,2)}, {vr(r+2,2)}")
        A(f"v_cvt_pk_bf16_f32 v{r}, v{r}, v{r+1}")

    def kvbase(wreg):
        C("s23 = byte offset of this wave's first block of 8 keys, s25 = step to the next block")
        A("s_lshl3_add_u32 s23, s22, s20")
        A("s_lshl_b32 s23, s23, 21")
        if kb == "W0_W1_C0_C1_C2_U0_U1":
            A(f"s_lshl2_add_u32 s25, s24, {wreg}")
            A("s_lshl_b32 s25, s25, 12")
            A("s_add_u32 s23, s23, s25")
        else:
            assert kp["W0"] == 12 and kp["W1"] == 13
            A(f"s_lshl2_add_u32 s27, s24, {wreg}")
            src = ["W0", "W1", "C0", "C1", "C2"]
            i = 0
            while i < 5:
                j = i
                while j + 1 < 5 and kp[src[j+1]] == kp[src[j]] + 1: j += 1
                A(f"s_bfe_u32 s25, s27, {((j - i + 1) << 16) | i}"); A(f"s_lshl_b32 s25, s25, {kp[src[i]]}"); A("s_add_u32 s23, s23, s25")
                i = j + 1
        A("s_add_u32 s23, s23, 0x180000")
        A(f"s_mov_b32 s25, {1 << kp['U0']}")

    def ustep(reg, U):
        d = (1 << kp["U1"]) - (1 << kp["U0"])
        if U == 1 and d != 1 << kp["U0"]: A(f"v_add_u32 v{reg}, {d & 0xffffffff}, v{reg}")
        else: A(f"v_add_u32 v{reg}, s25, v{reg}")

    def own_q(dst):
        A(f"s_lshl2_add_u32 {dst}, s24, s22"); A(f"s_lshl_b32 {dst}, {dst}, 10")
        A(f"s_add_u32 {dst}, {dst}, s50"); A(f"s_add_u32 {dst}, {dst}, {G_Q}")

    steps = [tuple(map(int, x.split(":"))) for x in hs.split(",")]

    A(f"; @launch grid=(256,1,1) block=(512,1,1) lds={L_END}")
    A('.amdgcn_target "amdgcn-amd-amdhsa--gfx950"')
    A(".text"); A(f".globl {NAME}"); A(".p2align 8"); A(f".type {NAME},@function"); A(f"{NAME}:")
    if diag:
        A("s_memrealtime s[42:43]")
    A("s_cmpk_ge_u32 s2, 0x100")
    A("s_cbranch_scc1 L_end")
    A("s_load_dwordx16 s[4:19], s[0:1], 0")
    A("v_readfirstlane_b32 s3, v0")
    A("v_and_b32 v2, 63, v0              ; lane")
    A("v_and_b32 v3, 15, v0              ; n = lane & 15")
    A("v_bfe_u32 v4, v0, 4, 2            ; g = lane >> 4")
    A("v_and_b32 v10, 3, v0")
    A("s_and_b32 s20, s2, 7              ; hkv")
    A("s_lshr_b32 s22, s2, 6             ; r >> 3")
    A("s_bfe_u32 s24, s2, 0x30003        ; r & 7")
    A("s_lshr_b32 s3, s3, 6              ; wave")
    A("s_cmp_lt_u32 s3, 4")
    A("s_cbranch_scc1 L_k")

    C("---------------------------------------------------------------- V waves: wq and x go first")
    XR = 24
    if pfm:
        A(f"s_and_b32 s27, s2, {pfm << 3}"); A("s_cbranch_scc1 L_nopf")
    A("s_getpc_b64 s[30:31]")
    A("L_pc:")
    A("v_lshlrev_b32 v5, 5, v0")
    A("v_subrev_u32 v5, 8192, v5")
    A("v_min_u32 v5, L_codeend-L_pc-4, v5")
    A("global_load_dword v6, v5, s[30:31]")
    A("L_nopf:")
    A("s_setprio 3")
    A("v_mov_b32 v8, 0")
    A("v_mov_b32 v9, 0")
    A("ds_write2_b64 v8, v[8:9], v[8:9] offset0:0 offset1:1")
    A("s_and_b32 s33, s3, 3")
    A("s_cmp_eq_u32 s33, 3")
    A("s_cselect_b32 s34, 1, 3")
    A("v_and_b32 v11, s34, v4")
    A("s_mul_i32 s25, s22, 224")
    A("s_lshl_b32 s27, s33, 6")
    A("s_add_u32 s25, s25, s27")
    A("v_mul_u32_u24 v5, 896, v10")
    A("v_lshlrev_b32 v7, 4, v11")
    A("v_add3_u32 v5, v5, v7, s25        ; x offset")
    A("s_lshl3_add_u32 s27, s20, s24")
    A("s_lshl_b32 s27, s27, 7")
    A("s_lshl_b32 s25, s25, 12")
    A("s_add_u32 s25, s25, s27")
    A("v_lshrrev_b32 v7, 3, v2")
    A("v_lshlrev_b32 v7, 13, v7")
    A("v_and_b32 v8, 7, v2")
    A("v_lshlrev_b32 v9, 4, v8")
    A("v_add3_u32 v7, v7, v9, s25")
    A("s_lshl_b32 s27, s33, 12")
    A(f"s_add_u32 m0, s27, {L_WQ}")
    A(f"s_mov_b32 s25, {65536-1024}")
    if ptpos in (6, 7):
        C("the group's O and S lines become L2-resident before they are written: lines i + 128*lane, i = 4r + u")
        group_base()
        A("s_lshr_b32 s21, s2, 3")
        A("s_lshl2_add_u32 s27, s21, s33")
        A("s_cmp_lt_u32 s27, 32")
        A(f"s_cselect_b32 s30, {31 if ptpos == 6 else 127}, {15 if ptpos == 6 else 63}")
        A("s_lshl_b32 s27, s27, 7"); A("s_add_u32 s27, s27, s50"); A(f"s_add_u32 s27, s27, {G_O}")
        A("v_lshl_add_u32 v12, v8, 14, s27")
    if ptpos == 0:
        group_base()
        A("s_lshr_b32 s21, s2, 3")
        A("s_lshl2_add_u32 s27, s21, s33"); A("s_lshl_b32 s27, s27, 9"); A("s_add_u32 s27, s27, s50"); A(f"s_add_u32 s27, s27, {G_O}")
        A("v_lshl_add_u32 v12, v10, 7, s27")
    if e0 and ptpos not in (0, 6, 7): group_base()
    A("s_cmp_eq_u32 s33, 3")
    kernarg_ready()
    if e0: A("s_load_dword s26, s[18:19], s50")
    if ptpos == 0:
        A("s_mov_b64 exec, 15"); gload(1, 1, 12, "ws", 0, "sc1"); A("s_mov_b64 exec, -1")
    if ptpos in (6, 7):
        A("s_mov_b32 exec_lo, s30"); A("s_mov_b32 exec_hi, 0"); gload(1, 1, 12, "ws", 0, "sc1"); A("s_mov_b64 exec, -1")
    gdma(7, "wq", 0)
    A("v_add_u32 v7, s25, v7")
    gdma(7, "wq", 1024)
    A("s_cbranch_scc1 L_u3")
    A("v_add_u32 v7, s25, v7")
    gdma(7, "wq", 2048)
    A("v_add_u32 v7, s25, v7")
    gdma(7, "wq", 3072)
    A("L_u3:")
    gload(XR, 4, 5, "x")
    A("s_barrier                         ; B0")
    A("s_branch L_qproj")

    C("================================================================ K waves")
    A("L_k:")
    VK = 100
    kvbase("s3")
    A("v_lshrrev_b32 v5, 1, v3")
    A("v_lshlrev_b32 v5, 9, v5")
    A("v_and_b32 v7, 1, v2")
    A("v_lshl_add_u32 v6, v7, 2, v4")
    A("v_lshlrev_b32 v6, 4, v6")
    A("v_add3_u32 v97, v5, v6, s23")

    def kconst():
        C("addresses for later, computed while the first loads are in flight")
        group_base()
        A("s_load_dword s26, s[18:19], s50")
        A("s_lshr_b32 s21, s2, 3             ; r")
        C("Q gather: record (2w + (g&1))*4 + 2*(g>>1) + j, batch r>>3, columns 4n..")
        A("s_lshl_b32 s27, s3, 13"); A("s_lshl_b32 s29, s22, 8"); A("s_add_u32 s27, s27, s29")
        A("s_add_u32 s27, s27, s50"); A(f"s_add_u32 s27, s27, {G_Q}")
        A("v_and_b32 v12, 1, v4"); A("v_lshrrev_b32 v13, 1, v4")
        A("v_lshlrev_b32 v9, 12, v12"); A("v_lshl_add_u32 v9, v13, 11, v9"); A("v_lshlrev_b32 v14, 4, v3")
        A("v_add3_u32 v9, v9, v14, s27")
        C("q write: (w>>1)*576 + (w&1)*256 + (g&1)*128 + n*8 + (g>>1)*4 ; q read: h*576 + 64*((n>>2)&1) + 16*g")
        A("s_lshr_b32 s27, s3, 1"); A("s_mul_i32 s27, s27, 576"); A("s_and_b32 s29, s3, 1"); A("s_lshl_b32 s29, s29, 8"); A("s_add_u32 s27, s27, s29")
        A("v_lshlrev_b32 v15, 7, v12"); A("v_lshl_add_u32 v15, v13, 2, v15"); A("v_lshlrev_b32 v16, 3, v3")
        A("v_add3_u32 v15, v15, v16, s27")
        A("v_bfe_u32 v6, v2, 3, 1            ; head")
        A("v_mul_u32_u24 v17, 576, v6")
        A("v_and_b32 v7, 4, v2")
        A("v_add_u32 v7, v7, v4")
        A("v_lshl_add_u32 v17, v7, 4, v17")
        A("s_lshl_b32 s27, s3, 3")
        A("v_lshl_add_u32 v19, v6, 5, s27")
        A("s_lshl_b32 s27, s3, 11")
        A("v_lshl_add_u32 v36, v2, 4, s27")
        A("s_and_b32 s48, s21, 3")
        A("s_lshr_b32 s49, s21, 2")
        C("wo: load i of wave w brings rows 32w + 8i + (lane>>3), 16-byte chunk (lane&7) ^ (2*(g&1) + 4*(i&1))")
        A("s_lshl2_add_u32 s27, s20, s48")
        A("s_lshl2_add_u32 s27, s27, s3")
        A("s_mul_i32 s27, s27, 28672")
        A("s_min_u32 s29, s49, 6"); A("s_lshl_b32 s29, s29, 7"); A("s_add_u32 s27, s27, s29")
        A("v_and_b32 v35, 7, v2"); A("v_lshlrev_b32 v6, 1, v12"); A("v_xor_b32 v5, v35, v6"); A("v_lshlrev_b32 v5, 4, v5")
        A("v_lshrrev_b32 v31, 3, v2"); A("v_mul_u32_u24 v7, 896, v31")
        A("v_xor_b32 v6, 64, v5")
        A("v_add3_u32 v5, v5, v7, s27")
        A(f"s_add_u32 s27, s27, {7168-1024}")
        A("v_add3_u32 v6, v6, v7, s27")
        A(f"v_add_u32 v7, {2*(7168-1024)}, v5")
        A(f"v_add_u32 v8, {2*(7168-1024)}, v6")
        A("s_lshl_b32 s27, s3, 12"); A(f"s_add_u32 m0, s27, {L_WO}")
        C("O gather: wave = batch, record 8w + 4*(lane>>5) + j, slice = row group")
        A("s_lshl_b32 s27, s3, 14"); A("s_lshl_b32 s29, s48, 9"); A("s_add_u32 s27, s27, s29")
        A("s_add_u32 s27, s27, s50"); A(f"s_add_u32 s27, s27, {G_O}")
        A("v_and_b32 v25, 31, v2"); A("v_lshlrev_b32 v25, 4, v25"); A("v_lshlrev_b32 v26, 13, v13")
        A("v_add3_u32 v25, v25, v26, s27")
        A("v_add_u32 v28, 0x1000, v25")
        C("S gather: record 8w + 4*(lane>>5) + (lane&3), head = row group >> 1")
        A(f"s_add_u32 s32, s50, {G_S}")
        A("s_lshl_b32 s27, s3, 10"); A("s_lshr_b32 s29, s48, 1"); A("s_lshl_b32 s29, s29, 4"); A("s_add_u32 s27, s27, s29")
        A("s_add_u32 s27, s27, s32")
        A("v_lshl_add_u32 v26, v13, 2, v10")
        A("v_lshl_add_u32 v26, v26, 7, s27")
        A("s_lshl_b32 s27, s21, 7"); A("s_add_u32 s27, s27, s32")
        A("v_lshl_add_u32 v33, v2, 4, s27")
        A("v_lshlrev_b32 v34, 5, v2")
        C("wo transposing read: g*1024 + r4*128 + c4*8 + 32*(w ^ ((r4>>1) + 2*(g&1))), r4 = n>>2, c4 = n&3")
        A("v_bfe_u32 v11, v2, 2, 2")
        A("v_lshrrev_b32 v27, 1, v11"); A("v_lshl_add_u32 v27, v12, 1, v27"); A("v_xor_b32 v27, s3, v27")
        A("v_lshlrev_b32 v27, 5, v27"); A("v_lshl_add_u32 v27, v11, 7, v27")
        A("v_lshl_add_u32 v27, v4, 10, v27"); A("v_lshl_add_u32 v27, v10, 3, v27")
        C("o write: w*320 + 2*(8n + 4*(g&1) + 2*(g>>1)) ; o read: (n>>2)*320 + 16*g")
        A("s_mul_i32 s27, s3, 320")
        A("v_lshlrev_b32 v29, 3, v12"); A("v_lshl_add_u32 v29, v13, 2, v29"); A("v_add3_u32 v29, v29, v14, s27")
        A("v_mul_u32_u24 v30, 320, v11"); A("v_lshl_add_u32 v30, v4, 4, v30")
        C("accumulators of column tile 4*block + w: 64-byte groups 256 apart, 8 of 7 columns + counter, 4 for columns 7 and 8")
        A("s_lshl2_add_u32 s33, s49, s3")
        A("s_mul_i32 s27, s33, 3072"); A(f"s_add_u32 s27, s27, {WS_ACC}")
        A("v_lshlrev_b32 v31, 8, v31"); A("v_lshlrev_b32 v35, 3, v35")
        A("v_add3_u32 v31, v31, v35, s27")
        A("s_add_u32 s27, s27, 2048"); A("v_lshlrev_b32 v32, 8, v4"); A("v_add3_u32 v32, v32, v35, s27")
        A("s_mov_b32 s60, 0x01800180"); A("s_mov_b32 s61, s60"); A("v_mov_b32 v96, 1.0")
        A("s_lshl_b32 s27, s33, 2"); A("v_mov_b32 v35, s27")
        A("s_lshl_b32 s27, s33, 5")
        A("v_mul_u32_u24 v1, 896, v4"); A("v_lshlrev_b32 v18, 1, v3"); A("v_add3_u32 v1, v1, v18, s27")
        A("v_mov_b32 v37, 0"); A("v_mov_b32 v38, 1")
        A("s_mov_b32 s35, 0x3db8aa3b")
        xcd_bits()
        if "q" in spt:
            own_q("s29"); A("s_lshl_b32 s27, s3, 8"); A("s_add_u32 s29, s29, s27")
            A("s_add_u32 s62, s18, s29"); A("s_addc_u32 s63, s19, 0")
            for i in range(0, 256, sstep): A(f"s_load_dword s34, s[62:63], {i}")
        if "o" in spt:
            A("s_lshl2_add_u32 s29, s21, s3"); A("s_lshl_b32 s29, s29, 9"); A("s_add_u32 s29, s29, s50"); A(f"s_add_u32 s29, s29, {G_O}")
            A("s_add_u32 s64, s18, s29"); A("s_addc_u32 s65, s19, 0")
            for i in range(0, 512, sstep): A(f"s_load_dword s34, s[64:65], {i}")
            A("s_lshl_b32 s29, s21, 7"); A("s_add_u32 s29, s29, s32"); A("s_load_dword s34, s[18:19], s29")
        A("s_waitcnt lgkmcnt(0)")
        tags()

    n0 = len(L); kconst(); KC = L[n0:]; del L[n0:]
    nw_ = KC.index("s_waitcnt lgkmcnt(0)")
    ksplit = min(kc, nw_)
    kernarg_ready()
    A("s_barrier                         ; B0")
    stamp(1)
    for idx in range(16):
        if idx == kc0: L.extend(KC[:ksplit])
        if bq and idx == bq: A("s_barrier")
        if idx >= dk: A(f"s_waitcnt vmcnt({dk-1})")
        U, j = idx >> 2, idx & 3
        gload(VK + 4*idx, 4, 97, "k", j*128, "nt")
        if j == 3 and U < 3: ustep(97, U)
        if idx == dk - 1: L.extend(KC[ksplit:nw_] if elate else KC[ksplit:])
    stamp(2)
    QG = 40; QS = 20; TT = 24
    def qload():
        gload(QG, 4, 9, "ws", 0, "sc1"); gload(QG + 4, 4, 9, "ws", 1024, "sc1")
    for i, (kk, vv) in enumerate(steps):
        A(f"s_waitcnt vmcnt({kk + (2 if i > gq else 0)})")
        if i == gq: qload()
        A("s_barrier")
        if i == 0: stamp(3)
    if elate: L.extend(KC[nw_:])
    A(f"s_mov_b32 s27, {SPIN}")
    A("s_waitcnt vmcnt(0)")
    A("L_qpoll:")
    for i in range(8): A(f"v_xor_b32 v{QG+i}, s{56 + (i & 3)}, v{QG+i}")
    A(f"v_or3_b32 v{TT}, v{QG}, v{QG+1}, v{QG+2}")
    A(f"v_or3_b32 v{TT}, v{TT}, v{QG+3}, v{QG+4}")
    A(f"v_or3_b32 v{TT}, v{TT}, v{QG+5}, v{QG+6}")
    A(f"v_or_b32 v{TT}, v{TT}, v{QG+7}")
    A(f"v_lshlrev_b32 v{TT}, 23, v{TT}")
    A(f"v_cmp_ne_u32 vcc, 0, v{TT}")
    A("s_cbranch_vccnz L_qrare")
    A("L_qok:")
    note("s27", 12)
    A(f"v_pk_add_f32 {vr(QS,2)}, {vr(QG,2)}, {vr(QG+4,2)}")
    A(f"v_pk_add_f32 {vr(QS+2,2)}, {vr(QG+2,2)}, {vr(QG+6,2)}")
    halves(QS)
    A(f"ds_write_b32 v15, v{QS} offset:{L_Q}")
    A("s_mov_b64 exec, 1")
    A(f"ds_add_u32 v37, v38 offset:{L_CNT}")
    stamp(4)
    A("s_mov_b64 exec, -1")
    A("L_qsync:")
    A(f"ds_read_b32 v39, v37 offset:{L_CNT}")
    A("s_waitcnt lgkmcnt(0)")
    A("v_readfirstlane_b32 s54, v39")
    A("s_bitcmp1_b32 s54, 2")
    A("s_cbranch_scc0 L_qsync")
    A("s_lshr_b32 s54, s54, 8")
    stamp(5)
    C("scores: row (key, half line) x column (head, half line, copies); the matching halves are added afterwards")
    VQ = 48; D = 64; S = 80; M = 22; Lr = 23
    for j in range(4):
        A(f"ds_read_b128 {vr(VQ+4*j,4)}, v17 offset:{L_Q + 128*j}")
    for j in range(4):
        A(f"s_waitcnt lgkmcnt({3-j})")
        for U in range(4):
            mfma(D + 4*U, VK + 16*U + 4*j, VQ + 4*j, None if j == 0 else D + 4*U)
    A("s_nop 4")
    for half in range(2):
        for t in range(8):
            a, b = D + 2*t, D + 2*t + 1
            if half == 0: A(f"v_add_f32_dpp v{S+t}, v{b}, v{a} row_shl:4 row_mask:0xf bank_mask:0x5")
            else: A(f"v_add_f32_dpp v{S+t}, v{a}, v{b} row_shr:4 row_mask:0xf bank_mask:0xa")
    C("the reference holds the scores in bf16")
    for i in range(4): A(f"v_cvt_pk_bf16_f32 v{VQ+i}, v{S+2*i}, v{S+2*i+1}")
    for i in range(4):
        A(f"v_lshlrev_b32 v{S+2*i}, 16, v{VQ+i}")
        A(f"v_and_b32 v{S+2*i+1}, 0xffff0000, v{VQ+i}")
    A(f"v_max3_f32 v{M}, v{S}, v{S+1}, v{S+2}")
    A(f"v_max3_f32 v{M}, v{M}, v{S+3}, v{S+4}")
    A(f"v_max3_f32 v{M}, v{M}, v{S+5}, v{S+6}")
    A(f"v_max_f32 v{M}, v{M}, v{S+7}")
    xred(M, TT, "v_max_f32")
    for i in range(8): A(f"v_sub_f32 v{S+i}, v{S+i}, v{M}")
    for i in range(8): A(f"v_mul_f32 v{S+i}, s35, v{S+i}")
    for i in range(8): A(f"v_exp_f32 v{S+i}, v{S+i}")
    A(f"v_add_f32 v{Lr}, v{S}, v{S+1}")
    A(f"ds_write_b128 v36, {vr(S,4)} offset:{L_RED}")
    A(f"ds_write_b128 v36, {vr(S+4,4)} offset:{L_RED+1024}")
    for i in range(2, 8): A(f"v_add_f32 v{Lr}, v{Lr}, v{S+i}")
    xred(Lr, TT, "v_add_f32")
    A(f"ds_write_b64 v19, {vr(M,2)} offset:{L_STAT}")
    A("v_mov_b32 v38, 1")
    A("s_mov_b64 exec, 1")
    A(f"ds_add_rtn_u32 v38, v37, v38 offset:{L_CNT+8}")
    A("s_waitcnt lgkmcnt(0)")
    A("v_readfirstlane_b32 s27, v38")
    A("s_cmp_eq_u32 s27, 3")
    A("s_cbranch_scc0 L_nostat")
    C("the last K wave publishes the workgroup's maximum and sum (lane = head)")
    A("s_mov_b64 exec, 3")
    SB = 48
    A(f"ds_read_b128 {vr(SB,4)}, v34 offset:{L_STAT}")
    A(f"ds_read_b128 {vr(SB+4,4)}, v34 offset:{L_STAT+16}")
    A(f"v_mov_b32 v{SB+10}, s26"); A(f"v_mov_b32 v{SB+11}, s26")
    A("s_waitcnt lgkmcnt(0)")
    A(f"v_max3_f32 v{SB+8}, v{SB}, v{SB+2}, v{SB+4}")
    A(f"v_max_f32 v{SB+8}, v{SB+8}, v{SB+6}")
    for i in range(4): A(f"v_sub_f32 v{SB+2*i}, v{SB+2*i}, v{SB+8}")
    for i in range(4): A(f"v_mul_f32 v{SB+2*i}, s35, v{SB+2*i}")
    for i in range(4): A(f"v_exp_f32 v{SB+2*i}, v{SB+2*i}")
    A(f"v_mul_f32 v{SB+9}, v{SB}, v{SB+1}")
    for i in range(1, 4): A(f"v_fmac_f32 v{SB+9}, v{SB+2*i}, v{SB+1+2*i}")
    publish(SB+8, 33)
    A("L_nostat:")
    A("s_mov_b64 exec, -1")
    stamp(6)
    A("s_cmp_ge_u32 s21, 28")
    A("s_barrier")
    A("s_cbranch_scc1 L_kend")
    stamp(7)
    C("---------------------------------------------------------------- output projection")
    GS = 64; GO = 72; WT = 88; OS = 92; MS = 52
    OB = 100; WA = 116; D = 132; AT = 136; SA = 148; SB2 = 152
    def sload():
        gload(GS, 3, 26, "ws", 0, "sc1"); gload(GS+3, 1, 35, "dbg", 0, "sc1")
    def oload(j, dst=None):
        gload(GO + 4*j if dst is None else dst, 4, 28 if j & 2 else 25, "ws", 2048*(j & 1), "sc1")
    sload()
    for i in range(4): gdma(5 + i, "wo", 1024*i)
    A(f"s_mov_b32 s27, {SPIN}")
    A("s_barrier                         ; B3")
    cstamp("kb3")
    A("s_waitcnt vmcnt(4)")
    A("L_spoll:")
    A(f"v_cmp_ne_u32 vcc, s26, v{GS+2}")
    A(f"v_cmp_eq_u32 s[30:31], 0, v{GS+3}")
    A("s_or_b64 vcc, vcc, s[30:31]")
    A("s_cbranch_scc1 L_sagain")
    A("L_sok:")
    A("s_barrier")
    cstamp("oiss")
    for j in range(4): oload(j)
    stamp(8)
    C("weights of the 8 chunks: 2^(c*(max_c - max)) / total")
    def red8(dst, src, op_):
        A(f"{op_}_dpp v{dst}, v{src}, v{src} quad_perm:[1,0,3,2] row_mask:0xf bank_mask:0xf")
        A("s_nop 1")
        A(f"{op_}_dpp v{dst}, v{dst}, v{dst} quad_perm:[2,3,0,1] row_mask:0xf bank_mask:0xf")
        A(f"v_mov_b32 v{TT}, v{dst}")
        A("s_nop 1")
        A(f"v_permlane32_swap_b32 v{dst}, v{TT}")
        A(f"{op_} v{dst}, v{dst}, v{TT}")
    red8(M, GS, "v_max_f32")
    A(f"v_sub_f32 v{GS}, v{GS}, v{M}")
    A(f"v_mul_f32 v{GS}, s35, v{GS}")
    A(f"v_exp_f32 v{GS}, v{GS}")
    A(f"s_mov_b32 s27, {SPIN}")
    A(f"v_mul_f32 v{GS+1}, v{GS}, v{GS+1}")
    A("s_nop 1")
    red8(Lr, GS+1, "v_add_f32")
    A(f"v_rcp_f32 v{Lr}, v{Lr}")
    A("s_nop 1")
    for j in range(4): A(f"v_mul_f32_dpp v{WT+j}, v{GS}, v{Lr} quad_perm:[{j},{j},{j},{j}] row_mask:0xf bank_mask:0xf")
    A("s_waitcnt vmcnt(4)")
    A("s_barrier")
    for s in range(4):
        for e in range(2):
            A(f"ds_read_b64_tr_b16 {vr(WA + 4*s + 2*e, 2)}, v27 offset:{L_WO + s*4096 + e*512}")
    def ocheck(j, dst, src=None):
        g = GO + 4*j
        for i in range(4): A(f"v_xor_b32 v{g+i}, s{36+i}, v{(g if src is None else src)+i}")
        A(f"v_or3_b32 v{TT}, v{g}, v{g+1}, v{g+2}")
        A(f"v_or_b32 v{TT}, v{TT}, v{g+3}")
        A(f"v_cmp_ne_u32_sdwa {dst}, v{TT}, v37 src0_sel:BYTE_0 src1_sel:DWORD")
    C(f"s[{MS}+2j:{MS+1}+2j] = lanes of load j still without data; only those are read again")
    for j in range(4):
        A(f"s_waitcnt vmcnt({3-j})")
        ocheck(j, f"s[{MS+2*j}:{MS+1+2*j}]")
    stamp(16)
    A("L_otest:")
    A(f"s_or_b64 s[30:31], s[{MS}:{MS+1}], s[{MS+2}:{MS+3}]")
    A(f"s_or_b64 s[32:33], s[{MS+4}:{MS+5}], s[{MS+6}:{MS+7}]")
    A("s_or_b64 vcc, s[32:33], s[30:31]")
    A("s_cbranch_scc1 L_oagain")
    A("L_ogot:")
    A("s_mov_b64 exec, -1")
    cstamp("ogot")
    for j in range(4):
        g = GO + 4*j
        sel = f"op_sel:[0,{j&1},0] op_sel_hi:[1,{j&1},1]"
        for hh in range(2):
            if j == 0: A(f"v_pk_mul_f32 {vr(OS+2*hh,2)}, {vr(g+2*hh,2)}, {vr(WT,2)} op_sel_hi:[1,0]")
            else: A(f"v_pk_fma_f32 {vr(OS+2*hh,2)}, {vr(g+2*hh,2)}, {vr(WT+(j&2),2)}, {vr(OS+2*hh,2)} {sel}")
    note("s27", 14)
    stamp(9)
    halves(OS)
    A(f"ds_write_b32 v29, v{OS} offset:{L_OX}")
    A("s_waitcnt lgkmcnt(0)")
    cstamp("b4a")
    A("s_barrier")
    cstamp("b4")
    for s in range(4): A(f"ds_read_b128 {vr(OB+4*s,4)}, v30 offset:{L_OX + 64*s}")
    for s in range(4):
        A(f"s_waitcnt lgkmcnt({3-s})")
        mfma(D, OB + 4*s, WA + 4*s, None if s == 0 else D)
    A("s_mov_b32 vcc_lo, 0x00200020"); A("s_mov_b32 vcc_hi, 0x00200020")
    A("s_nop 5")
    C("lane = (batch g, column n).  First request: lanes 7 and 8 count; second: columns 7, 8 in lanes 6, 7, lane 5 counts")
    A(f"v_cndmask_b32 v{AT}, v{D}, 1.0, s[60:61]")
    A(f"v_cndmask_b32_dpp v{AT+2}, v{D}, v96, vcc row_shl:1 row_mask:0xf bank_mask:0xf")
    A(f"v_cvt_f64_f32 {vr(AT,2)}, v{AT}")
    cstamp("at0")
    gatomic(AT+4, AT, 31)
    A(f"v_cvt_f64_f32 {vr(AT+2,2)}, v{AT+2}")
    A("s_mov_b32 exec_lo, 0x00e000e0"); A("s_mov_b32 exec_hi, 0x00e000e0")
    gatomic(AT+6, AT+2, 32)
    A("s_not_b64 vcc, s[60:61]")
    A("s_or_b32 s27, s21, s3")
    A("s_cbranch_scc0 L_epoch")
    A("L_epoch_done:")
    A("s_mov_b64 exec, -1")
    stamp(10)
    A("s_waitcnt vmcnt(1)")
    A(f"v_add_f64 {vr(AT,2)}, {vr(AT,2)}, {vr(AT+4,2)}")
    A(f"v_cvt_f32_f64 v{AT}, {vr(AT,2)}")
    A("s_waitcnt vmcnt(0)")
    A(f"v_add_f64 {vr(AT+2,2)}, {vr(AT+2,2)}, {vr(AT+6,2)}")
    A(f"v_mov_b32_dpp v{TT}, v{AT} row_newbcast:7 row_mask:0xf bank_mask:0x3")
    A(f"v_cvt_f32_f64 v{AT+2}, {vr(AT+2,2)}")
    A("s_nop 0")
    A(f"v_mov_b32_dpp v{TT}, v{AT} row_newbcast:8 row_mask:0xf bank_mask:0xc")
    A(f"v_cndmask_b32_dpp v{AT}, v{AT+2}, v{AT}, vcc row_shr:1 row_mask:0xf bank_mask:0xf")
    A(f"v_cvt_pk_bf16_f32 v{AT}, v{AT}, v{AT}")
    A(f"v_cndmask_b32_dpp v{TT}, v{AT+2}, v{TT}, vcc row_newbcast:5 row_mask:0xf bank_mask:0xf")
    A(f"v_cmp_eq_f32 vcc, 0x42000000, v{TT}")
    cstamp("atret")
    stamp(11)
    A("s_and_b64 exec, exec, vcc")
    A("s_cbranch_scc0 L_kend")
    gstore(AT, 0, 1, "out")
    if stamps or op == "k15":
        A("s_waitcnt vmcnt(0)")
    A("L_kend:")
    stamp(15)
    if diag: finish()
    A("L_end:")
    A("s_endpgm")

    C("every wave of the group has read the old tag by now: leave this launch's tag for the next launch")
    A("L_epoch:")
    A("s_mov_b64 exec, 1")
    A("v_mov_b32 v20, s26"); A("v_mov_b32 v21, s50")
    gstore(20, 1, 21, "ws", G_E)
    A("s_branch L_epoch_done")

    C("---------------------------------------------------------------- O records missing: read them again")
    A("L_oagain:")
    A("s_sub_u32 s27, s27, 1")
    A("s_cbranch_scc1 L_ogot")
    cstamp("oag")
    A("s_cmp_eq_u64 s[30:31], 0")
    A("s_cbranch_scc1 L_ohi")
    A("s_cmp_eq_u64 s[32:33], 0")
    A("s_cbranch_scc0 L_oall")
    A(f"s_cmp_eq_u64 s[{MS}:{MS+1}], 0"); A("s_cbranch_scc1 L_tight1")
    A(f"s_cmp_eq_u64 s[{MS+2}:{MS+3}], 0"); A("s_cbranch_scc1 L_tight0")
    A("s_branch L_oall")
    A("L_ohi:")
    A(f"s_cmp_eq_u64 s[{MS+4}:{MS+5}], 0"); A("s_cbranch_scc1 L_tight3")
    A(f"s_cmp_eq_u64 s[{MS+6}:{MS+7}], 0"); A("s_cbranch_scc1 L_tight2")
    A("L_oall:")
    for j in range(4):
        A(f"s_mov_b64 exec, s[{MS+2*j}:{MS+1+2*j}]")
        A(f"s_cbranch_execz L_oskipa{j}")
        oload(j)
        A(f"L_oskipa{j}:")
    A("s_waitcnt vmcnt(0)")
    for j in range(4):
        A(f"s_mov_b64 exec, s[{MS+2*j}:{MS+1+2*j}]")
        A(f"s_cbranch_execz L_oskipb{j}")
        ocheck(j, f"s[{MS+2*j}:{MS+1+2*j}]")
        A(f"L_oskipb{j}:")
    A("s_branch L_otest")
    C("one load left: keep two reads of it in flight")
    for j in range(4):
        A(f"L_tight{j}:")
        A(f"s_mov_b64 exec, s[{MS+2*j}:{MS+1+2*j}]")
        oload(j, SA)
        A(f"L_tloop{j}:")
        oload(j, SB2)
        A("s_waitcnt vmcnt(1)")
        ocheck(j, "vcc", SA)
        A("s_cbranch_vccz L_ogot")
        oload(j, SA)
        A("s_sub_u32 s27, s27, 1")
        A("s_waitcnt vmcnt(1)")
        ocheck(j, "vcc", SB2)
        A("s_cbranch_vccz L_ogot")
        A(f"s_cbranch_scc0 L_tloop{j}")
        A("s_branch L_ogot")
    A("L_sagain:")
    A("s_sub_u32 s27, s27, 1")
    A("s_cbranch_scc1 L_sok")
    sload()
    A("s_waitcnt vmcnt(0)")
    A("s_branch L_spoll")

    C("---------------------------------------------------------------- Q records missing, or written on another XCD")
    A("L_qrare:")
    A(f"v_lshlrev_b32 v{TT}, 1, v{TT}")
    A(f"v_cmp_ne_u32 vcc, 0, v{TT}")
    A("s_cbranch_vccz L_qflush")
    A(f"s_cmp_eq_u32 s27, {SPIN - nf}")
    A("s_cbranch_scc1 L_qflush")
    A("L_qagain:")
    A("s_sub_u32 s27, s27, 1")
    A("s_cbranch_scc1 L_qok")
    qload()
    A("s_waitcnt vmcnt(0)")
    A("s_branch L_qpoll")
    C("a long wait or a foreign writer: write this workgroup's own Q record through to memory")
    A("L_qflush:")
    own_q("s29")
    A("v_lshl_add_u32 v39, v2, 4, s29")
    gload(48, 4, 39, "ws", 0, "sc1")
    A("s_waitcnt vmcnt(0)")
    gstore(48, 4, 39, "ws", 0, "sc1")
    A("s_cbranch_vccnz L_qagain")
    for i in range(8): A(f"v_and_b32 v{QG+i}, 0xfffffe00, v{QG+i}")
    A("v_mov_b32 v38, 0x101")
    A("s_branch L_qok")

    C("================================================================ V waves: one 32-deep step of the q projection each")
    role[0] = "v"
    A("L_qproj:")
    if not e0:
        group_base()
        A("s_load_dword s26, s[18:19], s50")
    own_q("s55")
    if qpt:
        A("s_cmp_eq_u32 s33, 2"); A("s_cbranch_scc0 L_noqpt")
        A("v_lshl_add_u32 v8, v8, 7, s55")
        A("s_mov_b64 exec, 0xff")
        gload(1, 1, 8, "ws", 0, "sc1")
        A("s_mov_b64 exec, -1")
        A("L_noqpt:")
    C("workgroups without projection work clear the accumulators of one column tile each")
    A("s_sub_u32 s52, s2, 224")
    A("s_xor_b32 s29, s33, 3"); A("s_lshl_b32 s29, s29, 8"); A("s_or_b32 s51, s52, s29")
    A("s_cmp_lt_u32 s51, 28")
    A("s_cbranch_scc0 L_noinit")
    for i in range(4): A(f"v_mov_b32 v{28+i}, 0")
    A("s_mul_i32 s29, s52, 3072"); A(f"s_add_u32 s29, s29, {WS_ACC}")
    A("v_lshrrev_b32 v19, 2, v2"); A("v_lshlrev_b32 v19, 8, v19"); A("v_lshlrev_b32 v12, 4, v10")
    A("v_add3_u32 v19, v19, v12, s29")
    A("s_mov_b32 exec_hi, 0xffff")
    gstore(28, 4, 19, "ws", 0, "sc1")
    A("s_mov_b32 exec_hi, -1")
    A("L_noinit:")
    A("v_bfe_u32 v12, v2, 2, 2           ; n >> 2")
    A("v_lshlrev_b32 v5, 7, v12")
    A("v_lshl_add_u32 v5, v10, 3, v5")
    A("v_lshl_add_u32 v5, v11, 10, v5")
    A("v_add_u32 v5, m0, v5")
    A("v_lshlrev_b32 v7, 8, v10"); A("v_lshl_add_u32 v7, v12, 6, v7"); A("v_lshlrev_b32 v8, 4, v4")
    A("v_add3_u32 v7, v7, v8, s55")
    A("v_sub_u32 v8, v4, v11")
    A("v_lshl_add_u32 v12, v8, 2, v12")
    for t in range(4): A(f"v_cmp_eq_u32 s[{60+2*t}:{61+2*t}], {t}, v12")
    A("s_lshl_b32 s27, s33, 10")
    A("v_lshlrev_b32 v13, 4, v2")
    A("v_add_u32 v14, s27, v13")
    A("v_mov_b32 v15, 0"); A("v_mov_b32 v16, 1")
    A("v_mov_b32 v17, 0xfffffe00")
    A("v_mov_b32 v18, 0xffffff00")
    XM = 40; WA = 56; QD = 20; QP = 72
    xcd_bits()
    A("s_waitcnt lgkmcnt(0)")
    tags()
    A("s_cmp_lt_u32 s51, 28")
    A("s_waitcnt vmcnt(1)")
    A("s_cbranch_scc1 L_wqin")
    if qpt:
        A("s_cmp_eq_u32 s33, 2"); A("s_cbranch_scc1 L_wqin")
    A("s_waitcnt vmcnt(0)")
    A("L_wqin:")
    for t in range(4):
        for e in range(2):
            A(f"ds_read_b64_tr_b16 {vr(WA+4*t+2*e,2)}, v5 offset:{512*e + 32*t}")
    C("x masked per column tile: the four tiles accumulate into different columns of one result")
    for t in range(4):
        for i in range(4): A(f"v_cndmask_b32 v{XM+4*t+i}, 0, v{XR+i}, s[{60+2*t}:{61+2*t}]")
    for t in range(4):
        A(f"s_waitcnt lgkmcnt({6-2*t})")
        mfma(QD, WA + 4*t, XM + 4*t, None if t == 0 else QD)
    A("s_nop 7")
    A(f"ds_write_b128 v14, {vr(QD,4)} offset:{L_RED}")
    A("s_mov_b64 exec, 1")
    A(f"ds_add_rtn_u32 v16, v15, v16 offset:{L_CNT+4}")
    A("s_mov_b64 exec, -1")
    A("s_waitcnt lgkmcnt(0)")
    A("v_readfirstlane_b32 s27, v16")
    A("s_cmp_eq_u32 s27, 3")
    A("s_cbranch_scc0 L_v")
    C("the last wave adds the four steps and publishes the record")
    for u in range(4): A(f"ds_read_b128 {vr(QP+4*u,4)}, v13 offset:{L_RED + 1024*u}")
    sum4(QP)
    for j in range(4): A(f"v_and_or_b32 v{QP+j}, v{QP+j}, v17, s{56+j}")
    gstore(QP, 4, 7, "ws")
    A("L_v:")
    if bq: A("s_barrier                         ; Bq")
    stamp(2)
    VV = 100
    A("s_setprio 0")
    kvbase("s33")
    A("v_lshlrev_b32 v9, 4, v3")
    A("v_lshlrev_b32 v11, 10, v4")
    A("v_add3_u32 v9, v9, v11, s23")
    C("v12..v15: lane (head, i = n&7) keeps element i of its 8, so that row (head, i) picks column 8n' + i of V")
    A("v_and_b32 v16, 1, v2")
    A("v_lshlrev_b32 v16, 4, v16")
    A("v_mov_b32 v17, 0xffff")
    A("v_lshlrev_b32 v16, v16, v17")
    A("v_bfe_u32 v17, v2, 1, 2")
    for jj in range(4):
        A(f"v_cmp_eq_u32 vcc, {jj}, v17")
        A("s_nop 1")
        A(f"v_cndmask_b32 v{12+jj}, 0, v16, vcc")
    A("v_bfe_u32 v16, v2, 3, 1           ; head")
    A("v_lshlrev_b32 v25, 5, v16")
    A("s_lshl_b32 s27, s33, 3")
    A("v_add_u32 v26, s27, v25")
    A("s_lshl_b32 s27, s33, 11")
    A("v_lshl_add_u32 v27, v2, 4, s27")
    A("s_and_b32 s31, s33, 1"); A("s_lshl_b32 s27, s31, 10")
    A("s_lshr_b32 s29, s33, 1"); A("s_lshl_b32 s29, s29, 9"); A("s_add_u32 s27, s27, s29")
    A("v_lshl_add_u32 v16, v2, 4, s27")
    A("s_lshr_b32 s21, s2, 3             ; r")
    A("s_lshl2_add_u32 s27, s21, s33"); A("s_lshl_b32 s27, s27, 9")
    A("s_add_u32 s27, s27, s50"); A(f"s_add_u32 s27, s27, {G_O}")
    A("v_lshl_add_u32 v17, v2, 4, s27    ; O store")
    A("s_mov_b32 s35, 0x3db8aa3b")
    A("v_mov_b32 v5, 0")
    A("v_mov_b32 v11, v17")
    A("s_lshl_b32 s27, s21, 7"); A("s_add_u32 s27, s27, s50"); A(f"s_add_u32 s27, s27, {G_S}")
    A("v_writelane_b32 v11, s27, 1")
    A("s_cmp_eq_u32 s33, 0"); A("s_cselect_b32 s30, 2, 0")
    if ptpos == 1: A("s_or_b32 s30, s30, 0x01010101")
    A("s_cmp_lt_u32 s51, 28")
    A("s_waitcnt vmcnt(0)")
    A("s_cbranch_scc0 L_noflag")
    A("s_lshl_b32 s29, s52, 2")
    A("v_mov_b32 v19, s29"); A("v_mov_b32 v28, 1")
    A("s_mov_b64 exec, 1")
    gstore(28, 1, 19, "dbg", 0, "sc1")
    A("L_noflag:")
    if ptpos == 5:
        A("s_lshl2_add_u32 s29, s21, s33"); A("s_lshl_b32 s29, s29, 9"); A("s_add_u32 s29, s29, s50"); A(f"s_add_u32 s29, s29, {G_O}")
        A("s_add_u32 s64, s18, s29"); A("s_addc_u32 s65, s19, 0")
        for i in range(0, 512, sstep): A(f"s_load_dword s34, s[64:65], {i}")
        A("s_load_dword s34, s[18:19], s27")
    elif ptpos not in (4, 6, 7):
        C("own O and S lines become L2-resident before they are written (values unused)")
        A("s_mov_b32 exec_lo, s30"); A("s_mov_b32 exec_hi, 0")
        if ptpos != 1: A("s_cbranch_execz L_nopt")
        gload(6, 1, 11, "ws", 0, "sc1")
        if ptpos != 1: A("L_nopt:")
    A("s_mov_b64 exec, -1")
    stamp(1)
    rel = {}
    tot = 0
    for i, (kk, vv) in enumerate(steps):
        rel[tot] = i; tot += vv
    for idx in range(16):
        if idx in rel:
            A("s_barrier                         ; Bk")
            if idx == 0: stamp(3)
        if idx >= max(dv, tot): A(f"s_waitcnt vmcnt({dv-1})")
        elif idx == tot: A(f"s_waitcnt vmcnt({tot-1})")
        U, j = idx >> 2, idx & 3
        gload(VV + 4*idx, 4, 9, "v", j*256, "nt")
        if j == 3 and U < 3: ustep(9, U)
    stamp(4)
    A("s_barrier                         ; Bp")
    stamp(5)
    S = 28; TT = 24; ST = 40; VA = 56; ACC = 88
    A(f"ds_read_b32 v{ST+9}, v5 offset:{L_CNT}")
    A(f"ds_read_b128 {vr(ST,4)}, v25 offset:{L_STAT}")
    A(f"ds_read_b128 {vr(ST+4,4)}, v25 offset:{L_STAT+16}")
    A(f"ds_read_b32 v{ST+8}, v26 offset:{L_STAT}")
    A(f"ds_read_b128 {vr(S,4)}, v27 offset:{L_RED}")
    A(f"ds_read_b128 {vr(S+4,4)}, v27 offset:{L_RED+1024}")
    A("s_waitcnt lgkmcnt(2)")
    A(f"v_readfirstlane_b32 s54, v{ST+9}")
    C("rescale from the wave's maximum to the workgroup's")
    A(f"v_max3_f32 v{TT}, v{ST}, v{ST+2}, v{ST+4}")
    A(f"v_max_f32 v{TT}, v{TT}, v{ST+6}")
    A(f"v_sub_f32 v{TT}, v{ST+8}, v{TT}")
    A(f"v_mul_f32 v{TT}, s35, v{TT}")
    A(f"v_exp_f32 v{TT}, v{TT}")
    A("s_waitcnt lgkmcnt(0)")
    for i in range(8): A(f"v_mul_f32 v{S+i}, v{S+i}, v{TT}")
    for i in range(8): A(f"v_cvt_pk_bf16_f32 v{S+i}, v{S+i}, v{S+i}")
    def amask(t):
        for j in range(4): A(f"v_and_b32 v{VA+4*t+j}, v{S+t}, v{12+j}")
    A("s_lshr_b32 s54, s54, 8")
    amask(0); amask(1)
    stamp(6)
    for i in range(16):
        t, h = i >> 1, i & 1
        if i >= 16 - dv: A(f"s_waitcnt vmcnt({15-i})")
        if i == 15: cstamp("vland")
        mfma(ACC + 4*h, VA + 4*t, VV + 4*i, None if t == 0 else ACC + 4*h)
        if i < 6: amask(i + 2)
    A("s_nop 5")
    A(f"ds_write_b128 v27, {vr(ACC,4)} offset:{L_RED}")
    A("s_nop 0")
    A(f"ds_write_b128 v27, {vr(ACC+4,4)} offset:{L_RED+1024}")
    A("s_waitcnt lgkmcnt(0)")
    stamp(7)
    cstamp("b3a")
    A("s_barrier")
    cstamp("b3")
    A("s_mov_b32 exec_hi, 0")
    R = 40
    for i in range(4): A(f"ds_read_b128 {vr(R+4*i,4)}, v16 offset:{L_RED + 2048*i}")
    sum4(R)
    for j in range(4): A(f"v_and_or_b32 v{R+j}, v{R+j}, v18, s{36+j}")
    cstamp("o1st")
    publish(R, 17, lambda: A("s_barrier                         ; B3b"))
    A("s_barrier                         ; Bt")
    stamp(8)
    finish()
    A("L_codeend:")

    nv = 172 if stamps else 164
    A('.section .rodata,"a"'); A(".p2align 6"); A(f".amdhsa_kernel {NAME}")
    A(f"  .amdhsa_next_free_vgpr {nv}"); A(f"  .amdhsa_next_free_sgpr {100 if safe else 68}"); A(f"  .amdhsa_accum_offset {nv}")
    A("  .amdhsa_group_segment_fixed_size 0"); A("  .amdhsa_kernarg_size 64"); A("  .amdhsa_user_sgpr_count 2")
    A("  .amdhsa_user_sgpr_kernarg_segment_ptr 1"); A("  .amdhsa_system_sgpr_workgroup_id_x 1")
    A("  .amdhsa_float_denorm_mode_32 3")
    A(".end_amdhsa_kernel")
    out = []
    for l in L:
        if l.endswith(":") or l.startswith(".") or l.startswith("; @") or l.startswith("  ."):
            out.append(l)
        else:
            out.append("    " + l.rstrip())
    return HEADER + "\n".join(out) + "\n"


if __name__ == "__main__":
    kw = {}
    for a in sys.argv[2:]:
        k, v = a.split("=")
        kw[k] = eval(v) if v in ("True", "False") or v.isdigit() or v.startswith("0x") else v.replace("+", " ")
    open(sys.argv[1], "w").write(gen(**kw))
```

```python
import sys, os
sys.path.insert(0, os.path.dirname(os.path.abspath(__file__)))
import oprobe

NAME = "standalone__sliding_block_cached__decode_kernel"

HEADER = """; Kernarg layout for this problem (64 bytes, ptrs only, base s[0:1]):
;
; Q and S records in d_ws carry a tag (previous launch's tag + 0x01010101) in every 16 bytes; an O record is
"""

G_E = 0
G_O = 0x1000
G_Q = 0x9000
G_S = 0x11000
WS_ST = 0x4000000

L_CNT = 0
L_STAT = 64
L_WQ = 1024
L_RED = 16384
L_WO = 24576
L_Q = 40960
L_OX = 42240
L_END = 43520

BUF = dict(x=4, k=6, v=8, wq=10, wo=12, out=14, dbg=16, ws=18)
SIZE = dict(x=3584, k=67108864, v=67108864, wq=3670016, wo=3670016, out=3584, dbg=256, ws=268435456)
SRD = dict(x=68, k=72, v=76, wq=80, wo=84, out=88, ws=92, dbg=96)

SPIN = 100000


def gen(safe=False, stamps=False, only="", pmask=0, pval=0, amp=0, op="", omin=False, cyc="", fakex=False,
        dk=7, dv=8, hs="6:8", gq=0, nf=64, pfm=31, kb="W0_W1_C0_C1_C2_U0_U1", gsh=17, acc=0x20000, gbase=0,
        kc0=3, vprio=2, wsh=False, bs=False, fakeb=False, trl=False, wo0=0, jit=0):
    kp = {b: 12 + i for i, b in enumerate(kb.split("_"))}
    assert sorted(kp) == sorted("W0 W1 C0 C1 C2 U0 U1".split())
    if gsh == 17: acc = max(acc, 0x100000)
    WS_ACC = acc
    L = []
    A = L.append
    diag = stamps or op

    def C(text):
        A("; " + text)

    def vr(r, n=1):
        return f"v{r}" if n == 1 else f"v[{r}:{r+n-1}]"

    W = {1: "dword", 2: "dwordx2", 3: "dwordx3", 4: "dwordx4"}

    def gload(dst, n, voff, buf, imm=0, fl=""):
        if safe:
            A(f"buffer_load_{W[n]} {vr(dst,n)}, v{voff}, s[{SRD[buf]}:{SRD[buf]+3}], 0 offen offset:{imm} {fl}")
        else:
            A(f"global_load_{W[n]} {vr(dst,n)}, v{voff}, s[{BUF[buf]}:{BUF[buf]+1}] offset:{imm} {fl}")

    def gdma(voff, buf, imm=0, fl="nt"):
        if safe:
            A(f"buffer_load_dwordx4 v{voff}, s[{SRD[buf]}:{SRD[buf]+3}], 0 offen offset:{imm} {fl} lds")
        else:
            A(f"global_load_lds_dwordx4 v{voff}, s[{BUF[buf]}:{BUF[buf]+1}] offset:{imm} {fl}")

    def gstore(src, n, voff, buf, imm=0, fl=""):
        w = "short" if n == 0 else W[n]
        n = max(n, 1)
        if safe:
            A(f"buffer_store_{w} {vr(src,n)}, v{voff}, s[{SRD[buf]}:{SRD[buf]+3}], 0 offen offset:{imm} {fl}")
        else:
            A(f"global_store_{w} v{voff}, {vr(src,n)}, s[{BUF[buf]}:{BUF[buf]+1}] offset:{imm} {fl}")

    def gatomic(dst, src, voff):
        if safe:
            for i in range(2): A(f"v_mov_b32 v{dst+i}, v{src+i}")
            A(f"buffer_atomic_add_f64 {vr(dst,2)}, v{voff}, s[{SRD['ws']}:{SRD['ws']+3}], 0 offen sc0 sc1")
        else:
            A(f"global_atomic_add_f64 {vr(dst,2)}, v{voff}, {vr(src,2)}, s[18:19] sc0 sc1")

    def publish(src, n, voff, between=None):
        uid[0] += 1
        gstore(src, n, voff, "ws")
        if between: between()
        A("s_cmp_eq_u32 s54, 0")
        A(f"s_cbranch_scc1 L_pub{uid[0]}")
        A("s_waitcnt vmcnt(0)")
        gstore(src, n, voff, "ws", 0, "sc1")
        A(f"L_pub{uid[0]}:")

    STB = 168
    role = ["k"]
    uid = [0]

    def kernarg_ready():
        A("s_waitcnt lgkmcnt(0)")
        if jit: jitter()
        if op: A("s_mov_b32 s46, s42")
        if stamps: A(f"v_writelane_b32 v{STB}, s42, 0")
        if safe:
            for b, s in SRD.items():
                A(f"s_mov_b32 s{s}, s{BUF[b]}"); A(f"s_mov_b32 s{s+1}, s{BUF[b]+1}")
                A(f"s_mov_b32 s{s+2}, {SIZE[b]}"); A(f"s_mov_b32 s{s+3}, 0x20000")

    def jitter():
        uid[0] += 1; u = uid[0]
        A("s_cselect_b32 s44, 1, 0")
        A("s_memtime s[40:41]"); A("s_waitcnt lgkmcnt(0)")
        A(f"s_lshl3_add_u32 s41, s2, s3"); A(f"s_add_u32 s41, s41, {jit * 977 + u * 131}"); A("s_xor_b32 s41, s41, s40")
        A("s_mul_i32 s41, s41, 0x9E3779B1"); A("s_lshr_b32 s45, s41, 29"); A("s_cmp_lt_u32 s45, 5"); A(f"s_cbranch_scc1 L_jx{u}")
        A(f"s_bfe_u32 s41, s41, {((jit % 3 + 5) << 16) | 16}")
        A(f"L_j{u}:"); A("s_sleep 1"); A("s_sub_u32 s41, s41, 1"); A(f"s_cbranch_scc0 L_j{u}")
        A(f"L_jx{u}:")
        A("s_cmp_eq_u32 s44, 1")

    def stamp(i):
        if jit: jitter()
        if op == f"{role[0]}{i}":
            A("s_memrealtime s[42:43]")
            A("s_waitcnt lgkmcnt(0)")
        if stamps and (only == "" or f"{role[0]}{i}" in str(only).split(",")):
            A("s_memrealtime s[40:41]")
            A("s_waitcnt lgkmcnt(0)")
            A(f"v_writelane_b32 v{STB}, s40, {i}")

    def cstamp(name):
        if jit: jitter()
        if cyc and name in cyc.split(","):
            k = cyc.split(",").index(name)
            A(f"s_memtime s[{64+2*k}:{65+2*k}]")

    def note(sreg, i):
        if stamps: A(f"v_writelane_b32 v{STB}, {sreg}, {i}")

    def finish():
        if stamps:
            if cyc:
                A("s_waitcnt lgkmcnt(0)"); A("s_sub_u32 s40, s66, s64"); A(f"v_writelane_b32 v{STB}, s40, 20")
            A("s_mov_b64 exec, -1")
            A("s_lshl3_add_u32 s40, s2, s3"); A("s_lshl_b32 s40, s40, 7")
            A(f"s_add_u32 s40, s40, {WS_ST}")
            A(f"v_lshl_add_u32 v{STB+1}, v2, 2, s40")
            A("s_mov_b32 exec_hi, 0")
            gstore(STB, 1, STB + 1, "ws")
        if op:
            uid[0] += 1
            oprobe.emit_record(A, gstore, WS_ST)
            if role[0] == "k": oprobe.emit_report(A, gload, WS_ST, uid[0], amp, pmask, pval, omin)
        A("s_endpgm")

    def mfma(d, a, b, c=None):
        cs = "0" if c is None else vr(c, 4)
        A(f"v_mfma_f32_16x16x32_bf16 {vr(d,4)}, {vr(a,4)}, {vr(b,4)}, {cs}")

    def group_base():
        A(f"s_lshl_b32 s50, s20, {gsh}")
        if gbase: A(f"s_add_u32 s50, s50, {gbase}")

    def tags():
        C("s26 = tag, s56..s59 = its bytes plus one bit each of this XCD's id (Q records)")
        A("s_add_u32 s26, s26, 0x01010101")
        for j in range(4):
            A(f"s_bfe_u32 s27, s26, {0x80000 + 8*j}"); A(f"s_or_b32 s{56+j}, s{56+j}, s27")

    def pick_masks(d, t0, t1):
        C(f"v{d}..v{d+3}: lane n keeps element n&7 of its 8, so that matrix row n picks element n&7 of every 16-byte chunk")
        A(f"v_and_b32 v{t0}, 1, v2")
        A(f"v_lshlrev_b32 v{t0}, 4, v{t0}")
        A(f"v_mov_b32 v{t1}, 0xffff")
        A(f"v_lshlrev_b32 v{t0}, v{t0}, v{t1}")
        A(f"v_bfe_u32 v{t1}, v2, 1, 2")
        for jj in range(4):
            A(f"v_cmp_eq_u32 vcc, {jj}, v{t1}")
            A("s_nop 1")
            A(f"v_cndmask_b32 v{d+jj}, 0, v{t0}, vcc")

    def xcd_bits():
        A("s_getreg_b32 s53, hwreg(HW_REG_XCC_ID, 0, 4)")
        if fakex: A("s_bfe_u32 s53, s2, 0x10005")
        for j in range(4):
            A(f"s_lshl_b32 s{56+j}, s53, {8-j}"); A(f"s_and_b32 s{56+j}, s{56+j}, 0x100")

    def xred(reg, tmp, op_):
        for sw in ("v_permlane32_swap_b32", "v_permlane16_swap_b32"):
            A(f"v_mov_b32 v{tmp}, v{reg}")
            A("s_nop 1")
            A(f"{sw} v{reg}, v{tmp}")
            A(f"{op_} v{reg}, v{reg}, v{tmp}")

    def sum4(r):
        A("s_waitcnt lgkmcnt(2)")
        A(f"v_pk_add_f32 {vr(r,2)}, {vr(r,2)}, {vr(r+4,2)}")
        A(f"v_pk_add_f32 {vr(r+2,2)}, {vr(r+2,2)}, {vr(r+6,2)}")
        A("s_waitcnt lgkmcnt(0)")
        A(f"v_pk_add_f32 {vr(r+8,2)}, {vr(r+8,2)}, {vr(r+12,2)}")
        A(f"v_pk_add_f32 {vr(r+10,2)}, {vr(r+10,2)}, {vr(r+14,2)}")
        A(f"v_pk_add_f32 {vr(r,2)}, {vr(r,2)}, {vr(r+8,2)}")
        A(f"v_pk_add_f32 {vr(r+2,2)}, {vr(r+2,2)}, {vr(r+10,2)}")

    def halves(r, nop=True):
        if nop: A("s_nop 1")
        A(f"v_permlane32_swap_b32 v{r}, v{r+2}")
        A(f"v_permlane32_swap_b32 v{r+1}, v{r+3}")
        A(f"v_pk_add_f32 {vr(r,2)}, {vr(r,2)}, {vr(r+2,2)}")
        A(f"v_cvt_pk_bf16_f32 v{r}, v{r}, v{r+1}")

    def kvbase(wreg):
        C("s23 = byte offset of this wave's first block of 8 keys, s25 = step to the next block")
        A("s_lshl3_add_u32 s23, s22, s20")
        A("s_lshl_b32 s23, s23, 21")
        if kb == "W0_W1_C0_C1_C2_U0_U1":
            A(f"s_lshl2_add_u32 s25, s24, {wreg}")
            A("s_lshl_b32 s25, s25, 12")
            A("s_add_u32 s23, s23, s25")
        else:
            assert kp["W0"] == 12 and kp["W1"] == 13
            A(f"s_lshl2_add_u32 s27, s24, {wreg}")
            src = ["W0", "W1", "C0", "C1", "C2"]
            i = 0
            while i < 5:
                j = i
                while j + 1 < 5 and kp[src[j+1]] == kp[src[j]] + 1: j += 1
                A(f"s_bfe_u32 s25, s27, {((j - i + 1) << 16) | i}"); A(f"s_lshl_b32 s25, s25, {kp[src[i]]}"); A("s_add_u32 s23, s23, s25")
                i = j + 1
        A("s_add_u32 s23, s23, 0x180000")
        A(f"s_mov_b32 s25, {1 << kp['U0']}")

    def ustep(reg, U):
        d = (1 << kp["U1"]) - (1 << kp["U0"])
        if U == 1 and d != 1 << kp["U0"]: A(f"v_add_u32 v{reg}, {d & 0xffffffff}, v{reg}")
        else: A(f"v_add_u32 v{reg}, s25, v{reg}")

    def own_q(dst):
        A(f"s_lshl2_add_u32 {dst}, s24, s22"); A(f"s_lshl_b32 {dst}, {dst}, 10")
        A(f"s_add_u32 {dst}, {dst}, s50"); A(f"s_add_u32 {dst}, {dst}, {G_Q}")

    steps = [tuple(map(int, x.split(":"))) for x in hs.split(",")]

    A(f"; @launch grid=(256,1,1) block=(512,1,1) lds={L_END}")
    A('.amdgcn_target "amdgcn-amd-amdhsa--gfx950"')
    A(".text"); A(f".globl {NAME}"); A(".p2align 8"); A(f".type {NAME},@function"); A(f"{NAME}:")
    if diag:
        A("s_memrealtime s[42:43]")
    A("s_load_dwordx16 s[4:19], s[0:1], 0")
    A("s_cmpk_ge_u32 s2, 0x100")
    A("s_cbranch_scc1 L_end")
    A("v_readfirstlane_b32 s3, v0")
    A("v_and_b32 v2, 63, v0              ; lane")
    A("v_and_b32 v3, 15, v0              ; n = lane & 15")
    A("v_bfe_u32 v4, v0, 4, 2            ; g = lane >> 4")
    A("v_and_b32 v10, 3, v0")
    A("s_and_b32 s20, s2, 7              ; hkv")
    A("s_lshr_b32 s22, s2, 6             ; r >> 3")
    A("s_bfe_u32 s24, s2, 0x30003        ; r & 7")
    A("s_lshr_b32 s3, s3, 6              ; wave")
    A("s_cmp_lt_u32 s3, 4")
    A("s_cbranch_scc1 L_k")

    C("---------------------------------------------------------------- V waves: wq and x go first")
    XR = 24
    if pfm:
        A(f"s_and_b32 s27, s2, {pfm << 3}"); A("s_cbranch_scc1 L_nopf")
    A("s_getpc_b64 s[30:31]")
    A("L_pc:")
    A("v_lshlrev_b32 v5, 5, v0")
    A("v_subrev_u32 v5, 8192, v5")
    A("v_min_u32 v5, L_codeend-L_pc-4, v5")
    A("global_load_dword v6, v5, s[30:31]")
    A("L_nopf:")
    A("s_setprio 3")
    A("v_mov_b32 v8, 0")
    A("v_mov_b32 v9, 0")
    A("ds_write2_b64 v8, v[8:9], v[8:9] offset0:0 offset1:1")
    A("s_and_b32 s33, s3, 3")
    A("s_cmp_eq_u32 s33, 3")
    A("s_cselect_b32 s34, 1, 3")
    A("v_and_b32 v11, s34, v4")
    A("s_mul_i32 s25, s22, 224")
    A("s_lshl_b32 s27, s33, 6")
    A("s_add_u32 s25, s25, s27")
    A("v_mul_u32_u24 v5, 896, v10")
    A("v_lshlrev_b32 v7, 4, v11")
    A("v_add3_u32 v5, v5, v7, s25        ; x offset")
    A("s_lshl3_add_u32 s27, s20, s24")
    A("s_lshl_b32 s27, s27, 7")
    A("s_lshl_b32 s25, s25, 12")
    A("s_add_u32 s25, s25, s27")
    A("v_lshrrev_b32 v7, 3, v2")
    A("v_lshlrev_b32 v7, 13, v7")
    A("v_and_b32 v8, 7, v2")
    A("v_lshlrev_b32 v9, 4, v8")
    A("v_add3_u32 v7, v7, v9, s25")
    A("s_lshl_b32 s27, s33, 12")
    A(f"s_add_u32 m0, s27, {L_WQ}")
    A(f"s_mov_b32 s25, {65536-1024}")
    C("the group's records become L2-resident before they are written: lines i + 128*lane, i = 4r + u (values unused)")
    group_base()
    A("s_lshr_b32 s21, s2, 3             ; r")
    A("s_lshl2_add_u32 s27, s21, s33")
    A("s_cmp_lt_u32 s27, 32")
    A("s_cselect_b32 s30, 31, 15")
    A("s_lshl_b32 s27, s27, 7"); A("s_add_u32 s27, s27, s50"); A(f"s_add_u32 s27, s27, {G_O}")
    A("v_lshl_add_u32 v12, v8, 14, s27")
    A("s_mov_b32 exec_lo, s30"); A("s_mov_b32 exec_hi, 0")
    A("s_cmp_eq_u32 s33, 3")
    kernarg_ready()
    gload(1, 1, 12, "ws", 0, "sc1")
    A("s_mov_b64 exec, -1")
    A("s_load_dword s26, s[18:19], s50")
    gdma(7, "wq", 0)
    A("v_add_u32 v7, s25, v7")
    gdma(7, "wq", 1024)
    A("s_cbranch_scc1 L_u3")
    A("v_add_u32 v7, s25, v7")
    gdma(7, "wq", 2048)
    A("v_add_u32 v7, s25, v7")
    gdma(7, "wq", 3072)
    A("L_u3:")
    gload(XR, 4, 5, "x")
    A("s_barrier                         ; B0")
    A("s_branch L_qproj")

    C("================================================================ K waves")
    A("L_k:")
    VK = 100
    kvbase("s3")
    A("v_lshrrev_b32 v5, 1, v3")
    A("v_lshlrev_b32 v5, 9, v5")
    A("v_and_b32 v7, 1, v2")
    A("v_lshl_add_u32 v6, v7, 2, v4")
    A("v_lshlrev_b32 v6, 4, v6")
    A("v_add3_u32 v97, v5, v6, s23")

    def kconst():
        C("addresses for later, computed while the first loads are in flight")
        group_base()
        A("s_load_dword s26, s[18:19], s50")
        A("s_lshr_b32 s21, s2, 3             ; r")
        C("Q gather: record (2w + (g&1))*4 + 2*(g>>1) + j, batch r>>3, columns 4n..")
        A("s_lshl_b32 s27, s3, 13"); A("s_lshl_b32 s29, s22, 8"); A("s_add_u32 s27, s27, s29")
        A("s_add_u32 s27, s27, s50"); A(f"s_add_u32 s27, s27, {G_Q}")
        A("v_and_b32 v12, 1, v4"); A("v_lshrrev_b32 v13, 1, v4")
        A("v_lshlrev_b32 v9, 12, v12"); A("v_lshl_add_u32 v9, v13, 11, v9"); A("v_lshlrev_b32 v14, 4, v3")
        A("v_add3_u32 v9, v9, v14, s27")
        C("q write: (w>>1)*576 + (w&1)*256 + (g&1)*128 + n*8 + (g>>1)*4 ; q read: h*576 + 64*((n>>2)&1) + 16*g")
        A("s_lshr_b32 s27, s3, 1"); A("s_mul_i32 s27, s27, 576"); A("s_and_b32 s29, s3, 1"); A("s_lshl_b32 s29, s29, 8"); A("s_add_u32 s27, s27, s29")
        A("v_lshlrev_b32 v15, 7, v12"); A("v_lshl_add_u32 v15, v13, 2, v15"); A("v_lshlrev_b32 v16, 3, v3")
        A("v_add3_u32 v15, v15, v16, s27")
        A("v_bfe_u32 v6, v2, 3, 1            ; head")
        A("v_mul_u32_u24 v17, 576, v6")
        A("v_and_b32 v7, 4, v2")
        A("v_add_u32 v7, v7, v4")
        A("v_lshl_add_u32 v17, v7, 4, v17")
        A("s_lshl_b32 s27, s3, 3")
        A("v_lshl_add_u32 v19, v6, 5, s27")
        A("s_lshl_b32 s27, s3, 11")
        A("v_lshl_add_u32 v36, v2, 4, s27")
        A("s_and_b32 s48, s21, 3")
        A("s_lshr_b32 s49, s21, 2")
        C("wo: load i of wave w brings rows 32w + 8i + (lane>>3), 16-byte chunk (lane&7) ^ (2*(g&1) + 4*(i&1))")
        A("s_lshl2_add_u32 s27, s20, s48")
        A("s_lshl2_add_u32 s27, s27, s3")
        A("s_mul_i32 s27, s27, 28672")
        A("s_min_u32 s29, s49, 6"); A("s_lshl_b32 s29, s29, 7"); A("s_add_u32 s27, s27, s29")
        A("v_and_b32 v35, 7, v2"); A("v_lshlrev_b32 v6, 1, v12"); A("v_xor_b32 v5, v35, v6"); A("v_lshlrev_b32 v5, 4, v5")
        A("v_lshrrev_b32 v31, 3, v2"); A("v_mul_u32_u24 v7, 896, v31")
        A("v_xor_b32 v6, 64, v5")
        A("v_add3_u32 v5, v5, v7, s27")
        A(f"s_add_u32 s27, s27, {7168-1024}")
        A("v_add3_u32 v6, v6, v7, s27")
        A(f"v_add_u32 v7, {2*(7168-1024)}, v5")
        A(f"v_add_u32 v8, {2*(7168-1024)}, v6")
        A("s_lshl_b32 s27, s3, 12"); A(f"s_add_u32 m0, s27, {L_WO}")
        C("O gather: wave = batch, record 8w + 2g + j, slice = row group, 16 bytes at n")
        A("s_lshl_b32 s27, s3, 13"); A("s_lshl_b32 s29, s48, 8"); A("s_add_u32 s27, s27, s29")
        A("s_add_u32 s27, s27, s50"); A(f"s_add_u32 s27, s27, {G_O}")
        A("v_lshlrev_b32 v25, 11, v4"); A("v_add3_u32 v25, v25, v14, s27")
        C("S gather: record 8w + 2g + (lane&1), head = row group >> 1")
        A(f"s_add_u32 s32, s50, {G_S}")
        A("s_lshl_b32 s27, s3, 10"); A("s_lshr_b32 s29, s48, 1"); A("s_lshl_b32 s29, s29, 4"); A("s_add_u32 s27, s27, s29")
        A("s_add_u32 s27, s27, s32")
        A("v_and_b32 v26, 1, v2"); A("v_lshl_add_u32 v26, v4, 1, v26")
        A("v_lshl_add_u32 v26, v26, 7, s27")
        A("s_lshl_b32 s27, s21, 7"); A("s_add_u32 s27, s27, s32")
        A("v_lshl_add_u32 v33, v2, 4, s27")
        A("v_lshlrev_b32 v34, 5, v2")
        C("wo transposing read: g*1024 + r4*128 + c4*8 + 32*(w ^ ((r4>>1) + 2*(g&1))), r4 = n>>2, c4 = n&3")
        A("v_bfe_u32 v11, v2, 2, 2")
        A("v_lshrrev_b32 v27, 1, v11"); A("v_lshl_add_u32 v27, v12, 1, v27"); A("v_xor_b32 v27, s3, v27")
        A("v_lshlrev_b32 v27, 5, v27"); A("v_lshl_add_u32 v27, v11, 7, v27")
        A("v_lshl_add_u32 v27, v4, 10, v27"); A("v_lshl_add_u32 v27, v10, 3, v27")
        C("o write: w*320 + 2*(8n + 4*(g&1) + 2*(g>>1)) ; o read: (n>>2)*320 + 16*g")
        A("s_mul_i32 s27, s3, 320")
        A("v_lshlrev_b32 v29, 3, v12"); A("v_lshl_add_u32 v29, v13, 2, v29"); A("v_add3_u32 v29, v29, v14, s27")
        A("v_mul_u32_u24 v30, 320, v11"); A("v_lshl_add_u32 v30, v4, 4, v30")
        C("accumulators of column tile 4*block + w: 64-byte groups 256 apart, 8 of 7 columns + counter, 4 for columns 7 and 8")
        A("s_lshl2_add_u32 s33, s49, s3")
        A("s_mul_i32 s27, s33, 3072"); A(f"s_add_u32 s27, s27, {WS_ACC}")
        A("v_lshlrev_b32 v31, 8, v31"); A("v_lshlrev_b32 v35, 3, v35")
        A("v_add3_u32 v31, v31, v35, s27")
        A("s_add_u32 s27, s27, 2048"); A("v_lshlrev_b32 v32, 8, v4"); A("v_add3_u32 v32, v32, v35, s27")
        A("s_mov_b32 s60, 0x01800180"); A("s_mov_b32 s61, s60"); A("v_mov_b32 v96, 1.0")
        A("s_lshl_b32 s27, s33, 2"); A("v_mov_b32 v35, s27")
        A("s_lshl_b32 s27, s33, 5")
        A("v_mul_u32_u24 v1, 896, v4"); A("v_lshlrev_b32 v18, 1, v3"); A("v_add3_u32 v1, v1, v18, s27")
        A("v_mov_b32 v37, 0"); A("v_mov_b32 v38, 1")
        A("s_mov_b32 s35, 0x3db8aa3b")
        xcd_bits()
        pick_masks(88, 18, 28)
        A("s_mov_b32 s62, 0xff00ff00"); A("s_mov_b32 s63, s62")
        A("s_waitcnt lgkmcnt(0)")
        tags()

    n0 = len(L); kconst(); KC = L[n0:]; del L[n0:]
    nw_ = KC.index("s_waitcnt lgkmcnt(0)")
    kernarg_ready()
    A("s_barrier                         ; B0")
    stamp(1)
    for idx in range(16):
        if idx == kc0: L.extend(KC[:nw_])
        if idx >= dk: A(f"s_waitcnt vmcnt({dk-1})")
        U, j = idx >> 2, idx & 3
        gload(VK + 4*idx, 4, 97, "k", j*128, "nt")
        if j == 3 and U < 3: ustep(97, U)
    stamp(2)
    QG = 40; QS = 20; TT = 24
    def qload():
        gload(QG, 4, 9, "ws", 0, "sc1"); gload(QG + 4, 4, 9, "ws", 1024, "sc1")
    for i, (kk, vv) in enumerate(steps):
        A(f"s_waitcnt vmcnt({kk + (2 if i > gq else 0)})")
        if i == gq: qload()
        A("s_barrier")
        if i == 0: stamp(3)
    L.extend(KC[nw_:])
    A(f"s_mov_b32 s27, {SPIN}")
    A("s_waitcnt vmcnt(0)")
    A("L_qpoll:")
    for i in range(8): A(f"v_xor_b32 v{QG+i}, s{56 + (i & 3)}, v{QG+i}")
    A(f"v_or3_b32 v{TT}, v{QG}, v{QG+1}, v{QG+2}")
    A(f"v_or3_b32 v{TT}, v{TT}, v{QG+3}, v{QG+4}")
    A(f"v_or3_b32 v{TT}, v{TT}, v{QG+5}, v{QG+6}")
    A(f"v_or_b32 v{TT}, v{TT}, v{QG+7}")
    A(f"v_lshlrev_b32 v{TT}, 23, v{TT}")
    A(f"v_cmp_ne_u32 vcc, 0, v{TT}")
    A("s_cbranch_vccnz L_qrare")
    A("L_qok:")
    note("s27", 12)
    A(f"v_pk_add_f32 {vr(QS,2)}, {vr(QG,2)}, {vr(QG+4,2)}")
    A(f"v_pk_add_f32 {vr(QS+2,2)}, {vr(QG+2,2)}, {vr(QG+6,2)}")
    halves(QS)
    A(f"ds_write_b32 v15, v{QS} offset:{L_Q}")
    A("s_mov_b64 exec, 1")
    A(f"ds_add_u32 v37, v38 offset:{L_CNT}")
    stamp(4)
    A("s_mov_b64 exec, -1")
    A("L_qsync:")
    A(f"ds_read_b32 v39, v37 offset:{L_CNT}")
    A("s_waitcnt lgkmcnt(0)")
    A("v_readfirstlane_b32 s54, v39")
    A("s_bitcmp1_b32 s54, 2")
    A("s_cbranch_scc0 L_qsync")
    A("s_lshr_b32 s54, s54, 8")
    stamp(5)
    C("scores: row (key, half line) x column (head, half line, copies); the matching halves are added afterwards")
    VQ = 48; D = 64; S = 80; M = 22; Lr = 23
    for j in range(4):
        A(f"ds_read_b128 {vr(VQ+4*j,4)}, v17 offset:{L_Q + 128*j}")
    for j in range(4):
        A(f"s_waitcnt lgkmcnt({3-j})")
        for U in range(4):
            mfma(D + 4*U, VK + 16*U + 4*j, VQ + 4*j, None if j == 0 else D + 4*U)
    A("s_nop 4")
    for half in range(2):
        for t in range(8):
            a, b = D + 2*t, D + 2*t + 1
            if half == 0: A(f"v_add_f32_dpp v{S+t}, v{b}, v{a} row_shl:4 row_mask:0xf bank_mask:0x5")
            else: A(f"v_add_f32_dpp v{S+t}, v{a}, v{b} row_shr:4 row_mask:0xf bank_mask:0xa")
    C("the reference holds the scores in bf16")
    for i in range(4): A(f"v_cvt_pk_bf16_f32 v{VQ+i}, v{S+2*i}, v{S+2*i+1}")
    for i in range(4):
        A(f"v_lshlrev_b32 v{S+2*i}, 16, v{VQ+i}")
        A(f"v_and_b32 v{S+2*i+1}, 0xffff0000, v{VQ+i}")
    A(f"v_max3_f32 v{M}, v{S}, v{S+1}, v{S+2}")
    A(f"v_max3_f32 v{M}, v{M}, v{S+3}, v{S+4}")
    A(f"v_max3_f32 v{M}, v{M}, v{S+5}, v{S+6}")
    A(f"v_max_f32 v{M}, v{M}, v{S+7}")
    xred(M, TT, "v_max_f32")
    for i in range(8): A(f"v_sub_f32 v{S+i}, v{S+i}, v{M}")
    for i in range(8): A(f"v_mul_f32 v{S+i}, s35, v{S+i}")
    for i in range(8): A(f"v_exp_f32 v{S+i}, v{S+i}")
    A(f"v_add_f32 v{Lr}, v{S}, v{S+1}")
    A(f"ds_write_b128 v36, {vr(S,4)} offset:{L_RED}")
    A(f"ds_write_b128 v36, {vr(S+4,4)} offset:{L_RED+1024}")
    for i in range(2, 8): A(f"v_add_f32 v{Lr}, v{Lr}, v{S+i}")
    xred(Lr, TT, "v_add_f32")
    A(f"ds_write_b64 v19, {vr(M,2)} offset:{L_STAT}")
    A("v_mov_b32 v38, 1")
    A("s_mov_b64 exec, 1")
    A(f"ds_add_rtn_u32 v38, v37, v38 offset:{L_CNT+8}")
    A("s_waitcnt lgkmcnt(0)")
    A("v_readfirstlane_b32 s27, v38")
    A("s_cmp_eq_u32 s27, 3")
    A("s_cbranch_scc0 L_nostat")
    C("the last K wave publishes the workgroup's maximum and sum (lane = head)")
    A("s_cmp_lg_u32 s54, 0")
    A("s_cbranch_scc1 L_fill")
    A("L_filled:")
    A("s_mov_b64 exec, 3")
    SB = 48
    A(f"ds_read_b128 {vr(SB,4)}, v34 offset:{L_STAT}")
    A(f"ds_read_b128 {vr(SB+4,4)}, v34 offset:{L_STAT+16}")
    A(f"v_mov_b32 v{SB+10}, s26"); A(f"v_mov_b32 v{SB+11}, s26")
    A("s_waitcnt lgkmcnt(0)")
    A(f"v_max3_f32 v{SB+8}, v{SB}, v{SB+2}, v{SB+4}")
    A(f"v_max_f32 v{SB+8}, v{SB+8}, v{SB+6}")
    for i in range(4): A(f"v_sub_f32 v{SB+2*i}, v{SB+2*i}, v{SB+8}")
    for i in range(4): A(f"v_mul_f32 v{SB+2*i}, s35, v{SB+2*i}")
    for i in range(4): A(f"v_exp_f32 v{SB+2*i}, v{SB+2*i}")
    A(f"v_mul_f32 v{SB+9}, v{SB}, v{SB+1}")
    for i in range(1, 4): A(f"v_fmac_f32 v{SB+9}, v{SB+2*i}, v{SB+1+2*i}")
    publish(SB+8, 4, 33)
    A("L_nostat:")
    A("s_mov_b64 exec, -1")
    stamp(6)
    A("s_cmp_ge_u32 s21, 28")
    if wo0:
        A("s_cbranch_scc1 L_nowo0")
        for i in range(wo0): gdma(5 + i, "wo", 1024*i)
        A("L_nowo0:")
    A("s_barrier")
    A("s_cbranch_scc1 L_kend")
    stamp(7)
    C("---------------------------------------------------------------- output projection")
    GS = 64; GO = 72; WT = 80; PM = 88; OS = 92; MS = 52
    OB = 100; WA = 116; D = 132; AT = 136; SA = 148; SB2 = 152
    def sload():
        gload(GS, 3, 26, "ws", 0, "sc1"); gload(GS+3, 1, 35, "dbg", 0, "sc1")
    def oload(j, dst=None):
        gload(GO + 4*j if dst is None else dst, 4, 25, "ws", 1024*j, "sc1")
    sload()
    if bs: A("s_barrier                         ; Bs")
    for i in range(wo0, 4): gdma(5 + i, "wo", 1024*i)
    A(f"s_mov_b32 s27, {SPIN}")
    if not fakeb: A("s_barrier                         ; B3")
    cstamp("kb3")
    A(f"s_waitcnt vmcnt({4 - wo0})")
    A("L_spoll:")
    A(f"v_cmp_ne_u32 vcc, s26, v{GS+2}")
    A(f"v_cmp_eq_u32 s[30:31], 0, v{GS+3}")
    A("s_or_b64 vcc, vcc, s[30:31]")
    A("s_cbranch_scc1 L_sagain")
    A("L_sok:")
    def ofirst():
        A("s_barrier")
        cstamp("oiss")
        for j in range(2): oload(j)
    if wsh: ofirst()
    stamp(8)
    C("weights of the 8 chunks: 2^(c*(max_c - max)) / total, as a bf16 high part (rows 0-7) and low part (rows 8-15)")
    def red8(dst, src, op_):
        A(f"{op_}_dpp v{dst}, v{src}, v{src} quad_perm:[1,0,3,2] row_mask:0xf bank_mask:0xf")
        xred(dst, TT, op_)
    red8(M, GS, "v_max_f32")
    A(f"v_sub_f32 v{GS}, v{GS}, v{M}")
    A(f"v_mul_f32 v{GS}, s35, v{GS}")
    A(f"v_exp_f32 v{GS}, v{GS}")
    A(f"s_mov_b32 s27, {SPIN}")
    A(f"v_mul_f32 v{GS+1}, v{GS}, v{GS+1}")
    A("s_nop 1")
    red8(Lr, GS+1, "v_add_f32")
    A(f"v_rcp_f32 v{Lr}, v{Lr}")
    A("s_nop 0")
    A(f"v_mul_f32 v{GS}, v{GS}, v{Lr}")
    A(f"v_cvt_pk_bf16_f32 v{GS+1}, v{GS}, v{GS}")
    A(f"v_lshlrev_b32 v{GS+2}, 16, v{GS+1}")
    A(f"v_sub_f32 v{GS}, v{GS}, v{GS+2}")
    A(f"v_cvt_pk_bf16_f32 v{GS}, v{GS}, v{GS}")
    A(f"v_cndmask_b32 v{GS}, v{GS+1}, v{GS}, s[62:63]")
    A("s_nop 1")
    for j in range(2):
        for k in range(4): A(f"v_and_b32_dpp v{WT+4*j+k}, v{GS}, v{PM+k} quad_perm:[{j},{j},{j+2},{j+2}] row_mask:0xf bank_mask:0xf")
    if not wsh: ofirst()
    A("s_waitcnt vmcnt(2)")
    A("s_barrier")
    def woread():
        for s in range(4):
            for e in range(2):
                A(f"ds_read_b64_tr_b16 {vr(WA + 4*s + 2*e, 2)}, v27 offset:{L_WO + s*4096 + e*512}")
    if not trl: woread()
    def ocheck(dst, g):
        A(f"v_max3_u32 v{TT}, v{g}, v{g+1}, v{g+2}")
        A(f"v_max_u32 v{TT}, v{TT}, v{g+3}")
        A(f"v_cmp_eq_u32 {dst}, -1, v{TT}")
    C(f"s[{MS}+2j:{MS+1}+2j] = lanes of load j still without data; only those are read again")
    A("s_waitcnt vmcnt(1)")
    A("L_ocomb:")
    mfma(OS, WT, GO)
    ocheck(f"s[{MS}:{MS+1}]", GO)
    A("s_waitcnt vmcnt(0)")
    mfma(OS, WT+4, GO+4, OS)
    ocheck(f"s[{MS+2}:{MS+3}]", GO+4)
    stamp(16)
    A(f"s_or_b64 vcc, s[{MS}:{MS+1}], s[{MS+2}:{MS+3}]")
    A("s_cbranch_scc1 L_oagain")
    A("L_ogot:")
    cstamp("ogot")
    note("s27", 14)
    stamp(9)
    if trl: woread()
    else: A("s_nop 2")
    halves(OS, False)
    A(f"ds_write_b32 v29, v{OS} offset:{L_OX}")
    A("s_waitcnt lgkmcnt(0)")
    cstamp("b4a")
    A("s_barrier")
    cstamp("b4")
    for s in range(4): A(f"ds_read_b128 {vr(OB+4*s,4)}, v30 offset:{L_OX + 64*s}")
    for s in range(4):
        A(f"s_waitcnt lgkmcnt({3-s})")
        mfma(D, OB + 4*s, WA + 4*s, None if s == 0 else D)
    A("s_mov_b32 vcc_lo, 0x00200020"); A("s_mov_b32 vcc_hi, 0x00200020")
    A("s_nop 5")
    C("lane = (batch g, column n).  First request: lanes 7 and 8 count; second: columns 7, 8 in lanes 6, 7, lane 5 counts")
    A(f"v_cndmask_b32 v{AT}, v{D}, 1.0, s[60:61]")
    A(f"v_cndmask_b32_dpp v{AT+2}, v{D}, v96, vcc row_shl:1 row_mask:0xf bank_mask:0xf")
    A(f"v_cvt_f64_f32 {vr(AT,2)}, v{AT}")
    cstamp("at0")
    gatomic(AT+4, AT, 31)
    A(f"v_cvt_f64_f32 {vr(AT+2,2)}, v{AT+2}")
    A("s_mov_b32 exec_lo, 0x00e000e0"); A("s_mov_b32 exec_hi, 0x00e000e0")
    gatomic(AT+6, AT+2, 32)
    A("s_not_b64 vcc, s[60:61]")
    A("s_or_b32 s27, s21, s3")
    A("s_cbranch_scc0 L_epoch")
    A("L_epoch_done:")
    A("s_mov_b64 exec, -1")
    stamp(10)
    A("s_waitcnt vmcnt(1)")
    A(f"v_add_f64 {vr(AT,2)}, {vr(AT,2)}, {vr(AT+4,2)}")
    A(f"v_cvt_f32_f64 v{AT}, {vr(AT,2)}")
    A("s_waitcnt vmcnt(0)")
    A(f"v_add_f64 {vr(AT+2,2)}, {vr(AT+2,2)}, {vr(AT+6,2)}")
    A(f"v_mov_b32_dpp v{TT}, v{AT} row_newbcast:7 row_mask:0xf bank_mask:0x3")
    A(f"v_cvt_f32_f64 v{AT+2}, {vr(AT+2,2)}")
    A("s_nop 0")
    A(f"v_mov_b32_dpp v{TT}, v{AT} row_newbcast:8 row_mask:0xf bank_mask:0xc")
    A(f"v_cndmask_b32_dpp v{AT}, v{AT+2}, v{AT}, vcc row_shr:1 row_mask:0xf bank_mask:0xf")
    A(f"v_cvt_pk_bf16_f32 v{AT}, v{AT}, v{AT}")
    A(f"v_cndmask_b32_dpp v{TT}, v{AT+2}, v{TT}, vcc row_newbcast:5 row_mask:0xf bank_mask:0xf")
    A(f"v_cmp_eq_f32 vcc, 0x42000000, v{TT}")
    cstamp("atret")
    stamp(11)
    A("s_and_b64 exec, exec, vcc")
    A("s_cbranch_scc0 L_kend")
    gstore(AT, 0, 1, "out")
    if stamps or op == "k15":
        A("s_waitcnt vmcnt(0)")
    A("L_kend:")
    stamp(15)
    if diag: finish()
    A("L_end:")
    A("s_endpgm")

    C("every wave of the group has read the old tag by now: leave this launch's tag for the next launch")
    A("L_epoch:")
    A("s_mov_b64 exec, 1")
    A("v_mov_b32 v20, s26"); A("v_mov_b32 v21, s50")
    gstore(20, 1, 21, "ws", G_E)
    A("s_branch L_epoch_done")

    C("---------------------------------------------------------------- O records missing: read them again")
    A("L_oagain:")
    A("s_sub_u32 s27, s27, 1")
    A("s_cbranch_scc1 L_ogot")
    cstamp("oag")
    A(f"s_cmp_eq_u64 s[{MS}:{MS+1}], 0"); A("s_cbranch_scc1 L_tight1")
    A(f"s_cmp_eq_u64 s[{MS+2}:{MS+3}], 0"); A("s_cbranch_scc1 L_tight0")
    for j in range(2):
        A(f"s_mov_b64 exec, s[{MS+2*j}:{MS+1+2*j}]")
        oload(j)
    A("s_mov_b64 exec, -1")
    A("s_waitcnt vmcnt(1)")
    A("s_branch L_ocomb")
    C("one load left: keep two reads of it in flight")
    for j in range(2):
        A(f"L_tight{j}:")
        A(f"s_mov_b64 exec, s[{MS+2*j}:{MS+1+2*j}]")
        oload(j, SA)
        A(f"L_tloop{j}:")
        oload(j, SB2)
        A("s_waitcnt vmcnt(1)")
        ocheck("vcc", SA)
        A(f"s_cbranch_vccz L_tgota{j}")
        oload(j, SA)
        A("s_sub_u32 s27, s27, 1")
        A("s_waitcnt vmcnt(1)")
        ocheck("vcc", SB2)
        A(f"s_cbranch_vccz L_tgotb{j}")
        A(f"s_cbranch_scc0 L_tloop{j}")
        for nm, src in (("b", SB2), ("a", SA)):
            A(f"L_tgot{nm}{j}:")
            A(f"v_mov_b64 {vr(GO+4*j,2)}, {vr(src,2)}"); A(f"v_mov_b64 {vr(GO+4*j+2,2)}, {vr(src+2,2)}")
            A("s_mov_b64 exec, -1")
            if j == 0: A("s_nop 0")
            mfma(OS, WT, GO)
            mfma(OS, WT+4, GO+4, OS)
            A("s_nop 3")
            A("s_branch L_ogot")
    C("spread group: the all-ones fill of the O record must reach memory before the S record does")
    A("L_fill:")
    A("s_mov_b64 exec, -1")
    A("s_lshl_b32 s29, s21, 10"); A("s_add_u32 s29, s29, s50"); A(f"s_add_u32 s29, s29, {G_O}")
    A("v_lshl_add_u32 v39, v2, 4, s29")
    for i in range(4): A(f"v_mov_b32 v{40+i}, -1")
    gstore(40, 4, 39, "ws", 0, "sc1")
    A("s_waitcnt vmcnt(0)")
    A("s_branch L_filled")
    A("L_sagain:")
    A("s_sub_u32 s27, s27, 1")
    A("s_cbranch_scc1 L_sok")
    sload()
    A("s_waitcnt vmcnt(0)")
    A("s_branch L_spoll")

    C("---------------------------------------------------------------- Q records missing, or written on another XCD")
    A("L_qrare:")
    A(f"v_lshlrev_b32 v{TT}, 1, v{TT}")
    A(f"v_cmp_ne_u32 vcc, 0, v{TT}")
    A("s_cbranch_vccz L_qflush")
    A(f"s_cmp_eq_u32 s27, {SPIN - nf}")
    A("s_cbranch_scc1 L_qflush")
    A("L_qagain:")
    A("s_sub_u32 s27, s27, 1")
    A("s_cbranch_scc1 L_qok")
    qload()
    A("s_waitcnt vmcnt(0)")
    A("s_branch L_qpoll")
    C("a long wait or a foreign writer: write this workgroup's own Q record through to memory")
    A("L_qflush:")
    own_q("s29")
    A("v_lshl_add_u32 v39, v2, 4, s29")
    gload(48, 4, 39, "ws", 0, "sc1")
    A("s_waitcnt vmcnt(0)")
    gstore(48, 4, 39, "ws", 0, "sc1")
    A("s_cbranch_vccnz L_qagain")
    for i in range(8): A(f"v_and_b32 v{QG+i}, 0xfffffe00, v{QG+i}")
    A("v_mov_b32 v38, 0x101")
    A("s_branch L_qok")

    C("================================================================ V waves: one 32-deep step of the q projection each")
    role[0] = "v"
    A("L_qproj:")
    own_q("s55")
    C("workgroups without projection work clear the accumulators of one column tile each")
    A("s_sub_u32 s52, s2, 224")
    A("s_xor_b32 s29, s33, 3"); A("s_lshl_b32 s29, s29, 8"); A("s_or_b32 s51, s52, s29")
    A("s_cmp_lt_u32 s51, 28")
    A("s_cbranch_scc0 L_noinit")
    for i in range(4): A(f"v_mov_b32 v{28+i}, 0")
    A("s_mul_i32 s29, s52, 3072"); A(f"s_add_u32 s29, s29, {WS_ACC}")
    A("v_lshrrev_b32 v19, 2, v2"); A("v_lshlrev_b32 v19, 8, v19"); A("v_lshlrev_b32 v12, 4, v10")
    A("v_add3_u32 v19, v19, v12, s29")
    A("s_mov_b32 exec_hi, 0xffff")
    gstore(28, 4, 19, "ws", 0, "sc1")
    A("s_mov_b32 exec_hi, -1")
    A("L_noinit:")
    A("v_bfe_u32 v12, v2, 2, 2           ; n >> 2")
    A("v_lshlrev_b32 v5, 7, v12")
    A("v_lshl_add_u32 v5, v10, 3, v5")
    A("v_lshl_add_u32 v5, v11, 10, v5")
    A("v_add_u32 v5, m0, v5")
    A("v_lshlrev_b32 v7, 8, v10"); A("v_lshl_add_u32 v7, v12, 6, v7"); A("v_lshlrev_b32 v8, 4, v4")
    A("v_add3_u32 v7, v7, v8, s55")
    A("v_sub_u32 v8, v4, v11")
    A("v_lshl_add_u32 v12, v8, 2, v12")
    for t in range(4): A(f"v_cmp_eq_u32 s[{60+2*t}:{61+2*t}], {t}, v12")
    A("s_lshl_b32 s27, s33, 10")
    A("v_lshlrev_b32 v13, 4, v2")
    A("v_add_u32 v14, s27, v13")
    A("v_mov_b32 v15, 0"); A("v_mov_b32 v16, 1")
    A("v_mov_b32 v17, 0xfffffe00")
    XM = 40; WA = 56; QD = 20; QP = 72
    xcd_bits()
    A("s_waitcnt lgkmcnt(0)")
    tags()
    A("s_cmp_lt_u32 s51, 28")
    A("s_waitcnt vmcnt(1)")
    A("s_cbranch_scc1 L_wqin")
    A("s_waitcnt vmcnt(0)")
    A("L_wqin:")
    for t in range(4):
        for e in range(2):
            A(f"ds_read_b64_tr_b16 {vr(WA+4*t+2*e,2)}, v5 offset:{512*e + 32*t}")
    C("x masked per column tile: the four tiles accumulate into different columns of one result")
    for t in range(4):
        for i in range(4): A(f"v_cndmask_b32 v{XM+4*t+i}, 0, v{XR+i}, s[{60+2*t}:{61+2*t}]")
    for t in range(4):
        A(f"s_waitcnt lgkmcnt({6-2*t})")
        mfma(QD, WA + 4*t, XM + 4*t, None if t == 0 else QD)
    A("s_nop 7")
    A(f"ds_write_b128 v14, {vr(QD,4)} offset:{L_RED}")
    A("s_mov_b64 exec, 1")
    A(f"ds_add_rtn_u32 v16, v15, v16 offset:{L_CNT+4}")
    A("s_mov_b64 exec, -1")
    A("s_waitcnt lgkmcnt(0)")
    A("v_readfirstlane_b32 s27, v16")
    A("s_cmp_eq_u32 s27, 3")
    A("s_cbranch_scc0 L_v")
    C("the last wave adds the four steps and publishes the record")
    for u in range(4): A(f"ds_read_b128 {vr(QP+4*u,4)}, v13 offset:{L_RED + 1024*u}")
    sum4(QP)
    for j in range(4): A(f"v_and_or_b32 v{QP+j}, v{QP+j}, v17, s{56+j}")
    gstore(QP, 4, 7, "ws")
    A("L_v:")
    stamp(2)
    VV = 100
    C("O store: slice u of the record, 8 bytes at 16n + 8*(g&1) from lanes 0..31; first the all-ones fill")
    A("s_lshl2_add_u32 s27, s21, s33"); A("s_lshl_b32 s27, s27, 8")
    A("s_add_u32 s27, s27, s50"); A(f"s_add_u32 s27, s27, {G_O}")
    A("v_lshlrev_b32 v9, 4, v3")
    A("v_lshlrev_b32 v11, 3, v4")
    A("v_add3_u32 v18, v9, v11, s27")
    A("v_mov_b32 v32, -1"); A("v_mov_b32 v33, -1")
    A("s_mov_b32 exec_hi, 0")
    gstore(32, 2, 18, "ws")
    A("s_mov_b32 exec_hi, -1")
    A("s_setprio 0")
    kvbase("s33")
    A("v_lshlrev_b32 v11, 10, v4")
    A("v_add3_u32 v9, v9, v11, s23")
    pick_masks(12, 16, 17)
    A("v_bfe_u32 v16, v2, 3, 1           ; head")
    A("v_lshlrev_b32 v25, 5, v16")
    A("s_lshl_b32 s27, s33, 3")
    A("v_add_u32 v26, s27, v25")
    A("s_lshl_b32 s27, s33, 11")
    A("v_lshl_add_u32 v27, v2, 4, s27")
    A("s_and_b32 s31, s33, 1"); A("s_lshl_b32 s27, s31, 10")
    A("s_lshr_b32 s29, s33, 1"); A("s_lshl_b32 s29, s29, 9"); A("s_add_u32 s27, s27, s29")
    A("v_lshl_add_u32 v16, v2, 4, s27")
    A("s_mov_b32 s35, 0x3db8aa3b")
    A("v_mov_b32 v5, 0")
    A("s_cmp_lt_u32 s51, 28")
    A("s_waitcnt vmcnt(0)")
    A("s_cbranch_scc0 L_noflag")
    A("s_lshl_b32 s29, s52, 2")
    A("v_mov_b32 v19, s29"); A("v_mov_b32 v28, 1")
    A("s_mov_b64 exec, 1")
    gstore(28, 1, 19, "dbg", 0, "sc1")
    A("s_mov_b64 exec, -1")
    A("L_noflag:")
    stamp(1)
    rel = {}
    tot = 0
    for i, (kk, vv) in enumerate(steps):
        rel[tot] = i; tot += vv
    for idx in range(16):
        if idx in rel:
            A("s_barrier                         ; Bk")
            if idx == 0: stamp(3)
        if idx >= max(dv, tot): A(f"s_waitcnt vmcnt({dv-1})")
        elif idx == tot: A(f"s_waitcnt vmcnt({tot-1})")
        U, j = idx >> 2, idx & 3
        gload(VV + 4*idx, 4, 9, "v", j*256, "nt")
        if j == 3 and U < 3: ustep(9, U)
    stamp(4)
    if vprio: A(f"s_setprio {vprio}")
    A("s_barrier                         ; Bp")
    stamp(5)
    S = 28; TT = 24; ST = 40; VA = 56; ACC = 88
    A(f"ds_read_b32 v{ST+9}, v5 offset:{L_CNT}")
    A(f"ds_read_b128 {vr(ST,4)}, v25 offset:{L_STAT}")
    A(f"ds_read_b128 {vr(ST+4,4)}, v25 offset:{L_STAT+16}")
    A(f"ds_read_b32 v{ST+8}, v26 offset:{L_STAT}")
    A(f"ds_read_b128 {vr(S,4)}, v27 offset:{L_RED}")
    A(f"ds_read_b128 {vr(S+4,4)}, v27 offset:{L_RED+1024}")
    if bs: A("s_barrier                         ; Bs")
    A("s_waitcnt lgkmcnt(2)")
    A(f"v_readfirstlane_b32 s54, v{ST+9}")
    C("rescale from the wave's maximum to the workgroup's")
    A(f"v_max3_f32 v{TT}, v{ST}, v{ST+2}, v{ST+4}")
    A(f"v_max_f32 v{TT}, v{TT}, v{ST+6}")
    A(f"v_sub_f32 v{TT}, v{ST+8}, v{TT}")
    A(f"v_mul_f32 v{TT}, s35, v{TT}")
    A(f"v_exp_f32 v{TT}, v{TT}")
    A("s_waitcnt lgkmcnt(0)")
    for i in range(8): A(f"v_mul_f32 v{S+i}, v{S+i}, v{TT}")
    for i in range(8): A(f"v_cvt_pk_bf16_f32 v{S+i}, v{S+i}, v{S+i}")
    def amask(t):
        for j in range(4): A(f"v_and_b32 v{VA+4*t+j}, v{S+t}, v{12+j}")
    A("s_lshr_b32 s54, s54, 8")
    amask(0); amask(1)
    stamp(6)
    for i in range(16):
        t, h = i >> 1, i & 1
        if i >= 16 - dv: A(f"s_waitcnt vmcnt({15-i})")
        if i == 15: cstamp("vland")
        mfma(ACC + 4*h, VA + 4*t, VV + 4*i, None if t == 0 else ACC + 4*h)
        if i < 6: amask(i + 2)
    if fakeb:
        R = 40
        mfma(ACC, VA, VV, ACC)
        A("s_nop 7")
        for i in range(8): A(f"v_add_f32 v{R+(i&3)}, v{ACC+i}, v{ACC+i}")
        A("s_mov_b32 exec_hi, 0")
    else:
        A("s_nop 5")
        A(f"ds_write_b128 v27, {vr(ACC,4)} offset:{L_RED}")
        A("s_nop 0")
        A(f"ds_write_b128 v27, {vr(ACC+4,4)} offset:{L_RED+1024}")
        A("s_waitcnt lgkmcnt(0)")
        stamp(7)
        cstamp("b3a")
        A("s_barrier")
        cstamp("b3")
        A("s_mov_b32 exec_hi, 0")
        R = 40
        for i in range(4): A(f"ds_read_b128 {vr(R+4*i,4)}, v16 offset:{L_RED + 2048*i}")
        sum4(R)
    A(f"v_cvt_pk_bf16_f32 v{R}, v{R}, v{R+1}")
    A(f"v_cvt_pk_bf16_f32 v{R+1}, v{R+2}, v{R+3}")
    A(f"v_min_u32 v{R}, -2, v{R}")
    A(f"v_min_u32 v{R+1}, -2, v{R+1}")
    cstamp("o1st")
    publish(R, 2, 18, lambda: A("s_barrier                         ; B3b"))
    A("s_barrier                         ; Bt")
    stamp(8)
    finish()
    A("L_codeend:")

    nv = 172 if stamps else 164
    A('.section .rodata,"a"'); A(".p2align 6"); A(f".amdhsa_kernel {NAME}")
    A(f"  .amdhsa_next_free_vgpr {nv}"); A(f"  .amdhsa_next_free_sgpr {100 if safe else 68}"); A(f"  .amdhsa_accum_offset {nv}")
    A("  .amdhsa_group_segment_fixed_size 0"); A("  .amdhsa_kernarg_size 64"); A("  .amdhsa_user_sgpr_count 2")
    A("  .amdhsa_user_sgpr_kernarg_segment_ptr 1"); A("  .amdhsa_system_sgpr_workgroup_id_x 1")
    A("  .amdhsa_float_denorm_mode_32 3")
    A(".end_amdhsa_kernel")
    out = []
    for l in L:
        if l.endswith(":") or l.startswith(".") or l.startswith("; @") or l.startswith("  ."):
            out.append(l)
        else:
            out.append("    " + l.rstrip())
    return HEADER + "\n".join(out) + "\n"


if __name__ == "__main__":
    kw = {}
    for a in sys.argv[2:]:
        k, v = a.split("=")
        kw[k] = eval(v) if v in ("True", "False") or v.isdigit() or v.startswith("0x") else v.replace("+", " ")
    open(sys.argv[1], "w").write(gen(**kw))
```

```python
import sys, os
sys.path.insert(0, os.path.dirname(os.path.abspath(__file__)))
import oprobe

NAME = "standalone__sliding_block_cached__decode_kernel"

HEADER = """; Kernarg layout for this problem (64 bytes, ptrs only, base s[0:1]):
;
; Q and S records in d_ws carry a tag (previous launch's tag + 0x01010101) in every 16 bytes; an O record is
"""

G_E = 0
G_O = 0x1000
G_Q = 0x9000
G_S = 0x11000
WS_ST = 0x4000000

L_CNT = 0
L_STAT = 64
L_WQ = 1024
L_RED = 16384
L_WO = 24576
L_Q = 40960
L_OX = 42240
L_END = 43520

BUF = dict(x=4, k=6, v=8, wq=10, wo=12, out=14, dbg=16, ws=18)
SIZE = dict(x=3584, k=67108864, v=67108864, wq=3670016, wo=3670016, out=3584, dbg=256, ws=268435456)
SRD = dict(x=68, k=72, v=76, wq=80, wo=84, out=88, ws=92, dbg=96)

SPIN = 100000


def gen(safe=False, stamps=False, only="", pmask=0, pval=0, amp=0, op="", omin=False, cyc="", fakex=False,
        dk=7, dv=8, hs="6:8", gq=0, nf=64, pfm=31, kb="W0_W1_C0_C1_C2_U0_U1", gsh=17, acc=0x20000, gbase=0,
        kc0=3, vprio=2, wsh=False, bs=False, fakeb=False, trl=False, wo0=0, jit=0, fullinit=0, atf="sc0 sc1", tstride=3072, kg=1, vg=1, tgap=0, nwo=4, atx=0):
    kp = {b: 12 + i for i, b in enumerate(kb.split("_"))}
    assert sorted(kp) == sorted("W0 W1 C0 C1 C2 U0 U1".split())
    if gsh == 17: acc = max(acc, 0x100000)
    WS_ACC = acc
    L = []
    A = L.append
    diag = stamps or op

    def C(text):
        A("; " + text)

    def vr(r, n=1):
        return f"v{r}" if n == 1 else f"v[{r}:{r+n-1}]"

    W = {1: "dword", 2: "dwordx2", 3: "dwordx3", 4: "dwordx4"}

    def gload(dst, n, voff, buf, imm=0, fl=""):
        if safe:
            A(f"buffer_load_{W[n]} {vr(dst,n)}, v{voff}, s[{SRD[buf]}:{SRD[buf]+3}], 0 offen offset:{imm} {fl}")
        else:
            A(f"global_load_{W[n]} {vr(dst,n)}, v{voff}, s[{BUF[buf]}:{BUF[buf]+1}] offset:{imm} {fl}")

    def gdma(voff, buf, imm=0, fl="nt"):
        if safe:
            A(f"buffer_load_dwordx4 v{voff}, s[{SRD[buf]}:{SRD[buf]+3}], 0 offen offset:{imm} {fl} lds")
        else:
            A(f"global_load_lds_dwordx4 v{voff}, s[{BUF[buf]}:{BUF[buf]+1}] offset:{imm} {fl}")

    def gstore(src, n, voff, buf, imm=0, fl=""):
        w = "short" if n == 0 else W[n]
        n = max(n, 1)
        if safe:
            A(f"buffer_store_{w} {vr(src,n)}, v{voff}, s[{SRD[buf]}:{SRD[buf]+3}], 0 offen offset:{imm} {fl}")
        else:
            A(f"global_store_{w} v{voff}, {vr(src,n)}, s[{BUF[buf]}:{BUF[buf]+1}] offset:{imm} {fl}")

    def gatomic(dst, src, voff):
        if safe:
            for i in range(2): A(f"v_mov_b32 v{dst+i}, v{src+i}")
            A(f"buffer_atomic_add_f64 {vr(dst,2)}, v{voff}, s[{SRD['ws']}:{SRD['ws']+3}], 0 offen sc0 sc1")
        else:
            A(f"global_atomic_add_f64 {vr(dst,2)}, v{voff}, {vr(src,2)}, s[18:19] {atf}")

    def publish(src, n, voff, between=None):
        uid[0] += 1
        gstore(src, n, voff, "ws")
        if between: between()
        A("s_cmp_eq_u32 s54, 0")
        A(f"s_cbranch_scc1 L_pub{uid[0]}")
        A("s_waitcnt vmcnt(0)")
        gstore(src, n, voff, "ws", 0, "sc1")
        A(f"L_pub{uid[0]}:")

    STB = 168
    role = ["k"]
    uid = [0]

    def kernarg_ready():
        A("s_waitcnt lgkmcnt(0)")
        if jit: jitter()
        if op: A("s_mov_b32 s46, s42")
        if stamps: A(f"v_writelane_b32 v{STB}, s42, 0")
        if safe:
            for b, s in SRD.items():
                A(f"s_mov_b32 s{s}, s{BUF[b]}"); A(f"s_mov_b32 s{s+1}, s{BUF[b]+1}")
                A(f"s_mov_b32 s{s+2}, {SIZE[b]}"); A(f"s_mov_b32 s{s+3}, 0x20000")

    def jitter():
        uid[0] += 1; u = uid[0]
        A("s_cselect_b32 s44, 1, 0")
        A("s_memtime s[40:41]"); A("s_waitcnt lgkmcnt(0)")
        A(f"s_lshl3_add_u32 s41, s2, s3"); A(f"s_add_u32 s41, s41, {jit * 977 + u * 131}"); A("s_xor_b32 s41, s41, s40")
        A("s_mul_i32 s41, s41, 0x9E3779B1"); A("s_lshr_b32 s45, s41, 29"); A("s_cmp_lt_u32 s45, 5"); A(f"s_cbranch_scc1 L_jx{u}")
        A(f"s_bfe_u32 s41, s41, {((jit % 3 + 5) << 16) | 16}")
        A(f"L_j{u}:"); A("s_sleep 1"); A("s_sub_u32 s41, s41, 1"); A(f"s_cbranch_scc0 L_j{u}")
        A(f"L_jx{u}:")
        A("s_cmp_eq_u32 s44, 1")

    def stamp(i):
        if jit: jitter()
        if op == f"{role[0]}{i}":
            A("s_memrealtime s[42:43]")
            A("s_waitcnt lgkmcnt(0)")
        if stamps and (only == "" or f"{role[0]}{i}" in str(only).split(",")):
            A("s_memrealtime s[40:41]")
            A("s_waitcnt lgkmcnt(0)")
            A(f"v_writelane_b32 v{STB}, s40, {i}")

    def cstamp(name):
        if jit: jitter()
        if cyc and name in cyc.split(","):
            k = cyc.split(",").index(name)
            A(f"s_memtime s[{64+2*k}:{65+2*k}]")

    def note(sreg, i):
        if stamps: A(f"v_writelane_b32 v{STB}, {sreg}, {i}")

    def finish():
        if stamps:
            if cyc:
                A("s_waitcnt lgkmcnt(0)"); A("s_sub_u32 s40, s66, s64"); A(f"v_writelane_b32 v{STB}, s40, 20")
            A("s_mov_b64 exec, -1")
            A("s_lshl3_add_u32 s40, s2, s3"); A("s_lshl_b32 s40, s40, 7")
            A(f"s_add_u32 s40, s40, {WS_ST}")
            A(f"v_lshl_add_u32 v{STB+1}, v2, 2, s40")
            A("s_mov_b32 exec_hi, 0")
            gstore(STB, 1, STB + 1, "ws")
        if op:
            uid[0] += 1
            oprobe.emit_record(A, gstore, WS_ST)
            if role[0] == "k": oprobe.emit_report(A, gload, WS_ST, uid[0], amp, pmask, pval, omin)
        A("s_endpgm")

    def mfma(d, a, b, c=None):
        cs = "0" if c is None else vr(c, 4)
        A(f"v_mfma_f32_16x16x32_bf16 {vr(d,4)}, {vr(a,4)}, {vr(b,4)}, {cs}")

    def group_base():
        A(f"s_lshl_b32 s50, s20, {gsh}")
        if gbase: A(f"s_add_u32 s50, s50, {gbase}")

    def tags():
        C("s26 = tag, s56..s59 = its bytes plus one bit each of this XCD's id (Q records)")
        A("s_add_u32 s26, s26, 0x01010101")
        for j in range(4):
            A(f"s_bfe_u32 s27, s26, {0x80000 + 8*j}"); A(f"s_or_b32 s{56+j}, s{56+j}, s27")

    def pick_masks(d, t0, t1):
        C(f"v{d}..v{d+3}: lane n keeps element n&7 of its 8, so that matrix row n picks element n&7 of every 16-byte chunk")
        A(f"v_and_b32 v{t0}, 1, v2")
        A(f"v_lshlrev_b32 v{t0}, 4, v{t0}")
        A(f"v_mov_b32 v{t1}, 0xffff")
        A(f"v_lshlrev_b32 v{t0}, v{t0}, v{t1}")
        A(f"v_bfe_u32 v{t1}, v2, 1, 2")
        for jj in range(4):
            A(f"v_cmp_eq_u32 vcc, {jj}, v{t1}")
            A("s_nop 1")
            A(f"v_cndmask_b32 v{d+jj}, 0, v{t0}, vcc")

    def xcd_bits():
        A("s_getreg_b32 s53, hwreg(HW_REG_XCC_ID, 0, 4)")
        if fakex: A("s_bfe_u32 s53, s2, 0x10005")
        for j in range(4):
            A(f"s_lshl_b32 s{56+j}, s53, {8-j}"); A(f"s_and_b32 s{56+j}, s{56+j}, 0x100")

    def xred(reg, tmp, op_):
        for sw in ("v_permlane32_swap_b32", "v_permlane16_swap_b32"):
            A(f"v_mov_b32 v{tmp}, v{reg}")
            A("s_nop 1")
            A(f"{sw} v{reg}, v{tmp}")
            A(f"{op_} v{reg}, v{reg}, v{tmp}")

    def sum4(r):
        A("s_waitcnt lgkmcnt(2)")
        A(f"v_pk_add_f32 {vr(r,2)}, {vr(r,2)}, {vr(r+4,2)}")
        A(f"v_pk_add_f32 {vr(r+2,2)}, {vr(r+2,2)}, {vr(r+6,2)}")
        A("s_waitcnt lgkmcnt(0)")
        A(f"v_pk_add_f32 {vr(r+8,2)}, {vr(r+8,2)}, {vr(r+12,2)}")
        A(f"v_pk_add_f32 {vr(r+10,2)}, {vr(r+10,2)}, {vr(r+14,2)}")
        A(f"v_pk_add_f32 {vr(r,2)}, {vr(r,2)}, {vr(r+8,2)}")
        A(f"v_pk_add_f32 {vr(r+2,2)}, {vr(r+2,2)}, {vr(r+10,2)}")

    def halves(r, nop=True):
        if nop: A("s_nop 1")
        A(f"v_permlane32_swap_b32 v{r}, v{r+2}")
        A(f"v_permlane32_swap_b32 v{r+1}, v{r+3}")
        A(f"v_pk_add_f32 {vr(r,2)}, {vr(r,2)}, {vr(r+2,2)}")
        A(f"v_cvt_pk_bf16_f32 v{r}, v{r}, v{r+1}")

    def kvbase(wreg):
        C("s23 = byte offset of this wave's first block of 8 keys, s25 = step to the next block")
        A("s_lshl3_add_u32 s23, s22, s20")
        A("s_lshl_b32 s23, s23, 21")
        if kb == "W0_W1_C0_C1_C2_U0_U1":
            A(f"s_lshl2_add_u32 s25, s24, {wreg}")
            A("s_lshl_b32 s25, s25, 12")
            A("s_add_u32 s23, s23, s25")
        else:
            assert kp["W0"] == 12 and kp["W1"] == 13
            A(f"s_lshl2_add_u32 s27, s24, {wreg}")
            src = ["W0", "W1", "C0", "C1", "C2"]
            i = 0
            while i < 5:
                j = i
                while j + 1 < 5 and kp[src[j+1]] == kp[src[j]] + 1: j += 1
                A(f"s_bfe_u32 s25, s27, {((j - i + 1) << 16) | i}"); A(f"s_lshl_b32 s25, s25, {kp[src[i]]}"); A("s_add_u32 s23, s23, s25")
                i = j + 1
        A("s_add_u32 s23, s23, 0x180000")
        A(f"s_mov_b32 s25, {1 << kp['U0']}")

    def ustep(reg, U):
        d = (1 << kp["U1"]) - (1 << kp["U0"])
        if U == 1 and d != 1 << kp["U0"]: A(f"v_add_u32 v{reg}, {d & 0xffffffff}, v{reg}")
        else: A(f"v_add_u32 v{reg}, s25, v{reg}")

    def own_q(dst):
        A(f"s_lshl2_add_u32 {dst}, s24, s22"); A(f"s_lshl_b32 {dst}, {dst}, 10")
        A(f"s_add_u32 {dst}, {dst}, s50"); A(f"s_add_u32 {dst}, {dst}, {G_Q}")

    steps = [tuple(map(int, x.split(":"))) for x in hs.split(",")]

    A(f"; @launch grid=(256,1,1) block=(512,1,1) lds={L_END}")
    A('.amdgcn_target "amdgcn-amd-amdhsa--gfx950"')
    A(".text"); A(f".globl {NAME}"); A(".p2align 8"); A(f".type {NAME},@function"); A(f"{NAME}:")
    if diag:
        A("s_memrealtime s[42:43]")
    A("s_load_dwordx16 s[4:19], s[0:1], 0")
    A("s_cmpk_ge_u32 s2, 0x100")
    A("s_cbranch_scc1 L_end")
    A("v_readfirstlane_b32 s3, v0")
    A("v_and_b32 v2, 63, v0              ; lane")
    A("v_and_b32 v3, 15, v0              ; n = lane & 15")
    A("v_bfe_u32 v4, v0, 4, 2            ; g = lane >> 4")
    A("v_and_b32 v10, 3, v0")
    A("s_and_b32 s20, s2, 7              ; hkv")
    A("s_lshr_b32 s22, s2, 6             ; r >> 3")
    A("s_bfe_u32 s24, s2, 0x30003        ; r & 7")
    A("s_lshr_b32 s3, s3, 6              ; wave")
    A("s_cmp_lt_u32 s3, 4")
    A("s_cbranch_scc1 L_k")

    C("---------------------------------------------------------------- V waves: wq and x go first")
    XR = 24
    if pfm:
        A(f"s_and_b32 s27, s2, {pfm << 3}"); A("s_cbranch_scc1 L_nopf")
    A("s_getpc_b64 s[30:31]")
    A("L_pc:")
    A("v_lshlrev_b32 v5, 5, v0")
    A("v_subrev_u32 v5, 8192, v5")
    A("v_min_u32 v5, L_codeend-L_pc-4, v5")
    A("global_load_dword v6, v5, s[30:31]")
    A("L_nopf:")
    A("s_setprio 3")
    A("v_mov_b32 v8, 0")
    A("v_mov_b32 v9, 0")
    A("ds_write2_b64 v8, v[8:9], v[8:9] offset0:0 offset1:1")
    A("s_and_b32 s33, s3, 3")
    A("s_cmp_eq_u32 s33, 3")
    A("s_cselect_b32 s34, 1, 3")
    A("v_and_b32 v11, s34, v4")
    A("s_mul_i32 s25, s22, 224")
    A("s_lshl_b32 s27, s33, 6")
    A("s_add_u32 s25, s25, s27")
    A("v_mul_u32_u24 v5, 896, v10")
    A("v_lshlrev_b32 v7, 4, v11")
    A("v_add3_u32 v5, v5, v7, s25        ; x offset")
    A("s_lshl3_add_u32 s27, s20, s24")
    A("s_lshl_b32 s27, s27, 7")
    A("s_lshl_b32 s25, s25, 12")
    A("s_add_u32 s25, s25, s27")
    A("v_lshrrev_b32 v7, 3, v2")
    A("v_lshlrev_b32 v7, 13, v7")
    A("v_and_b32 v8, 7, v2")
    A("v_lshlrev_b32 v9, 4, v8")
    A("v_add3_u32 v7, v7, v9, s25")
    A("s_lshl_b32 s27, s33, 12")
    A(f"s_add_u32 m0, s27, {L_WQ}")
    A(f"s_mov_b32 s25, {65536-1024}")
    C("the group's records become L2-resident before they are written: lines i + 128*lane, i = 4r + u (values unused)")
    group_base()
    A("s_lshr_b32 s21, s2, 3             ; r")
    A("s_lshl2_add_u32 s27, s21, s33")
    A("s_cmp_lt_u32 s27, 32")
    A("s_cselect_b32 s30, 31, 15")
    A("s_lshl_b32 s27, s27, 7"); A("s_add_u32 s27, s27, s50"); A(f"s_add_u32 s27, s27, {G_O}")
    A("v_lshl_add_u32 v12, v8, 14, s27")
    A("s_mov_b32 exec_lo, s30"); A("s_mov_b32 exec_hi, 0")
    A("s_cmp_eq_u32 s33, 3")
    kernarg_ready()
    gload(1, 1, 12, "ws", 0, "sc1")
    A("s_mov_b64 exec, -1")
    A("s_load_dword s26, s[18:19], s50")
    gdma(7, "wq", 0)
    A("v_add_u32 v7, s25, v7")
    gdma(7, "wq", 1024)
    A("s_cbranch_scc1 L_u3")
    A("v_add_u32 v7, s25, v7")
    gdma(7, "wq", 2048)
    A("v_add_u32 v7, s25, v7")
    gdma(7, "wq", 3072)
    A("L_u3:")
    gload(XR, 4, 5, "x")
    A("s_barrier                         ; B0")
    A("s_branch L_qproj")

    C("================================================================ K waves")
    A("L_k:")
    VK = 100
    kvbase("s3")
    A("v_lshrrev_b32 v5, 1, v3")
    A("v_lshlrev_b32 v5, 9, v5")
    A("v_and_b32 v7, 1, v2")
    A("v_lshl_add_u32 v6, v7, 2, v4")
    A("v_lshlrev_b32 v6, 4, v6")
    A("v_add3_u32 v97, v5, v6, s23")

    def kconst():
        C("addresses for later, computed while the first loads are in flight")
        group_base()
        A("s_load_dword s26, s[18:19], s50")
        A("s_lshr_b32 s21, s2, 3             ; r")
        C("Q gather: record (2w + (g&1))*4 + 2*(g>>1) + j, batch r>>3, columns 4n..")
        A("s_lshl_b32 s27, s3, 13"); A("s_lshl_b32 s29, s22, 8"); A("s_add_u32 s27, s27, s29")
        A("s_add_u32 s27, s27, s50"); A(f"s_add_u32 s27, s27, {G_Q}")
        A("v_and_b32 v12, 1, v4"); A("v_lshrrev_b32 v13, 1, v4")
        A("v_lshlrev_b32 v9, 12, v12"); A("v_lshl_add_u32 v9, v13, 11, v9"); A("v_lshlrev_b32 v14, 4, v3")
        A("v_add3_u32 v9, v9, v14, s27")
        C("q write: (w>>1)*576 + (w&1)*256 + (g&1)*128 + n*8 + (g>>1)*4 ; q read: h*576 + 64*((n>>2)&1) + 16*g")
        A("s_lshr_b32 s27, s3, 1"); A("s_mul_i32 s27, s27, 576"); A("s_and_b32 s29, s3, 1"); A("s_lshl_b32 s29, s29, 8"); A("s_add_u32 s27, s27, s29")
        A("v_lshlrev_b32 v15, 7, v12"); A("v_lshl_add_u32 v15, v13, 2, v15"); A("v_lshlrev_b32 v16, 3, v3")
        A("v_add3_u32 v15, v15, v16, s27")
        A("v_bfe_u32 v6, v2, 3, 1            ; head")
        A("v_mul_u32_u24 v17, 576, v6")
        A("v_and_b32 v7, 4, v2")
        A("v_add_u32 v7, v7, v4")
        A("v_lshl_add_u32 v17, v7, 4, v17")
        A("s_lshl_b32 s27, s3, 3")
        A("v_lshl_add_u32 v19, v6, 5, s27")
        A("s_lshl_b32 s27, s3, 11")
        A("v_lshl_add_u32 v36, v2, 4, s27")
        A("s_and_b32 s48, s21, 3")
        A("s_lshr_b32 s49, s21, 2")
        C("wo: load i of wave w brings rows 32w + 8i + (lane>>3), 16-byte chunk (lane&7) ^ (2*(g&1) + 4*(i&1))")
        A("s_lshl2_add_u32 s27, s20, s48")
        A("s_lshl2_add_u32 s27, s27, s3")
        A("s_mul_i32 s27, s27, 28672")
        A("s_min_u32 s29, s49, 6"); A("s_lshl_b32 s29, s29, 7"); A("s_add_u32 s27, s27, s29")
        A("v_and_b32 v35, 7, v2"); A("v_lshlrev_b32 v6, 1, v12"); A("v_xor_b32 v5, v35, v6"); A("v_lshlrev_b32 v5, 4, v5")
        A("v_lshrrev_b32 v31, 3, v2"); A("v_mul_u32_u24 v7, 896, v31")
        A("v_xor_b32 v6, 64, v5")
        A("v_add3_u32 v5, v5, v7, s27")
        A(f"s_add_u32 s27, s27, {7168-1024}")
        A("v_add3_u32 v6, v6, v7, s27")
        A(f"v_add_u32 v7, {2*(7168-1024)}, v5")
        A(f"v_add_u32 v8, {2*(7168-1024)}, v6")
        A("s_lshl_b32 s27, s3, 12"); A(f"s_add_u32 m0, s27, {L_WO}")
        C("O gather: wave = batch, record 8w + 2g + j, slice = row group, 16 bytes at n")
        A("s_lshl_b32 s27, s3, 13"); A("s_lshl_b32 s29, s48, 8"); A("s_add_u32 s27, s27, s29")
        A("s_add_u32 s27, s27, s50"); A(f"s_add_u32 s27, s27, {G_O}")
        A("v_lshlrev_b32 v25, 11, v4"); A("v_add3_u32 v25, v25, v14, s27")
        C("S gather: record 8w + 2g + (lane&1), head = row group >> 1")
        A(f"s_add_u32 s32, s50, {G_S}")
        A("s_lshl_b32 s27, s3, 10"); A("s_lshr_b32 s29, s48, 1"); A("s_lshl_b32 s29, s29, 4"); A("s_add_u32 s27, s27, s29")
        A("s_add_u32 s27, s27, s32")
        A("v_and_b32 v26, 1, v2"); A("v_lshl_add_u32 v26, v4, 1, v26")
        A("v_lshl_add_u32 v26, v26, 7, s27")
        A("s_lshl_b32 s27, s21, 7"); A("s_add_u32 s27, s27, s32")
        A("v_lshl_add_u32 v33, v2, 4, s27")
        A("v_lshlrev_b32 v34, 5, v2")
        C("wo transposing read: g*1024 + r4*128 + c4*8 + 32*(w ^ ((r4>>1) + 2*(g&1))), r4 = n>>2, c4 = n&3")
        A("v_bfe_u32 v11, v2, 2, 2")
        A("v_lshrrev_b32 v27, 1, v11"); A("v_lshl_add_u32 v27, v12, 1, v27"); A("v_xor_b32 v27, s3, v27")
        A("v_lshlrev_b32 v27, 5, v27"); A("v_lshl_add_u32 v27, v11, 7, v27")
        A("v_lshl_add_u32 v27, v4, 10, v27"); A("v_lshl_add_u32 v27, v10, 3, v27")
        C("o write: w*320 + 2*(8n + 4*(g&1) + 2*(g>>1)) ; o read: (n>>2)*320 + 16*g")
        A("s_mul_i32 s27, s3, 320")
        A("v_lshlrev_b32 v29, 3, v12"); A("v_lshl_add_u32 v29, v13, 2, v29"); A("v_add3_u32 v29, v29, v14, s27")
        A("v_mul_u32_u24 v30, 320, v11"); A("v_lshl_add_u32 v30, v4, 4, v30")
        C("accumulators of column tile 4*block + w: 64-byte groups 256 apart, 8 of 7 columns + counter, 4 for columns 7 and 8")
        A("s_lshl2_add_u32 s33, s49, s3")
        A(f"s_mul_i32 s27, s33, {tstride}"); A(f"s_add_u32 s27, s27, {WS_ACC}")
        A("v_lshlrev_b32 v31, 8, v31"); A("v_lshlrev_b32 v35, 3, v35")
        A("v_add3_u32 v31, v31, v35, s27")
        A("s_add_u32 s27, s27, 2048"); A("v_lshlrev_b32 v32, 8, v4"); A("v_add3_u32 v32, v32, v35, s27")
        A("s_mov_b32 s60, 0x01800180"); A("s_mov_b32 s61, s60"); A("v_mov_b32 v96, 1.0")
        A("s_lshl_b32 s27, s33, 2"); A("v_mov_b32 v35, s27")
        A("s_lshl_b32 s27, s33, 5")
        A("v_mul_u32_u24 v1, 896, v4"); A("v_lshlrev_b32 v18, 1, v3"); A("v_add3_u32 v1, v1, v18, s27")
        A("v_mov_b32 v37, 0"); A("v_mov_b32 v38, 1")
        A("s_mov_b32 s35, 0x3db8aa3b")
        xcd_bits()
        pick_masks(88, 18, 28)
        A("s_mov_b32 s62, 0xff00ff00"); A("s_mov_b32 s63, s62")
        A("s_waitcnt lgkmcnt(0)")
        tags()

    n0 = len(L); kconst(); KC = L[n0:]; del L[n0:]
    nw_ = KC.index("s_waitcnt lgkmcnt(0)")
    kernarg_ready()
    A("s_barrier                         ; B0")
    stamp(1)
    for idx in range(16):
        if idx == kc0: L.extend(KC[:nw_])
        if idx >= dk and idx % kg == 0: A(f"s_waitcnt vmcnt({dk-kg})")
        U, j = idx >> 2, idx & 3
        gload(VK + 4*idx, 4, 97, "k", j*128, "nt")
        if j == 3 and U < 3: ustep(97, U)
    stamp(2)
    QG = 40; QS = 20; TT = 24
    def qload():
        gload(QG, 4, 9, "ws", 0, "sc1"); gload(QG + 4, 4, 9, "ws", 1024, "sc1")
    for i, (kk, vv) in enumerate(steps):
        A(f"s_waitcnt vmcnt({kk + (2 if i > gq else 0)})")
        if i == gq: qload()
        A("s_barrier")
        if i == 0: stamp(3)
    L.extend(KC[nw_:])
    A(f"s_mov_b32 s27, {SPIN}")
    A("s_waitcnt vmcnt(0)")
    A("L_qpoll:")
    for i in range(8): A(f"v_xor_b32 v{QG+i}, s{56 + (i & 3)}, v{QG+i}")
    A(f"v_or3_b32 v{TT}, v{QG}, v{QG+1}, v{QG+2}")
    A(f"v_or3_b32 v{TT}, v{TT}, v{QG+3}, v{QG+4}")
    A(f"v_or3_b32 v{TT}, v{TT}, v{QG+5}, v{QG+6}")
    A(f"v_or_b32 v{TT}, v{TT}, v{QG+7}")
    A(f"v_lshlrev_b32 v{TT}, 23, v{TT}")
    A(f"v_cmp_ne_u32 vcc, 0, v{TT}")
    A("s_cbranch_vccnz L_qrare")
    A("L_qok:")
    note("s27", 12)
    A(f"v_pk_add_f32 {vr(QS,2)}, {vr(QG,2)}, {vr(QG+4,2)}")
    A(f"v_pk_add_f32 {vr(QS+2,2)}, {vr(QG+2,2)}, {vr(QG+6,2)}")
    halves(QS)
    A(f"ds_write_b32 v15, v{QS} offset:{L_Q}")
    A("s_mov_b64 exec, 1")
    A(f"ds_add_u32 v37, v38 offset:{L_CNT}")
    stamp(4)
    A("s_mov_b64 exec, -1")
    A("L_qsync:")
    A(f"ds_read_b32 v39, v37 offset:{L_CNT}")
    A("s_waitcnt lgkmcnt(0)")
    A("v_readfirstlane_b32 s54, v39")
    A("s_bitcmp1_b32 s54, 2")
    A("s_cbranch_scc0 L_qsync")
    A("s_lshr_b32 s54, s54, 8")
    stamp(5)
    C("scores: row (key, half line) x column (head, half line, copies); the matching halves are added afterwards")
    VQ = 48; D = 64; S = 80; M = 22; Lr = 23
    for j in range(4):
        A(f"ds_read_b128 {vr(VQ+4*j,4)}, v17 offset:{L_Q + 128*j}")
    for j in range(4):
        A(f"s_waitcnt lgkmcnt({3-j})")
        for U in range(4):
            mfma(D + 4*U, VK + 16*U + 4*j, VQ + 4*j, None if j == 0 else D + 4*U)
    A("s_nop 4")
    for half in range(2):
        for t in range(8):
            a, b = D + 2*t, D + 2*t + 1
            if half == 0: A(f"v_add_f32_dpp v{S+t}, v{b}, v{a} row_shl:4 row_mask:0xf bank_mask:0x5")
            else: A(f"v_add_f32_dpp v{S+t}, v{a}, v{b} row_shr:4 row_mask:0xf bank_mask:0xa")
    C("the reference holds the scores in bf16")
    for i in range(4): A(f"v_cvt_pk_bf16_f32 v{VQ+i}, v{S+2*i}, v{S+2*i+1}")
    for i in range(4):
        A(f"v_lshlrev_b32 v{S+2*i}, 16, v{VQ+i}")
        A(f"v_and_b32 v{S+2*i+1}, 0xffff0000, v{VQ+i}")
    A(f"v_max3_f32 v{M}, v{S}, v{S+1}, v{S+2}")
    A(f"v_max3_f32 v{M}, v{M}, v{S+3}, v{S+4}")
    A(f"v_max3_f32 v{M}, v{M}, v{S+5}, v{S+6}")
    A(f"v_max_f32 v{M}, v{M}, v{S+7}")
    xred(M, TT, "v_max_f32")
    for i in range(8): A(f"v_sub_f32 v{S+i}, v{S+i}, v{M}")
    for i in range(8): A(f"v_mul_f32 v{S+i}, s35, v{S+i}")
    for i in range(8): A(f"v_exp_f32 v{S+i}, v{S+i}")
    A(f"v_add_f32 v{Lr}, v{S}, v{S+1}")
    A(f"ds_write_b128 v36, {vr(S,4)} offset:{L_RED}")
    A(f"ds_write_b128 v36, {vr(S+4,4)} offset:{L_RED+1024}")
    for i in range(2, 8): A(f"v_add_f32 v{Lr}, v{Lr}, v{S+i}")
    xred(Lr, TT, "v_add_f32")
    A(f"ds_write_b64 v19, {vr(M,2)} offset:{L_STAT}")
    A("v_mov_b32 v38, 1")
    A("s_mov_b64 exec, 1")
    A(f"ds_add_rtn_u32 v38, v37, v38 offset:{L_CNT+8}")
    A("s_waitcnt lgkmcnt(0)")
    A("v_readfirstlane_b32 s27, v38")
    A("s_cmp_eq_u32 s27, 3")
    A("s_cbranch_scc0 L_nostat")
    C("the last K wave publishes the workgroup's maximum and sum (lane = head)")
    A("s_cmp_lg_u32 s54, 0")
    A("s_cbranch_scc1 L_fill")
    A("L_filled:")
    A("s_mov_b64 exec, 3")
    SB = 48
    A(f"ds_read_b128 {vr(SB,4)}, v34 offset:{L_STAT}")
    A(f"ds_read_b128 {vr(SB+4,4)}, v34 offset:{L_STAT+16}")
    A(f"v_mov_b32 v{SB+10}, s26"); A(f"v_mov_b32 v{SB+11}, s26")
    A("s_waitcnt lgkmcnt(0)")
    A(f"v_max3_f32 v{SB+8}, v{SB}, v{SB+2}, v{SB+4}")
    A(f"v_max_f32 v{SB+8}, v{SB+8}, v{SB+6}")
    for i in range(4): A(f"v_sub_f32 v{SB+2*i}, v{SB+2*i}, v{SB+8}")
    for i in range(4): A(f"v_mul_f32 v{SB+2*i}, s35, v{SB+2*i}")
    for i in range(4): A(f"v_exp_f32 v{SB+2*i}, v{SB+2*i}")
    A(f"v_mul_f32 v{SB+9}, v{SB}, v{SB+1}")
    for i in range(1, 4): A(f"v_fmac_f32 v{SB+9}, v{SB+2*i}, v{SB+1+2*i}")
    publish(SB+8, 4, 33)
    A("L_nostat:")
    A("s_mov_b64 exec, -1")
    stamp(6)
    A("s_cmp_ge_u32 s21, 28")
    if wo0:
        A("s_cbranch_scc1 L_nowo0")
        for i in range(wo0): gdma(5 + i, "wo", 1024*i)
        A("L_nowo0:")
    A("s_barrier")
    A("s_cbranch_scc1 L_kend")
    stamp(7)
    C("---------------------------------------------------------------- output projection")
    GS = 64; GO = 72; WT = 80; PM = 88; OS = 92; MS = 52
    OB = 100; WA = 116; D = 132; AT = 136; SA = 148; SB2 = 152
    def sload():
        gload(GS, 3, 26, "ws", 0, "sc1"); gload(GS+3, 1, 35, "dbg", 0, "sc1")
    def oload(j, dst=None):
        gload(GO + 4*j if dst is None else dst, 4, 25, "ws", 1024*j, "sc1")
    sload()
    if bs: A("s_barrier                         ; Bs")
    for i in range(wo0, nwo): gdma(5 + i, "wo", 1024*i)
    A(f"s_mov_b32 s27, {SPIN}")
    if not fakeb: A("s_barrier                         ; B3")
    cstamp("kb3")
    A(f"s_waitcnt vmcnt({nwo - wo0})")
    A("L_spoll:")
    A(f"v_cmp_ne_u32 vcc, s26, v{GS+2}")
    A(f"v_cmp_eq_u32 s[30:31], 0, v{GS+3}")
    A("s_or_b64 vcc, vcc, s[30:31]")
    A("s_cbranch_scc1 L_sagain")
    A("L_sok:")
    def ofirst():
        A("s_barrier")
        cstamp("oiss")
        for j in range(2): oload(j)
    if wsh: ofirst()
    stamp(8)
    C("weights of the 8 chunks: 2^(c*(max_c - max)) / total, as a bf16 high part (rows 0-7) and low part (rows 8-15)")
    def red8(dst, src, op_):
        A(f"{op_}_dpp v{dst}, v{src}, v{src} quad_perm:[1,0,3,2] row_mask:0xf bank_mask:0xf")
        xred(dst, TT, op_)
    red8(M, GS, "v_max_f32")
    A(f"v_sub_f32 v{GS}, v{GS}, v{M}")
    A(f"v_mul_f32 v{GS}, s35, v{GS}")
    A(f"v_exp_f32 v{GS}, v{GS}")
    A(f"s_mov_b32 s27, {SPIN}")
    A(f"v_mul_f32 v{GS+1}, v{GS}, v{GS+1}")
    A("s_nop 1")
    red8(Lr, GS+1, "v_add_f32")
    A(f"v_rcp_f32 v{Lr}, v{Lr}")
    A("s_nop 0")
    A(f"v_mul_f32 v{GS}, v{GS}, v{Lr}")
    A(f"v_cvt_pk_bf16_f32 v{GS+1}, v{GS}, v{GS}")
    A(f"v_lshlrev_b32 v{GS+2}, 16, v{GS+1}")
    A(f"v_sub_f32 v{GS}, v{GS}, v{GS+2}")
    A(f"v_cvt_pk_bf16_f32 v{GS}, v{GS}, v{GS}")
    A(f"v_cndmask_b32 v{GS}, v{GS+1}, v{GS}, s[62:63]")
    A("s_nop 1")
    for j in range(2):
        for k in range(4): A(f"v_and_b32_dpp v{WT+4*j+k}, v{GS}, v{PM+k} quad_perm:[{j},{j},{j+2},{j+2}] row_mask:0xf bank_mask:0xf")
    if not wsh: ofirst()
    A("s_waitcnt vmcnt(2)")
    A("s_barrier")
    def woread():
        for s in range(4):
            for e in range(2):
                A(f"ds_read_b64_tr_b16 {vr(WA + 4*s + 2*e, 2)}, v27 offset:{L_WO + s*4096 + e*512}")
    if not trl: woread()
    def ocheck(dst, g):
        A(f"v_max3_u32 v{TT}, v{g}, v{g+1}, v{g+2}")
        A(f"v_max_u32 v{TT}, v{TT}, v{g+3}")
        A(f"v_cmp_eq_u32 {dst}, -1, v{TT}")
    C(f"s[{MS}+2j:{MS+1}+2j] = lanes of load j still without data; only those are read again")
    A("s_waitcnt vmcnt(1)")
    A("L_ocomb:")
    mfma(OS, WT, GO)
    ocheck(f"s[{MS}:{MS+1}]", GO)
    A("s_waitcnt vmcnt(0)")
    mfma(OS, WT+4, GO+4, OS)
    ocheck(f"s[{MS+2}:{MS+3}]", GO+4)
    stamp(16)
    A(f"s_or_b64 vcc, s[{MS}:{MS+1}], s[{MS+2}:{MS+3}]")
    A("s_cbranch_scc1 L_oagain")
    A("L_ogot:")
    cstamp("ogot")
    note("s27", 14)
    stamp(9)
    if trl: woread()
    else: A("s_nop 2")
    halves(OS, False)
    A(f"ds_write_b32 v29, v{OS} offset:{L_OX}")
    A("s_waitcnt lgkmcnt(0)")
    cstamp("b4a")
    A("s_barrier")
    cstamp("b4")
    for s in range(4): A(f"ds_read_b128 {vr(OB+4*s,4)}, v30 offset:{L_OX + 64*s}")
    for s in range(4):
        A(f"s_waitcnt lgkmcnt({3-s})")
        mfma(D, OB + 4*s, WA + 4*s, None if s == 0 else D)
    A("s_mov_b32 vcc_lo, 0x00200020"); A("s_mov_b32 vcc_hi, 0x00200020")
    A("s_nop 5")
    C("lane = (batch g, column n).  First request: lanes 7 and 8 count; second: columns 7, 8 in lanes 6, 7, lane 5 counts")
    A(f"v_cndmask_b32 v{AT}, v{D}, 1.0, s[60:61]")
    A(f"v_cndmask_b32_dpp v{AT+2}, v{D}, v96, vcc row_shl:1 row_mask:0xf bank_mask:0xf")
    A(f"v_cvt_f64_f32 {vr(AT,2)}, v{AT}")
    cstamp("at0")
    if atx == 2: A("s_mov_b64 exec, 0xff")
    gatomic(AT+4, AT, 31)
    A(f"v_cvt_f64_f32 {vr(AT+2,2)}, v{AT+2}")
    A("s_mov_b32 exec_lo, 0x00e000e0"); A("s_mov_b32 exec_hi, 0x00e000e0")
    if atx: A("s_mov_b64 exec, 0xe0")
    gatomic(AT+6, AT+2, 32)
    A("s_not_b64 vcc, s[60:61]")
    A("s_or_b32 s27, s21, s3")
    A("s_cbranch_scc0 L_epoch")
    A("L_epoch_done:")
    A("s_mov_b64 exec, -1")
    stamp(10)
    A("s_waitcnt vmcnt(1)")
    A(f"v_add_f64 {vr(AT,2)}, {vr(AT,2)}, {vr(AT+4,2)}")
    A(f"v_cvt_f32_f64 v{AT}, {vr(AT,2)}")
    A("s_waitcnt vmcnt(0)")
    A(f"v_add_f64 {vr(AT+2,2)}, {vr(AT+2,2)}, {vr(AT+6,2)}")
    A(f"v_mov_b32_dpp v{TT}, v{AT} row_newbcast:7 row_mask:0xf bank_mask:0x3")
    A(f"v_cvt_f32_f64 v{AT+2}, {vr(AT+2,2)}")
    A("s_nop 0")
    A(f"v_mov_b32_dpp v{TT}, v{AT} row_newbcast:8 row_mask:0xf bank_mask:0xc")
    A(f"v_cndmask_b32_dpp v{AT}, v{AT+2}, v{AT}, vcc row_shr:1 row_mask:0xf bank_mask:0xf")
    A(f"v_cvt_pk_bf16_f32 v{AT}, v{AT}, v{AT}")
    A(f"v_cndmask_b32_dpp v{TT}, v{AT+2}, v{TT}, vcc row_newbcast:5 row_mask:0xf bank_mask:0xf")
    A(f"v_cmp_eq_f32 vcc, 0x42000000, v{TT}")
    cstamp("atret")
    stamp(11)
    A("s_and_b64 exec, exec, vcc")
    A("s_cbranch_scc0 L_kend")
    gstore(AT, 0, 1, "out")
    if stamps or op == "k15":
        A("s_waitcnt vmcnt(0)")
    A("L_kend:")
    stamp(15)
    if diag: finish()
    A("L_end:")
    A("s_endpgm")

    C("every wave of the group has read the old tag by now: leave this launch's tag for the next launch")
    A("L_epoch:")
    A("s_mov_b64 exec, 1")
    A("v_mov_b32 v20, s26"); A("v_mov_b32 v21, s50")
    gstore(20, 1, 21, "ws", G_E)
    A("s_branch L_epoch_done")

    C("---------------------------------------------------------------- O records missing: read them again")
    A("L_oagain:")
    A("s_sub_u32 s27, s27, 1")
    A("s_cbranch_scc1 L_ogot")
    cstamp("oag")
    A(f"s_cmp_eq_u64 s[{MS}:{MS+1}], 0"); A("s_cbranch_scc1 L_tight1")
    A(f"s_cmp_eq_u64 s[{MS+2}:{MS+3}], 0"); A("s_cbranch_scc1 L_tight0")
    for j in range(2):
        A(f"s_mov_b64 exec, s[{MS+2*j}:{MS+1+2*j}]")
        oload(j)
    A("s_mov_b64 exec, -1")
    A("s_waitcnt vmcnt(1)")
    A("s_branch L_ocomb")
    C("one load left: keep two reads of it in flight")
    for j in range(2):
        A(f"L_tight{j}:")
        A(f"s_mov_b64 exec, s[{MS+2*j}:{MS+1+2*j}]")
        oload(j, SA)
        if tgap: A(f"s_sleep {tgap}")
        A(f"L_tloop{j}:")
        oload(j, SB2)
        A("s_waitcnt vmcnt(1)")
        ocheck("vcc", SA)
        A(f"s_cbranch_vccz L_tgota{j}")
        oload(j, SA)
        A("s_sub_u32 s27, s27, 1")
        A("s_waitcnt vmcnt(1)")
        ocheck("vcc", SB2)
        A(f"s_cbranch_vccz L_tgotb{j}")
        A(f"s_cbranch_scc0 L_tloop{j}")
        for nm, src in (("b", SB2), ("a", SA)):
            A(f"L_tgot{nm}{j}:")
            A(f"v_mov_b64 {vr(GO+4*j,2)}, {vr(src,2)}"); A(f"v_mov_b64 {vr(GO+4*j+2,2)}, {vr(src+2,2)}")
            A("s_mov_b64 exec, -1")
            if j == 0: A("s_nop 0")
            mfma(OS, WT, GO)
            mfma(OS, WT+4, GO+4, OS)
            A("s_nop 3")
            A("s_branch L_ogot")
    C("spread group: the all-ones fill of the O record must reach memory before the S record does")
    A("L_fill:")
    A("s_mov_b64 exec, -1")
    A("s_lshl_b32 s29, s21, 10"); A("s_add_u32 s29, s29, s50"); A(f"s_add_u32 s29, s29, {G_O}")
    A("v_lshl_add_u32 v39, v2, 4, s29")
    for i in range(4): A(f"v_mov_b32 v{40+i}, -1")
    gstore(40, 4, 39, "ws", 0, "sc1")
    A("s_waitcnt vmcnt(0)")
    A("s_branch L_filled")
    A("L_sagain:")
    A("s_sub_u32 s27, s27, 1")
    A("s_cbranch_scc1 L_sok")
    sload()
    A("s_waitcnt vmcnt(0)")
    A("s_branch L_spoll")

    C("---------------------------------------------------------------- Q records missing, or written on another XCD")
    A("L_qrare:")
    A(f"v_lshlrev_b32 v{TT}, 1, v{TT}")
    A(f"v_cmp_ne_u32 vcc, 0, v{TT}")
    A("s_cbranch_vccz L_qflush")
    A(f"s_cmp_eq_u32 s27, {SPIN - nf}")
    A("s_cbranch_scc1 L_qflush")
    A("L_qagain:")
    A("s_sub_u32 s27, s27, 1")
    A("s_cbranch_scc1 L_qok")
    qload()
    A("s_waitcnt vmcnt(0)")
    A("s_branch L_qpoll")
    C("a long wait or a foreign writer: write this workgroup's own Q record through to memory")
    A("L_qflush:")
    own_q("s29")
    A("v_lshl_add_u32 v39, v2, 4, s29")
    gload(48, 4, 39, "ws", 0, "sc1")
    A("s_waitcnt vmcnt(0)")
    gstore(48, 4, 39, "ws", 0, "sc1")
    A("s_cbranch_vccnz L_qagain")
    for i in range(8): A(f"v_and_b32 v{QG+i}, 0xfffffe00, v{QG+i}")
    A("v_mov_b32 v38, 0x101")
    A("s_branch L_qok")

    C("================================================================ V waves: one 32-deep step of the q projection each")
    role[0] = "v"
    A("L_qproj:")
    own_q("s55")
    C("workgroups without projection work clear the accumulators of one column tile each")
    A("s_sub_u32 s52, s2, 224")
    A("s_xor_b32 s29, s33, 3"); A("s_lshl_b32 s29, s29, 8"); A("s_or_b32 s51, s52, s29")
    A("s_cmp_lt_u32 s51, 28")
    A("s_cbranch_scc0 L_noinit")
    for i in range(4): A(f"v_mov_b32 v{28+i}, 0")
    A(f"s_mul_i32 s29, s52, {tstride}"); A(f"s_add_u32 s29, s29, {WS_ACC}")
    if fullinit == 1:
        A("v_lshrrev_b32 v19, 3, v2"); A("v_lshlrev_b32 v19, 8, v19"); A("v_lshlrev_b32 v12, 4, v8")
        A("v_add3_u32 v19, v19, v12, s29")
        gstore(28, 4, 19, "ws", 0, "sc1")
        A("s_mov_b32 exec_hi, 0")
        gstore(28, 4, 19, "ws", 2048, "sc1")
    elif fullinit == 2:
        A("v_lshl_add_u32 v19, v2, 4, s29")
        for i in range(3): gstore(28, 4, 19, "ws", 1024*i, "sc1")
    else:
        A("v_lshrrev_b32 v19, 2, v2"); A("v_lshlrev_b32 v19, 8, v19"); A("v_lshlrev_b32 v12, 4, v10")
        A("v_add3_u32 v19, v19, v12, s29")
        A("s_mov_b32 exec_hi, 0xffff")
        gstore(28, 4, 19, "ws", 0, "sc1")
    A("s_mov_b32 exec_hi, -1")
    A("L_noinit:")
    A("v_bfe_u32 v12, v2, 2, 2           ; n >> 2")
    A("v_lshlrev_b32 v5, 7, v12")
    A("v_lshl_add_u32 v5, v10, 3, v5")
    A("v_lshl_add_u32 v5, v11, 10, v5")
    A("v_add_u32 v5, m0, v5")
    A("v_lshlrev_b32 v7, 8, v10"); A("v_lshl_add_u32 v7, v12, 6, v7"); A("v_lshlrev_b32 v8, 4, v4")
    A("v_add3_u32 v7, v7, v8, s55")
    A("v_sub_u32 v8, v4, v11")
    A("v_lshl_add_u32 v12, v8, 2, v12")
    for t in range(4): A(f"v_cmp_eq_u32 s[{60+2*t}:{61+2*t}], {t}, v12")
    A("s_lshl_b32 s27, s33, 10")
    A("v_lshlrev_b32 v13, 4, v2")
    A("v_add_u32 v14, s27, v13")
    A("v_mov_b32 v15, 0"); A("v_mov_b32 v16, 1")
    A("v_mov_b32 v17, 0xfffffe00")
    XM = 40; WA = 56; QD = 20; QP = 72
    xcd_bits()
    A("s_waitcnt lgkmcnt(0)")
    tags()
    A("s_cmp_lt_u32 s51, 28")
    A(f"s_waitcnt vmcnt({1 + fullinit})")
    A("s_cbranch_scc1 L_wqin")
    A("s_waitcnt vmcnt(0)")
    A("L_wqin:")
    for t in range(4):
        for e in range(2):
            A(f"ds_read_b64_tr_b16 {vr(WA+4*t+2*e,2)}, v5 offset:{512*e + 32*t}")
    C("x masked per column tile: the four tiles accumulate into different columns of one result")
    for t in range(4):
        for i in range(4): A(f"v_cndmask_b32 v{XM+4*t+i}, 0, v{XR+i}, s[{60+2*t}:{61+2*t}]")
    for t in range(4):
        A(f"s_waitcnt lgkmcnt({6-2*t})")
        mfma(QD, WA + 4*t, XM + 4*t, None if t == 0 else QD)
    A("s_nop 7")
    A(f"ds_write_b128 v14, {vr(QD,4)} offset:{L_RED}")
    A("s_mov_b64 exec, 1")
    A(f"ds_add_rtn_u32 v16, v15, v16 offset:{L_CNT+4}")
    A("s_mov_b64 exec, -1")
    A("s_waitcnt lgkmcnt(0)")
    A("v_readfirstlane_b32 s27, v16")
    A("s_cmp_eq_u32 s27, 3")
    A("s_cbranch_scc0 L_v")
    C("the last wave adds the four steps and publishes the record")
    for u in range(4): A(f"ds_read_b128 {vr(QP+4*u,4)}, v13 offset:{L_RED + 1024*u}")
    sum4(QP)
    for j in range(4): A(f"v_and_or_b32 v{QP+j}, v{QP+j}, v17, s{56+j}")
    gstore(QP, 4, 7, "ws")
    A("L_v:")
    stamp(2)
    VV = 100
    C("O store: slice u of the record, 8 bytes at 16n + 8*(g&1) from lanes 0..31; first the all-ones fill")
    A("s_lshl2_add_u32 s27, s21, s33"); A("s_lshl_b32 s27, s27, 8")
    A("s_add_u32 s27, s27, s50"); A(f"s_add_u32 s27, s27, {G_O}")
    A("v_lshlrev_b32 v9, 4, v3")
    A("v_lshlrev_b32 v11, 3, v4")
    A("v_add3_u32 v18, v9, v11, s27")
    A("v_mov_b32 v32, -1"); A("v_mov_b32 v33, -1")
    A("s_mov_b32 exec_hi, 0")
    gstore(32, 2, 18, "ws")
    A("s_mov_b32 exec_hi, -1")
    A("s_setprio 0")
    kvbase("s33")
    A("v_lshlrev_b32 v11, 10, v4")
    A("v_add3_u32 v9, v9, v11, s23")
    pick_masks(12, 16, 17)
    A("v_bfe_u32 v16, v2, 3, 1           ; head")
    A("v_lshlrev_b32 v25, 5, v16")
    A("s_lshl_b32 s27, s33, 3")
    A("v_add_u32 v26, s27, v25")
    A("s_lshl_b32 s27, s33, 11")
    A("v_lshl_add_u32 v27, v2, 4, s27")
    A("s_and_b32 s31, s33, 1"); A("s_lshl_b32 s27, s31, 10")
    A("s_lshr_b32 s29, s33, 1"); A("s_lshl_b32 s29, s29, 9"); A("s_add_u32 s27, s27, s29")
    A("v_lshl_add_u32 v16, v2, 4, s27")
    A("s_mov_b32 s35, 0x3db8aa3b")
    A("v_mov_b32 v5, 0")
    A("s_cmp_lt_u32 s51, 28")
    A("s_waitcnt vmcnt(0)")
    A("s_cbranch_scc0 L_noflag")
    A("s_lshl_b32 s29, s52, 2")
    A("v_mov_b32 v19, s29"); A("v_mov_b32 v28, 1")
    A("s_mov_b64 exec, 1")
    gstore(28, 1, 19, "dbg", 0, "sc1")
    A("s_mov_b64 exec, -1")
    A("L_noflag:")
    stamp(1)
    rel = {}
    tot = 0
    for i, (kk, vv) in enumerate(steps):
        rel[tot] = i; tot += vv
    for idx in range(16):
        if idx in rel:
            A("s_barrier                         ; Bk")
            if idx == 0: stamp(3)
        if idx >= max(dv, tot):
            if idx % vg == 0: A(f"s_waitcnt vmcnt({dv-vg})")
        elif idx == tot: A(f"s_waitcnt vmcnt({tot-1})")
        U, j = idx >> 2, idx & 3
        gload(VV + 4*idx, 4, 9, "v", j*256, "nt")
        if j == 3 and U < 3: ustep(9, U)
    stamp(4)
    if vprio: A(f"s_setprio {vprio}")
    A("s_barrier                         ; Bp")
    stamp(5)
    S = 28; TT = 24; ST = 40; VA = 56; ACC = 88
    A(f"ds_read_b32 v{ST+9}, v5 offset:{L_CNT}")
    A(f"ds_read_b128 {vr(ST,4)}, v25 offset:{L_STAT}")
    A(f"ds_read_b128 {vr(ST+4,4)}, v25 offset:{L_STAT+16}")
    A(f"ds_read_b32 v{ST+8}, v26 offset:{L_STAT}")
    A(f"ds_read_b128 {vr(S,4)}, v27 offset:{L_RED}")
    A(f"ds_read_b128 {vr(S+4,4)}, v27 offset:{L_RED+1024}")
    if bs: A("s_barrier                         ; Bs")
    A("s_waitcnt lgkmcnt(2)")
    A(f"v_readfirstlane_b32 s54, v{ST+9}")
    C("rescale from the wave's maximum to the workgroup's")
    A(f"v_max3_f32 v{TT}, v{ST}, v{ST+2}, v{ST+4}")
    A(f"v_max_f32 v{TT}, v{TT}, v{ST+6}")
    A(f"v_sub_f32 v{TT}, v{ST+8}, v{TT}")
    A(f"v_mul_f32 v{TT}, s35, v{TT}")
    A(f"v_exp_f32 v{TT}, v{TT}")
    A("s_waitcnt lgkmcnt(0)")
    for i in range(8): A(f"v_mul_f32 v{S+i}, v{S+i}, v{TT}")
    for i in range(8): A(f"v_cvt_pk_bf16_f32 v{S+i}, v{S+i}, v{S+i}")
    def amask(t):
        for j in range(4): A(f"v_and_b32 v{VA+4*t+j}, v{S+t}, v{12+j}")
    A("s_lshr_b32 s54, s54, 8")
    amask(0); amask(1)
    stamp(6)
    for i in range(16):
        t, h = i >> 1, i & 1
        if i >= 16 - dv: A(f"s_waitcnt vmcnt({15-i})")
        if i == 15: cstamp("vland")
        mfma(ACC + 4*h, VA + 4*t, VV + 4*i, None if t == 0 else ACC + 4*h)
        if i < 6: amask(i + 2)
    if fakeb:
        R = 40
        mfma(ACC, VA, VV, ACC)
        A("s_nop 7")
        for i in range(8): A(f"v_add_f32 v{R+(i&3)}, v{ACC+i}, v{ACC+i}")
        A("s_mov_b32 exec_hi, 0")
    else:
        A("s_nop 5")
        A(f"ds_write_b128 v27, {vr(ACC,4)} offset:{L_RED}")
        A("s_nop 0")
        A(f"ds_write_b128 v27, {vr(ACC+4,4)} offset:{L_RED+1024}")
        A("s_waitcnt lgkmcnt(0)")
        stamp(7)
        cstamp("b3a")
        A("s_barrier")
        cstamp("b3")
        A("s_mov_b32 exec_hi, 0")
        R = 40
        for i in range(4): A(f"ds_read_b128 {vr(R+4*i,4)}, v16 offset:{L_RED + 2048*i}")
        sum4(R)
    A(f"v_cvt_pk_bf16_f32 v{R}, v{R}, v{R+1}")
    A(f"v_cvt_pk_bf16_f32 v{R+1}, v{R+2}, v{R+3}")
    A(f"v_min_u32 v{R}, -2, v{R}")
    A(f"v_min_u32 v{R+1}, -2, v{R+1}")
    cstamp("o1st")
    publish(R, 2, 18, lambda: A("s_barrier                         ; B3b"))
    A("s_barrier                         ; Bt")
    stamp(8)
    finish()
    A("L_codeend:")

    nv = 172 if stamps else 164
    A('.section .rodata,"a"'); A(".p2align 6"); A(f".amdhsa_kernel {NAME}")
    A(f"  .amdhsa_next_free_vgpr {nv}"); A(f"  .amdhsa_next_free_sgpr {100 if safe else 68}"); A(f"  .amdhsa_accum_offset {nv}")
    A("  .amdhsa_group_segment_fixed_size 0"); A("  .amdhsa_kernarg_size 64"); A("  .amdhsa_user_sgpr_count 2")
    A("  .amdhsa_user_sgpr_kernarg_segment_ptr 1"); A("  .amdhsa_system_sgpr_workgroup_id_x 1")
    A("  .amdhsa_float_denorm_mode_32 3")
    A(".end_amdhsa_kernel")
    out = []
    for l in L:
        if l.endswith(":") or l.startswith(".") or l.startswith("; @") or l.startswith("  ."):
            out.append(l)
        else:
            out.append("    " + l.rstrip())
    return HEADER + "\n".join(out) + "\n"


if __name__ == "__main__":
    kw = {}
    for a in sys.argv[2:]:
        k, v = a.split("=")
        kw[k] = eval(v) if v in ("True", "False") or v.isdigit() or v.startswith("0x") else v.replace("+", " ")
    open(sys.argv[1], "w").write(gen(**kw))
```

```python
import sys, os
sys.path.insert(0, os.path.dirname(os.path.abspath(__file__)))
import oprobe

NAME = "standalone__sliding_block_cached__decode_kernel"

HEADER = """; Kernarg layout for this problem (64 bytes, ptrs only, base s[0:1]):
;
; kv head form a group.  Every workgroup has three jobs:
; Q and S records in d_ws carry a tag (previous launch's tag + 0x01010101) in every 16 bytes; an O record is
"""

G_E = 0
G_O = 0x1000
G_Q = 0x9000
G_S = 0x11000
WS_ST = 0x4000000

L_CNT = 0
L_STAT = 64
L_WQ = 1024
L_RED = 16384
L_WO = 24576
L_Q = 40960
L_OX = 42240
L_END = 43520

BUF = dict(x=4, k=6, v=8, wq=10, wo=12, out=14, dbg=16, ws=18)
SIZE = dict(x=3584, k=67108864, v=67108864, wq=3670016, wo=3670016, out=3584, dbg=256, ws=268435456)
SRD = dict(x=68, k=72, v=76, wq=80, wo=84, out=88, ws=92, dbg=96)

SPIN = 100000


def gen(safe=False, stamps=False, only="", pmask=0, pval=0, amp=0, op="", omin=False, cyc="", fakex=False,
        dk=7, dv=8, hs="6:8", gq=0, nf=64, pfm=31, kb="W0_W1_C0_C1_C2_U0_U1", gsh=17, acc=0x20000, gbase=0,
        kc0=3, vprio=2, wsh=False, bs=False, fakeb=False, trl=False, wo0=0, jit=0, fullinit=0, atf="sc0 sc1", tstride=3072, kg=1, vg=1, tgap=0, nwo=4, atx=0, vb=1, sw0=0, sw1=0, cx=0, lrot=0, lx=0, jo="0123", wqlin=False, split=0, nox=False, outpt=0, wolin=False, wof="nt", jmap=0, initlate=False, kfill=False, lay=0, b1=-1, bv=0, ux=-1, uw=2, ush=17, um0=65, um1=130):
    kfull = kb if kb.count("_") == 9 else "R_X_Y_" + kb
    kp = {b: 9 + i for i, b in enumerate(kfull.split("_"))}
    assert sorted(kp) == sorted("R X Y W0 W1 C0 C1 C2 U0 U1".split()) and kp["R"] <= 11
    if gsh == 17: acc = max(acc, 0x100000)
    WS_ACC = acc
    L = []
    A = L.append
    diag = stamps or op

    def C(text):
        A("; " + text)

    def vr(r, n=1):
        return f"v{r}" if n == 1 else f"v[{r}:{r+n-1}]"

    W = {1: "dword", 2: "dwordx2", 3: "dwordx3", 4: "dwordx4"}

    def gload(dst, n, voff, buf, imm=0, fl=""):
        if safe:
            A(f"buffer_load_{W[n]} {vr(dst,n)}, v{voff}, s[{SRD[buf]}:{SRD[buf]+3}], 0 offen offset:{imm} {fl}")
        else:
            A(f"global_load_{W[n]} {vr(dst,n)}, v{voff}, s[{BUF[buf]}:{BUF[buf]+1}] offset:{imm} {fl}")

    def gdma(voff, buf, imm=0, fl="nt"):
        if safe:
            A(f"buffer_load_dwordx4 v{voff}, s[{SRD[buf]}:{SRD[buf]+3}], 0 offen offset:{imm} {fl} lds")
        else:
            A(f"global_load_lds_dwordx4 v{voff}, s[{BUF[buf]}:{BUF[buf]+1}] offset:{imm} {fl}")

    def gstore(src, n, voff, buf, imm=0, fl=""):
        w = "short" if n == 0 else W[n]
        n = max(n, 1)
        if safe:
            A(f"buffer_store_{w} {vr(src,n)}, v{voff}, s[{SRD[buf]}:{SRD[buf]+3}], 0 offen offset:{imm} {fl}")
        else:
            A(f"global_store_{w} v{voff}, {vr(src,n)}, s[{BUF[buf]}:{BUF[buf]+1}] offset:{imm} {fl}")

    def gatomic(dst, src, voff):
        if safe:
            for i in range(2): A(f"v_mov_b32 v{dst+i}, v{src+i}")
            A(f"buffer_atomic_add_f64 {vr(dst,2)}, v{voff}, s[{SRD['ws']}:{SRD['ws']+3}], 0 offen sc0 sc1")
        else:
            A(f"global_atomic_add_f64 {vr(dst,2)}, v{voff}, {vr(src,2)}, s[18:19] {atf}")

    def publish(src, n, voff, between=None):
        uid[0] += 1
        gstore(src, n, voff, "ws")
        if between: between()
        A("s_cmp_eq_u32 s54, 0")
        A(f"s_cbranch_scc1 L_pub{uid[0]}")
        A("s_waitcnt vmcnt(0)")
        gstore(src, n, voff, "ws", 0, "sc1")
        A(f"L_pub{uid[0]}:")

    STB = 168
    role = ["k"]
    uid = [0]

    def kernarg_ready():
        A("s_waitcnt lgkmcnt(0)")
        if jit: jitter()
        if op: A("s_mov_b32 s46, s42")
        if stamps: A(f"v_writelane_b32 v{STB}, s42, 0")
        if safe:
            for b, s in SRD.items():
                A(f"s_mov_b32 s{s}, s{BUF[b]}"); A(f"s_mov_b32 s{s+1}, s{BUF[b]+1}")
                A(f"s_mov_b32 s{s+2}, {SIZE[b]}"); A(f"s_mov_b32 s{s+3}, 0x20000")

    def jitter():
        uid[0] += 1; u = uid[0]
        A("s_cselect_b32 s44, 1, 0")
        A("s_memtime s[40:41]"); A("s_waitcnt lgkmcnt(0)")
        A(f"s_lshl3_add_u32 s41, s2, s3"); A(f"s_add_u32 s41, s41, {jit * 977 + u * 131}"); A("s_xor_b32 s41, s41, s40")
        A("s_mul_i32 s41, s41, 0x9E3779B1"); A("s_lshr_b32 s45, s41, 29"); A("s_cmp_lt_u32 s45, 5"); A(f"s_cbranch_scc1 L_jx{u}")
        A(f"s_bfe_u32 s41, s41, {((jit % 3 + 5) << 16) | 16}")
        A(f"L_j{u}:"); A("s_sleep 1"); A("s_sub_u32 s41, s41, 1"); A(f"s_cbranch_scc0 L_j{u}")
        A(f"L_jx{u}:")
        A("s_cmp_eq_u32 s44, 1")

    def stamp(i):
        if jit: jitter()
        if op == f"{role[0]}{i}":
            A("s_memrealtime s[42:43]")
            A("s_waitcnt lgkmcnt(0)")
        if stamps and (only == "" or f"{role[0]}{i}" in str(only).split(",")):
            A("s_memrealtime s[40:41]")
            A("s_waitcnt lgkmcnt(0)")
            A(f"v_writelane_b32 v{STB}, s40, {i}")

    def cstamp(name):
        if jit: jitter()
        if cyc and name in cyc.split(","):
            k = cyc.split(",").index(name)
            A(f"s_memtime s[{64+2*k}:{65+2*k}]")

    def note(sreg, i):
        if stamps: A(f"v_writelane_b32 v{STB}, {sreg}, {i}")

    def finish():
        if stamps:
            if cyc:
                A("s_waitcnt lgkmcnt(0)"); A("s_sub_u32 s40, s66, s64"); A(f"v_writelane_b32 v{STB}, s40, 20")
            A("s_mov_b64 exec, -1")
            A("s_lshl3_add_u32 s40, s2, s3"); A("s_lshl_b32 s40, s40, 7")
            A(f"s_add_u32 s40, s40, {WS_ST}")
            A(f"v_lshl_add_u32 v{STB+1}, v2, 2, s40")
            A("s_mov_b32 exec_hi, 0")
            gstore(STB, 1, STB + 1, "ws")
        if op:
            uid[0] += 1
            oprobe.emit_record(A, gstore, WS_ST)
            if role[0] == "k": oprobe.emit_report(A, gload, WS_ST, uid[0], amp, pmask, pval, omin)
        A("s_endpgm")

    def mfma(d, a, b, c=None):
        cs = "0" if c is None else vr(c, 4)
        A(f"v_mfma_f32_16x16x32_bf16 {vr(d,4)}, {vr(a,4)}, {vr(b,4)}, {cs}")

    def group_base():
        A(f"s_lshl_b32 s50, s20, {gsh}")
        if gbase: A(f"s_add_u32 s50, s50, {gbase}")

    def tags():
        C("s26 = tag, s56..s59 = its bytes plus one bit each of this XCD's id (Q records)")
        A("s_add_u32 s26, s26, 0x01010101")
        for j in range(4):
            A(f"s_bfe_u32 s27, s26, {0x80000 + 8*j}"); A(f"s_or_b32 s{56+j}, s{56+j}, s27")

    def pick_masks(d, t0, t1):
        C(f"v{d}..v{d+3}: lane n keeps element n&7 of its 8, so that matrix row n picks element n&7 of every 16-byte chunk")
        A(f"v_and_b32 v{t0}, 1, v2")
        A(f"v_lshlrev_b32 v{t0}, 4, v{t0}")
        A(f"v_mov_b32 v{t1}, 0xffff")
        A(f"v_lshlrev_b32 v{t0}, v{t0}, v{t1}")
        A(f"v_bfe_u32 v{t1}, v2, 1, 2")
        for jj in range(4):
            A(f"v_cmp_eq_u32 vcc, {jj}, v{t1}")
            A("s_nop 1")
            A(f"v_cndmask_b32 v{d+jj}, 0, v{t0}, vcc")

    def xcd_bits():
        A("s_getreg_b32 s53, hwreg(HW_REG_XCC_ID, 0, 4)")
        if fakex: A("s_bfe_u32 s53, s2, 0x10005")
        for j in range(4):
            A(f"s_lshl_b32 s{56+j}, s53, {8-j}"); A(f"s_and_b32 s{56+j}, s{56+j}, 0x100")

    def xred(reg, tmp, op_):
        for sw in ("v_permlane32_swap_b32", "v_permlane16_swap_b32"):
            A(f"v_mov_b32 v{tmp}, v{reg}")
            A("s_nop 1")
            A(f"{sw} v{reg}, v{tmp}")
            A(f"{op_} v{reg}, v{reg}, v{tmp}")

    def sum4(r):
        A("s_waitcnt lgkmcnt(2)")
        A(f"v_pk_add_f32 {vr(r,2)}, {vr(r,2)}, {vr(r+4,2)}")
        A(f"v_pk_add_f32 {vr(r+2,2)}, {vr(r+2,2)}, {vr(r+6,2)}")
        A("s_waitcnt lgkmcnt(0)")
        A(f"v_pk_add_f32 {vr(r+8,2)}, {vr(r+8,2)}, {vr(r+12,2)}")
        A(f"v_pk_add_f32 {vr(r+10,2)}, {vr(r+10,2)}, {vr(r+14,2)}")
        A(f"v_pk_add_f32 {vr(r,2)}, {vr(r,2)}, {vr(r+8,2)}")
        A(f"v_pk_add_f32 {vr(r+2,2)}, {vr(r+2,2)}, {vr(r+10,2)}")

    def halves(r, nop=True):
        if nop: A("s_nop 1")
        A(f"v_permlane32_swap_b32 v{r}, v{r+2}")
        A(f"v_permlane32_swap_b32 v{r+1}, v{r+3}")
        A(f"v_pk_add_f32 {vr(r,2)}, {vr(r,2)}, {vr(r+2,2)}")
        A(f"v_cvt_pk_bf16_f32 v{r}, v{r}, v{r+1}")

    def kvbase(wreg):
        C("s23 = byte offset of this wave's first block of 8 keys, s25 = step to the next block")
        A("s_lshl3_add_u32 s23, s22, s20")
        A("s_lshl_b32 s23, s23, 21")
        if kb == "W0_W1_C0_C1_C2_U0_U1":
            A(f"s_lshl2_add_u32 s25, s24, {wreg}")
            if cx: A(f"s_xor_b32 s25, s25, {cx << 2}")
            A("s_lshl_b32 s25, s25, 12")
            A("s_add_u32 s23, s23, s25")
        else:
            A(f"s_lshl2_add_u32 s27, s24, {wreg}")
            src = ["W0", "W1", "C0", "C1", "C2"]
            i = 0
            while i < 5:
                j = i
                while j + 1 < 5 and kp[src[j+1]] == kp[src[j]] + 1: j += 1
                A(f"s_bfe_u32 s25, s27, {((j - i + 1) << 16) | i}"); A(f"s_lshl_b32 s25, s25, {kp[src[i]]}"); A("s_add_u32 s23, s23, s25")
                i = j + 1
        if (um0, um1) == (65, 130) and (kp["U0"], kp["U1"]) == (17, 18):
            A("s_lshr_b32 s25, s24, 1"); A(f"s_xor_b32 s25, s25, {wreg}"); A("s_lshl_b32 s25, s25, 17")
            A("s_add_u32 s23, s23, s25")
        elif um0 or um1:
            A(f"s_lshl2_add_u32 s27, s2, {wreg}")
            for m, b in ((um0, kp["U0"]), (um1, kp["U1"])):
                if m:
                    A(f"s_and_b32 s25, s27, {m}"); A("s_bcnt1_i32_b32 s25, s25"); A("s_and_b32 s25, s25, 1"); A(f"s_lshl_b32 s25, s25, {b}"); A("s_add_u32 s23, s23, s25")
        if ux >= 0:
            A(f"s_bfe_u32 s25, {wreg if ux == 99 else 's2'}, {(uw << 16) | (0 if ux == 99 else ux)}"); A(f"s_lshl_b32 s25, s25, {ush}"); A("s_add_u32 s23, s23, s25")
        A("s_add_u32 s23, s23, 0x180000")
        A(f"s_mov_b32 s25, {1 << kp['U0']}")

    def ustep(reg, U):
        if sw0 or sw1 or ux >= 0 or um0 or um1:
            m0 = (1 << kp["U0"]) | (sw0 << 12); m1 = (1 << kp["U1"]) | (sw1 << 12)
            mm = m0 ^ (m1 if U == 1 else 0)
            A(f"v_xor_b32 v{reg}, {'s25' if mm == 1 << kp['U0'] else hex(mm)}, v{reg}")
            return
        d = (1 << kp["U1"]) - (1 << kp["U0"])
        if U == 1 and d != 1 << kp["U0"]: A(f"v_add_u32 v{reg}, {d & 0xffffffff}, v{reg}")
        else: A(f"v_add_u32 v{reg}, s25, v{reg}")

    def own_q(dst):
        A(f"s_lshl2_add_u32 {dst}, s24, s22")
        if lx: A(f"s_xor_b32 {dst}, {dst}, {lx << 2}")
        A(f"s_lshl_b32 {dst}, {dst}, 10")
        A(f"s_add_u32 {dst}, {dst}, s50"); A(f"s_add_u32 {dst}, {dst}, {G_Q}")

    steps = [tuple(map(int, x.split(":"))) for x in hs.split(",")]

    A(f"; @launch grid=(256,1,1) block=(512,1,1) lds={L_END}")
    A('.amdgcn_target "amdgcn-amd-amdhsa--gfx950"')
    A(".text"); A(f".globl {NAME}"); A(".p2align 8"); A(f".type {NAME},@function"); A(f"{NAME}:")
    if diag:
        A("s_memrealtime s[42:43]")
    A("s_load_dwordx16 s[4:19], s[0:1], 0")
    A("s_cmpk_ge_u32 s2, 0x100")
    A("s_cbranch_scc1 L_end")
    if lrot: A(f"s_xor_b32 s2, s2, {lrot << 3}")
    A("v_readfirstlane_b32 s3, v0")
    A("v_and_b32 v2, 63, v0              ; lane")
    A("v_and_b32 v3, 15, v0              ; n = lane & 15")
    A("v_bfe_u32 v4, v0, 4, 2            ; g = lane >> 4")
    A("v_and_b32 v10, 3, v0")
    A("s_and_b32 s20, s2, 7              ; hkv")
    A("s_lshr_b32 s22, s2, 6             ; r >> 3")
    A("s_bfe_u32 s24, s2, 0x30003        ; r & 7")
    A("s_lshr_b32 s3, s3, 6              ; wave")
    A("s_cmp_lt_u32 s3, 4")
    A("s_cbranch_scc1 L_k")

    C("---------------------------------------------------------------- V waves: wq and x go first")
    XR = 24
    if pfm:
        A(f"s_and_b32 s27, s2, {pfm << 3}"); A("s_cbranch_scc1 L_nopf")
    A("s_getpc_b64 s[30:31]")
    A("L_pc:")
    A("v_lshlrev_b32 v5, 5, v0")
    A("v_subrev_u32 v5, 8192, v5")
    A("v_min_u32 v5, L_codeend-L_pc-4, v5")
    A("global_load_dword v6, v5, s[30:31]")
    A("L_nopf:")
    A("s_setprio 3")
    A("v_mov_b32 v8, 0")
    A("v_mov_b32 v9, 0")
    A("ds_write2_b64 v8, v[8:9], v[8:9] offset0:0 offset1:1")
    A("s_and_b32 s33, s3, 3")
    A("s_cmp_eq_u32 s33, 3")
    A("s_cselect_b32 s34, 1, 3")
    A("v_and_b32 v11, s34, v4")
    A("s_mul_i32 s25, s22, 224")
    A("s_lshl_b32 s27, s33, 6")
    A("s_add_u32 s25, s25, s27")
    A("v_mul_u32_u24 v5, 896, v10")
    A("v_lshlrev_b32 v7, 4, v11")
    A("v_add3_u32 v5, v5, v7, s25        ; x offset")
    A("s_lshl3_add_u32 s27, s20, s24")
    if lx: A(f"s_xor_b32 s27, s27, {lx}")
    A("s_lshl_b32 s27, s27, 7")
    A("s_lshl_b32 s25, s25, 12")
    A("s_add_u32 s25, s25, s27")
    A("v_lshrrev_b32 v7, 3, v2")
    A("v_lshlrev_b32 v7, 13, v7")
    A("v_and_b32 v8, 7, v2")
    A("v_lshlrev_b32 v9, 4, v8")
    A("v_add3_u32 v7, v7, v9, s25")
    A("s_lshl_b32 s27, s33, 12")
    A(f"s_add_u32 m0, s27, {L_WQ}")
    A(f"s_mov_b32 s25, {65536-1024}")
    if wqlin:
        A("s_mul_i32 s25, s2, 14336"); A("s_add_u32 s25, s25, s27"); A("v_lshl_add_u32 v7, v2, 4, s25"); A("s_mov_b32 s25, 0")
    C("the group's records become L2-resident before they are written: lines i + 128*lane, i = 4r + u (values unused)")
    group_base()
    A("s_lshr_b32 s21, s2, 3             ; r")
    A("s_lshl2_add_u32 s27, s21, s33")
    A("s_cmp_lt_u32 s27, 32")
    A("s_cselect_b32 s30, 31, 15")
    A("s_lshl_b32 s27, s27, 7"); A("s_add_u32 s27, s27, s50"); A(f"s_add_u32 s27, s27, {G_O}")
    A("v_lshl_add_u32 v12, v8, 14, s27")
    A("s_mov_b32 exec_lo, s30"); A("s_mov_b32 exec_hi, 0")
    A("s_cmp_eq_u32 s33, 3")
    kernarg_ready()
    gload(1, 1, 12, "ws", 0, "sc1")
    A("s_mov_b64 exec, -1")
    A("s_load_dword s26, s[18:19], s50")
    gdma(7, "wq", 0)
    A("v_add_u32 v7, s25, v7")
    if split == 1:
        A("s_barrier                         ; B0"); A("s_barrier                         ; B0b")
    gdma(7, "wq", 1024)
    if split == 2:
        A("s_barrier                         ; B0"); A("s_barrier                         ; B0b")
    A("s_cbranch_scc1 L_u3")
    A("v_add_u32 v7, s25, v7")
    gdma(7, "wq", 2048)
    A("v_add_u32 v7, s25, v7")
    gdma(7, "wq", 3072)
    A("L_u3:")
    if not nox: gload(XR, 4, 5, "x")
    if not split: A("s_barrier                         ; B0")
    A("s_branch L_qproj")

    C("================================================================ K waves")
    A("L_k:")
    VK = 100
    kvbase("s3")
    if (kp["R"], kp["X"], kp["Y"]) == (9, 10, 11):
        A("v_lshrrev_b32 v5, 1, v3")
        A("v_lshlrev_b32 v5, 9, v5")
    else:
        A("v_and_b32 v5, 2, v3"); A(f"v_lshlrev_b32 v5, {kp['R']-1}, v5")
        if kp["Y"] == kp["X"] + 1:
            A("v_lshrrev_b32 v6, 2, v3"); A(f"v_lshl_add_u32 v5, v6, {kp['X']}, v5")
        else:
            A("v_and_b32 v6, 4, v3"); A(f"v_lshl_add_u32 v5, v6, {kp['X']-2}, v5")
            A("v_and_b32 v6, 8, v3"); A(f"v_lshl_add_u32 v5, v6, {kp['Y']-3}, v5")
    A("v_and_b32 v7, 1, v2")
    A("v_lshl_add_u32 v6, v7, 2, v4")
    A("v_lshlrev_b32 v6, 4, v6")
    A("v_add3_u32 v97, v5, v6, s23")

    def kconst():
        C("addresses for later, computed while the first loads are in flight")
        group_base()
        A("s_load_dword s26, s[18:19], s50")
        A("s_lshr_b32 s21, s2, 3             ; r")
        C("Q gather: record (2w + (g&1))*4 + 2*(g>>1) + j, batch r>>3, columns 4n..")
        A("s_lshl_b32 s27, s3, 13"); A("s_lshl_b32 s29, s22, 8"); A("s_add_u32 s27, s27, s29")
        A("s_add_u32 s27, s27, s50"); A(f"s_add_u32 s27, s27, {G_Q}")
        A("v_and_b32 v12, 1, v4"); A("v_lshrrev_b32 v13, 1, v4")
        A("v_lshlrev_b32 v9, 12, v12"); A("v_lshl_add_u32 v9, v13, 11, v9"); A("v_lshlrev_b32 v14, 4, v3")
        A("v_add3_u32 v9, v9, v14, s27")
        C("q write: (w>>1)*576 + (w&1)*256 + (g&1)*128 + n*8 + (g>>1)*4 ; q read: h*576 + 64*((n>>2)&1) + 16*g")
        A("s_lshr_b32 s27, s3, 1"); A("s_mul_i32 s27, s27, 576"); A("s_and_b32 s29, s3, 1"); A("s_lshl_b32 s29, s29, 8"); A("s_add_u32 s27, s27, s29")
        A("v_lshlrev_b32 v15, 7, v12"); A("v_lshl_add_u32 v15, v13, 2, v15"); A("v_lshlrev_b32 v16, 3, v3")
        A("v_add3_u32 v15, v15, v16, s27")
        A("v_bfe_u32 v6, v2, 3, 1            ; head")
        A("v_mul_u32_u24 v17, 576, v6")
        A("v_and_b32 v7, 4, v2")
        A("v_add_u32 v7, v7, v4")
        A("v_lshl_add_u32 v17, v7, 4, v17")
        A("s_lshl_b32 s27, s3, 3")
        A("v_lshl_add_u32 v19, v6, 5, s27")
        A("s_lshl_b32 s27, s3, 11")
        A("v_lshl_add_u32 v36, v2, 4, s27")
        A("s_and_b32 s48, s21, 3")
        A("s_lshr_b32 s49, s21, 2")
        C("wo: load i of wave w brings rows 32w + 8i + (lane>>3), 16-byte chunk (lane&7) ^ (2*(g&1) + 4*(i&1))")
        A("s_lshl2_add_u32 s27, s20, s48")
        A("s_lshl2_add_u32 s27, s27, s3")
        A("s_mul_i32 s27, s27, 28672")
        A("s_min_u32 s29, s49, 6"); A("s_lshl_b32 s29, s29, 7"); A("s_add_u32 s27, s27, s29")
        A("v_and_b32 v35, 7, v2"); A("v_lshlrev_b32 v6, 1, v12"); A("v_xor_b32 v5, v35, v6"); A("v_lshlrev_b32 v5, 4, v5")
        A("v_lshrrev_b32 v31, 3, v2"); A("v_mul_u32_u24 v7, 896, v31")
        A("v_xor_b32 v6, 64, v5")
        A("v_add3_u32 v5, v5, v7, s27")
        A(f"s_add_u32 s27, s27, {7168-1024}")
        A("v_add3_u32 v6, v6, v7, s27")
        A(f"v_add_u32 v7, {2*(7168-1024)}, v5")
        A(f"v_add_u32 v8, {2*(7168-1024)}, v6")
        if wolin:
            A("s_min_u32 s29, s2, 223"); A("s_lshl2_add_u32 s29, s29, s3"); A("s_lshl_b32 s29, s29, 12")
            A("v_lshl_add_u32 v5, v2, 4, s29"); A("v_mov_b32 v6, v5"); A("v_mov_b32 v7, v5"); A("v_mov_b32 v8, v5")
        A("s_lshl_b32 s27, s3, 12"); A(f"s_add_u32 m0, s27, {L_WO}")
        C("O gather: wave = batch, record 8w + 2g + j, slice = row group, 16 bytes at n")
        A("s_lshl_b32 s27, s3, 13"); A("s_lshl_b32 s29, s48, 8"); A("s_add_u32 s27, s27, s29")
        A("s_add_u32 s27, s27, s50"); A(f"s_add_u32 s27, s27, {G_O}")
        A("v_lshlrev_b32 v25, 11, v4"); A("v_add3_u32 v25, v25, v14, s27")
        C("S gather: record 8w + 2g + (lane&1), head = row group >> 1")
        A(f"s_add_u32 s32, s50, {G_S}")
        A("s_lshl_b32 s27, s3, 10"); A("s_lshr_b32 s29, s48, 1"); A("s_lshl_b32 s29, s29, 4"); A("s_add_u32 s27, s27, s29")
        A("s_add_u32 s27, s27, s32")
        A("v_and_b32 v26, 1, v2"); A("v_lshl_add_u32 v26, v4, 1, v26")
        A("v_lshl_add_u32 v26, v26, 7, s27")
        A("s_lshl_b32 s27, s21, 7"); A("s_add_u32 s27, s27, s32")
        A("v_lshl_add_u32 v33, v2, 4, s27")
        A("v_lshlrev_b32 v34, 5, v2")
        C("wo transposing read: g*1024 + r4*128 + c4*8 + 32*(w ^ ((r4>>1) + 2*(g&1))), r4 = n>>2, c4 = n&3")
        A("v_bfe_u32 v11, v2, 2, 2")
        A("v_lshrrev_b32 v27, 1, v11"); A("v_lshl_add_u32 v27, v12, 1, v27"); A("v_xor_b32 v27, s3, v27")
        A("v_lshlrev_b32 v27, 5, v27"); A("v_lshl_add_u32 v27, v11, 7, v27")
        A("v_lshl_add_u32 v27, v4, 10, v27"); A("v_lshl_add_u32 v27, v10, 3, v27")
        C("o write: w*320 + 2*(8n + 4*(g&1) + 2*(g>>1)) ; o read: (n>>2)*320 + 16*g")
        A("s_mul_i32 s27, s3, 320")
        A("v_lshlrev_b32 v29, 3, v12"); A("v_lshl_add_u32 v29, v13, 2, v29"); A("v_add3_u32 v29, v29, v14, s27")
        A("v_mul_u32_u24 v30, 320, v11"); A("v_lshl_add_u32 v30, v4, 4, v30")
        C("accumulators of column tile 4*block + w: 64-byte groups 256 apart, 8 of 7 columns + counter, 4 for columns 7 and 8")
        A("s_lshl2_add_u32 s33, s49, s3")
        A(f"s_mul_i32 s27, s33, {tstride}"); A(f"s_add_u32 s27, s27, {WS_ACC}")
        A("v_lshlrev_b32 v31, 8, v31"); A("v_lshlrev_b32 v35, 3, v35")
        A("v_add3_u32 v31, v31, v35, s27")
        A("s_add_u32 s27, s27, 2048"); A("v_lshlrev_b32 v32, 8, v4"); A("v_add3_u32 v32, v32, v35, s27")
        A("s_mov_b32 s60, 0x01800180"); A("s_mov_b32 s61, s60"); A("v_mov_b32 v96, 1.0")
        A("s_lshl_b32 s27, s33, 2"); A("v_mov_b32 v35, s27")
        A("s_lshl_b32 s27, s33, 5")
        A("v_mul_u32_u24 v1, 896, v4"); A("v_lshlrev_b32 v18, 1, v3"); A("v_add3_u32 v1, v1, v18, s27")
        if outpt == 2: A("v_and_b32 v99, -4, v1")
        A("v_mov_b32 v37, 0"); A("v_mov_b32 v38, 1")
        A("s_mov_b32 s35, 0x3db8aa3b")
        xcd_bits()
        pick_masks(88, 18, 28)
        A("s_mov_b32 s62, 0xff00ff00"); A("s_mov_b32 s63, s62")
        if kfill:
            A("s_lshl2_add_u32 s27, s21, s3"); A("s_lshl_b32 s27, s27, 8")
            A("s_add_u32 s27, s27, s50"); A(f"s_add_u32 s27, s27, {G_O}")
            A("v_lshl_add_u32 v98, v2, 2, s27"); A("v_mov_b32 v99, -1")
        A("s_waitcnt lgkmcnt(0)")
        tags()

    n0 = len(L); kconst(); KC = L[n0:]; del L[n0:]
    nw_ = KC.index("s_waitcnt lgkmcnt(0)")
    kernarg_ready()
    A("s_barrier                         ; B0")
    stamp(1)
    for idx in range(16):
        if idx == kc0:
            if split: A("s_barrier                         ; B0b")
            stamp(19)
            L.extend(KC[:nw_])
            if b1 >= 0: A("s_barrier")
            stamp(21)
        if idx == dk: stamp(22)
        if idx >= dk and idx % kg == 0: A(f"s_waitcnt vmcnt({dk-kg})")
        U, j = idx >> 2, idx & 3
        if idx == dk: stamp(17)
        if idx == dk + 4: stamp(18)
        jj = int(jo[j])
        gload(VK + 16*U + 4*jj, 4, 97, "k", jj*128, "nt")
        if j == 3 and U < 3: ustep(97, U)
    stamp(2)
    QG = 40; QS = 20; TT = 24
    def qload():
        gload(QG, 4, 9, "ws", 0, "sc1"); gload(QG + 4, 4, 9, "ws", 1024, "sc1")
    for i, (kk, vv) in enumerate(steps):
        A(f"s_waitcnt vmcnt({kk + ((3 if kfill else 2) if i > gq else 0)})")
        if i == gq:
            qload()
            if kfill:
                C("all-ones fill of the O record, complete before this wave reports its part of q")
                gstore(99, 1, 98, "ws")
        A("s_barrier")
        if i == 0: stamp(3)
    L.extend(KC[nw_:])
    A(f"s_mov_b32 s27, {SPIN}")
    A("s_waitcnt vmcnt(0)")
    A("L_qpoll:")
    for i in range(8): A(f"v_xor_b32 v{QG+i}, s{56 + (i & 3)}, v{QG+i}")
    A(f"v_or3_b32 v{TT}, v{QG}, v{QG+1}, v{QG+2}")
    A(f"v_or3_b32 v{TT}, v{TT}, v{QG+3}, v{QG+4}")
    A(f"v_or3_b32 v{TT}, v{TT}, v{QG+5}, v{QG+6}")
    A(f"v_or_b32 v{TT}, v{TT}, v{QG+7}")
    A(f"v_lshlrev_b32 v{TT}, 23, v{TT}")
    A(f"v_cmp_ne_u32 vcc, 0, v{TT}")
    A("s_cbranch_vccnz L_qrare")
    A("L_qok:")
    note("s27", 12)
    A(f"v_pk_add_f32 {vr(QS,2)}, {vr(QG,2)}, {vr(QG+4,2)}")
    A(f"v_pk_add_f32 {vr(QS+2,2)}, {vr(QG+2,2)}, {vr(QG+6,2)}")
    halves(QS)
    A(f"ds_write_b32 v15, v{QS} offset:{L_Q}")
    A("s_mov_b64 exec, 1")
    A(f"ds_add_u32 v37, v38 offset:{L_CNT}")
    stamp(4)
    A("s_mov_b64 exec, -1")
    if bv:
        A("s_waitcnt lgkmcnt(0)")
        A("s_barrier")
    A("L_qsync:")
    A(f"ds_read_b32 v39, v37 offset:{L_CNT}")
    A("s_waitcnt lgkmcnt(0)")
    A("v_readfirstlane_b32 s54, v39")
    A("s_bitcmp1_b32 s54, 2")
    A("s_cbranch_scc0 L_qsync")
    A("s_lshr_b32 s54, s54, 8")
    stamp(5)
    C("scores: row (key, half line) x column (head, half line, copies); the matching halves are added afterwards")
    VQ = 48; D = 64; S = 80; M = 22; Lr = 23
    for j in range(4):
        A(f"ds_read_b128 {vr(VQ+4*j,4)}, v17 offset:{L_Q + 128*j}")
    for j in range(4):
        A(f"s_waitcnt lgkmcnt({3-j})")
        for U in range(4):
            mfma(D + 4*U, VK + 16*U + 4*j, VQ + 4*j, None if j == 0 else D + 4*U)
    A("s_nop 4")
    for half in range(2):
        for t in range(8):
            a, b = D + 2*t, D + 2*t + 1
            if half == 0: A(f"v_add_f32_dpp v{S+t}, v{b}, v{a} row_shl:4 row_mask:0xf bank_mask:0x5")
            else: A(f"v_add_f32_dpp v{S+t}, v{a}, v{b} row_shr:4 row_mask:0xf bank_mask:0xa")
    C("the reference holds the scores in bf16")
    for i in range(4): A(f"v_cvt_pk_bf16_f32 v{VQ+i}, v{S+2*i}, v{S+2*i+1}")
    for i in range(4):
        A(f"v_lshlrev_b32 v{S+2*i}, 16, v{VQ+i}")
        A(f"v_and_b32 v{S+2*i+1}, 0xffff0000, v{VQ+i}")
    A(f"v_max3_f32 v{M}, v{S}, v{S+1}, v{S+2}")
    A(f"v_max3_f32 v{M}, v{M}, v{S+3}, v{S+4}")
    A(f"v_max3_f32 v{M}, v{M}, v{S+5}, v{S+6}")
    A(f"v_max_f32 v{M}, v{M}, v{S+7}")
    xred(M, TT, "v_max_f32")
    for i in range(8): A(f"v_sub_f32 v{S+i}, v{S+i}, v{M}")
    for i in range(8): A(f"v_mul_f32 v{S+i}, s35, v{S+i}")
    for i in range(8): A(f"v_exp_f32 v{S+i}, v{S+i}")
    A(f"v_add_f32 v{Lr}, v{S}, v{S+1}")
    A(f"ds_write_b128 v36, {vr(S,4)} offset:{L_RED}")
    A(f"ds_write_b128 v36, {vr(S+4,4)} offset:{L_RED+1024}")
    for i in range(2, 8): A(f"v_add_f32 v{Lr}, v{Lr}, v{S+i}")
    xred(Lr, TT, "v_add_f32")
    A(f"ds_write_b64 v19, {vr(M,2)} offset:{L_STAT}")
    A("v_mov_b32 v38, 1")
    A("s_mov_b64 exec, 1")
    A(f"ds_add_rtn_u32 v38, v37, v38 offset:{L_CNT+8}")
    A("s_waitcnt lgkmcnt(0)")
    A("v_readfirstlane_b32 s27, v38")
    A("s_cmp_eq_u32 s27, 3")
    A("s_cbranch_scc0 L_nostat")
    C("the last K wave publishes the workgroup's maximum and sum (lane = head)")
    A("s_cmp_lg_u32 s54, 0")
    A("s_cbranch_scc1 L_fill")
    A("L_filled:")
    A("s_mov_b64 exec, 3")
    SB = 48
    A(f"ds_read_b128 {vr(SB,4)}, v34 offset:{L_STAT}")
    A(f"ds_read_b128 {vr(SB+4,4)}, v34 offset:{L_STAT+16}")
    A(f"v_mov_b32 v{SB+10}, s26"); A(f"v_mov_b32 v{SB+11}, s26")
    A("s_waitcnt lgkmcnt(0)")
    A(f"v_max3_f32 v{SB+8}, v{SB}, v{SB+2}, v{SB+4}")
    A(f"v_max_f32 v{SB+8}, v{SB+8}, v{SB+6}")
    for i in range(4): A(f"v_sub_f32 v{SB+2*i}, v{SB+2*i}, v{SB+8}")
    for i in range(4): A(f"v_mul_f32 v{SB+2*i}, s35, v{SB+2*i}")
    for i in range(4): A(f"v_exp_f32 v{SB+2*i}, v{SB+2*i}")
    A(f"v_mul_f32 v{SB+9}, v{SB}, v{SB+1}")
    for i in range(1, 4): A(f"v_fmac_f32 v{SB+9}, v{SB+2*i}, v{SB+1+2*i}")
    publish(SB+8, 4, 33)
    A("L_nostat:")
    A("s_mov_b64 exec, -1")
    stamp(6)
    A("s_cmp_ge_u32 s21, 28")
    if wo0:
        A("s_cbranch_scc1 L_nowo0")
        for i in range(wo0): gdma(5 + i, "wo", 1024*i)
        A("L_nowo0:")
    A("s_barrier")
    A("s_cbranch_scc1 L_kend")
    stamp(7)
    C("---------------------------------------------------------------- output projection")
    GS = 64; GO = 72; WT = 80; PM = 88; OS = 92; MS = 52
    OB = 100; WA = 116; D = 132; AT = 136; SA = 148; SB2 = 152
    def sload():
        gload(GS, 3, 26, "ws", 0, "sc1"); gload(GS+3, 1, 35, "dbg", 0, "sc1")
    def oload(j, dst=None):
        gload(GO + 4*j if dst is None else dst, 4, 25, "ws", 1024*j, "sc1")
    def sagain():
        A("L_sagain:")
        A("s_sub_u32 s27, s27, 1")
        A("s_cbranch_scc1 L_sok")
        sload()
        A("s_waitcnt vmcnt(0)")
        A("s_branch L_spoll")
    def epoch():
        C("every wave of the group has read the old tag by now: leave this launch's tag for the next launch")
        A("L_epoch:")
        A("s_mov_b64 exec, 1")
        A("v_mov_b32 v20, s26"); A("v_mov_b32 v21, s50")
        gstore(20, 1, 21, "ws", G_E)
        A("s_branch L_epoch_done")
    if outpt == 2:
        gload(98, 1, 99, "out")
    sload()
    if bs: A("s_barrier                         ; Bs")
    for i in range(wo0, nwo): gdma(5 + i, "wo", 1024*i, wof)
    A(f"s_mov_b32 s27, {SPIN}")
    if not fakeb: A("s_barrier                         ; B3")
    cstamp("kb3")
    A(f"s_waitcnt vmcnt({nwo - wo0})")
    A("L_spoll:")
    A(f"v_cmp_ne_u32 vcc, s26, v{GS+2}")
    A(f"v_cmp_eq_u32 s[30:31], 0, v{GS+3}")
    A("s_or_b64 vcc, vcc, s[30:31]")
    if lay == 2:
        A("s_cbranch_scc0 L_sok")
        sload()
        A("s_sub_u32 s27, s27, 1")
        A("s_waitcnt vmcnt(0)")
        A("s_cbranch_scc0 L_spoll")
    else:
        A("s_cbranch_scc1 L_sagain")
    A("L_sok:")
    def ofirst():
        A("s_barrier")
        cstamp("oiss")
        for j in range(2): oload(j)
    if wsh: ofirst()
    stamp(8)
    C("weights of the 8 chunks: 2^(c*(max_c - max)) / total, as a bf16 high part (rows 0-7) and low part (rows 8-15)")
    def red8(dst, src, op_):
        A(f"{op_}_dpp v{dst}, v{src}, v{src} quad_perm:[1,0,3,2] row_mask:0xf bank_mask:0xf")
        xred(dst, TT, op_)
    red8(M, GS, "v_max_f32")
    A(f"v_sub_f32 v{GS}, v{GS}, v{M}")
    A(f"v_mul_f32 v{GS}, s35, v{GS}")
    A(f"v_exp_f32 v{GS}, v{GS}")
    A(f"s_mov_b32 s27, {SPIN}")
    A(f"v_mul_f32 v{GS+1}, v{GS}, v{GS+1}")
    A("s_nop 1")
    red8(Lr, GS+1, "v_add_f32")
    A(f"v_rcp_f32 v{Lr}, v{Lr}")
    A("s_nop 0")
    A(f"v_mul_f32 v{GS}, v{GS}, v{Lr}")
    A(f"v_cvt_pk_bf16_f32 v{GS+1}, v{GS}, v{GS}")
    A(f"v_lshlrev_b32 v{GS+2}, 16, v{GS+1}")
    A(f"v_sub_f32 v{GS}, v{GS}, v{GS+2}")
    A(f"v_cvt_pk_bf16_f32 v{GS}, v{GS}, v{GS}")
    A(f"v_cndmask_b32 v{GS}, v{GS+1}, v{GS}, s[62:63]")
    A("s_nop 1")
    for j in range(2):
        for k in range(4): A(f"v_and_b32_dpp v{WT+4*j+k}, v{GS}, v{PM+k} quad_perm:[{j},{j},{j+2},{j+2}] row_mask:0xf bank_mask:0xf")
    if not wsh: ofirst()
    A("s_waitcnt vmcnt(2)")
    A("s_barrier")
    def woread():
        for s in range(4):
            for e in range(2):
                A(f"ds_read_b64_tr_b16 {vr(WA + 4*s + 2*e, 2)}, v27 offset:{L_WO + s*4096 + e*512}")
    if not trl: woread()
    def ocheck(dst, g):
        A(f"v_max3_u32 v{TT}, v{g}, v{g+1}, v{g+2}")
        A(f"v_max_u32 v{TT}, v{TT}, v{g+3}")
        A(f"v_cmp_eq_u32 {dst}, -1, v{TT}")
    C(f"s[{MS}+2j:{MS+1}+2j] = lanes of load j still without data; only those are read again")
    A("s_waitcnt vmcnt(1)")
    A("L_ocomb:")
    mfma(OS, WT, GO)
    ocheck(f"s[{MS}:{MS+1}]", GO)
    A("s_waitcnt vmcnt(0)")
    mfma(OS, WT+4, GO+4, OS)
    ocheck(f"s[{MS+2}:{MS+3}]", GO+4)
    stamp(16)
    A(f"s_or_b64 vcc, s[{MS}:{MS+1}], s[{MS+2}:{MS+3}]")
    A("s_cbranch_scc1 L_oagain")
    A("L_ogot:")
    cstamp("ogot")
    note("s27", 14)
    stamp(9)
    if trl: woread()
    else: A("s_nop 2")
    halves(OS, False)
    A(f"ds_write_b32 v29, v{OS} offset:{L_OX}")
    A("s_waitcnt lgkmcnt(0)")
    cstamp("b4a")
    A("s_barrier")
    cstamp("b4")
    for s in range(4): A(f"ds_read_b128 {vr(OB+4*s,4)}, v30 offset:{L_OX + 64*s}")
    for s in range(4):
        A(f"s_waitcnt lgkmcnt({3-s})")
        mfma(D, OB + 4*s, WA + 4*s, None if s == 0 else D)
    A("s_mov_b32 vcc_lo, 0x00200020"); A("s_mov_b32 vcc_hi, 0x00200020")
    A("s_nop 5")
    C("lane = (batch g, column n).  First request: lanes 7 and 8 count; second: columns 7, 8 in lanes 6, 7, lane 5 counts")
    A(f"v_cndmask_b32 v{AT}, v{D}, 1.0, s[60:61]")
    A(f"v_cndmask_b32_dpp v{AT+2}, v{D}, v96, vcc row_shl:1 row_mask:0xf bank_mask:0xf")
    A(f"v_cvt_f64_f32 {vr(AT,2)}, v{AT}")
    cstamp("at0")
    if atx == 2: A("s_mov_b64 exec, 0xff")
    gatomic(AT+4, AT, 31)
    A(f"v_cvt_f64_f32 {vr(AT+2,2)}, v{AT+2}")
    A("s_mov_b32 exec_lo, 0x00e000e0"); A("s_mov_b32 exec_hi, 0x00e000e0")
    if atx: A("s_mov_b64 exec, 0xe0")
    gatomic(AT+6, AT+2, 32)
    A("s_not_b64 vcc, s[60:61]")
    A("s_or_b32 s27, s21, s3")
    A("s_cbranch_scc0 L_epoch")
    A("L_epoch_done:")
    A("s_mov_b64 exec, -1")
    stamp(10)
    A("s_waitcnt vmcnt(1)")
    A(f"v_add_f64 {vr(AT,2)}, {vr(AT,2)}, {vr(AT+4,2)}")
    A(f"v_cvt_f32_f64 v{AT}, {vr(AT,2)}")
    A("s_waitcnt vmcnt(0)")
    A(f"v_add_f64 {vr(AT+2,2)}, {vr(AT+2,2)}, {vr(AT+6,2)}")
    A(f"v_mov_b32_dpp v{TT}, v{AT} row_newbcast:7 row_mask:0xf bank_mask:0x3")
    A(f"v_cvt_f32_f64 v{AT+2}, {vr(AT+2,2)}")
    A("s_nop 0")
    A(f"v_mov_b32_dpp v{TT}, v{AT} row_newbcast:8 row_mask:0xf bank_mask:0xc")
    A(f"v_cndmask_b32_dpp v{AT}, v{AT+2}, v{AT}, vcc row_shr:1 row_mask:0xf bank_mask:0xf")
    A(f"v_cvt_pk_bf16_f32 v{AT}, v{AT}, v{AT}")
    A(f"v_cndmask_b32_dpp v{TT}, v{AT+2}, v{TT}, vcc row_newbcast:5 row_mask:0xf bank_mask:0xf")
    A(f"v_cmp_eq_f32 vcc, 0x42000000, v{TT}")
    cstamp("atret")
    stamp(11)
    A("s_and_b64 exec, exec, vcc")
    A("s_cbranch_scc0 L_kend")
    gstore(AT, 0, 1, "out")
    if stamps or op == "k15":
        A("s_waitcnt vmcnt(0)")
    A("L_kend:")
    stamp(15)
    if diag: finish()
    A("L_end:")
    A("s_endpgm")

    if lay == 0: epoch()
    if lay == 1: sagain()

    C("---------------------------------------------------------------- O records missing: read them again")
    A("L_oagain:")
    A("s_sub_u32 s27, s27, 1")
    A("s_cbranch_scc1 L_ogot")
    cstamp("oag")
    A(f"s_cmp_eq_u64 s[{MS}:{MS+1}], 0"); A("s_cbranch_scc1 L_tight1")
    A(f"s_cmp_eq_u64 s[{MS+2}:{MS+3}], 0"); A("s_cbranch_scc1 L_tight0")
    for j in range(2):
        A(f"s_mov_b64 exec, s[{MS+2*j}:{MS+1+2*j}]")
        oload(j)
    A("s_mov_b64 exec, -1")
    A("s_waitcnt vmcnt(1)")
    A("s_branch L_ocomb")
    C("one load left: keep two reads of it in flight")
    for j in range(2):
        A(f"L_tight{j}:")
        A(f"s_mov_b64 exec, s[{MS+2*j}:{MS+1+2*j}]")
        oload(j, SA)
        if tgap: A(f"s_sleep {tgap}")
        A(f"L_tloop{j}:")
        oload(j, SB2)
        A("s_waitcnt vmcnt(1)")
        ocheck("vcc", SA)
        A(f"s_cbranch_vccz L_tgota{j}")
        oload(j, SA)
        A("s_sub_u32 s27, s27, 1")
        A("s_waitcnt vmcnt(1)")
        ocheck("vcc", SB2)
        A(f"s_cbranch_vccz L_tgotb{j}")
        A(f"s_cbranch_scc0 L_tloop{j}")
        for nm, src in (("b", SB2), ("a", SA)):
            A(f"L_tgot{nm}{j}:")
            A(f"v_mov_b64 {vr(GO+4*j,2)}, {vr(src,2)}"); A(f"v_mov_b64 {vr(GO+4*j+2,2)}, {vr(src+2,2)}")
            A("s_mov_b64 exec, -1")
            if j == 0: A("s_nop 0")
            mfma(OS, WT, GO)
            mfma(OS, WT+4, GO+4, OS)
            A("s_nop 3")
            A("s_branch L_ogot")
    C("spread group: the all-ones fill of the O record must reach memory before the S record does")
    A("L_fill:")
    A("s_mov_b64 exec, -1")
    A("s_lshl_b32 s29, s21, 10"); A("s_add_u32 s29, s29, s50"); A(f"s_add_u32 s29, s29, {G_O}")
    A("v_lshl_add_u32 v39, v2, 4, s29")
    for i in range(4): A(f"v_mov_b32 v{40+i}, -1")
    gstore(40, 4, 39, "ws", 0, "sc1")
    A("s_waitcnt vmcnt(0)")
    A("s_branch L_filled")
    if lay == 0: sagain()
    if lay >= 1: epoch()

    C("---------------------------------------------------------------- Q records missing, or written on another XCD")
    A("L_qrare:")
    A(f"v_lshlrev_b32 v{TT}, 1, v{TT}")
    A(f"v_cmp_ne_u32 vcc, 0, v{TT}")
    A("s_cbranch_vccz L_qflush")
    A(f"s_cmp_eq_u32 s27, {SPIN - nf}")
    A("s_cbranch_scc1 L_qflush")
    A("L_qagain:")
    A("s_sub_u32 s27, s27, 1")
    A("s_cbranch_scc1 L_qok")
    qload()
    A("s_waitcnt vmcnt(0)")
    A("s_branch L_qpoll")
    C("a long wait or a foreign writer: write this workgroup's own Q record through to memory")
    A("L_qflush:")
    own_q("s29")
    A("v_lshl_add_u32 v39, v2, 4, s29")
    if kfill: A("L_qown:")
    gload(48, 4, 39, "ws", 0, "sc1")
    A("s_waitcnt vmcnt(0)")
    if kfill:
        C("its store was issued before Bk; read again until it has arrived")
        for i in range(4): A(f"v_xor_b32 v{52+i}, s{56+i}, v{48+i}")
        A("v_or3_b32 v52, v52, v53, v54"); A("v_or_b32 v52, v52, v55"); A("v_lshlrev_b32 v52, 23, v52")
        A("v_cmp_ne_u32 s[30:31], 0, v52")
        A("s_cmp_lg_u64 s[30:31], 0")
        A("s_cbranch_scc1 L_qown")
    gstore(48, 4, 39, "ws", 0, "sc1")
    A("s_cbranch_vccnz L_qagain")
    for i in range(8): A(f"v_and_b32 v{QG+i}, 0xfffffe00, v{QG+i}")
    A("v_mov_b32 v38, 0x101")
    A("s_branch L_qok")

    C("================================================================ V waves: one 32-deep step of the q projection each")
    role[0] = "v"
    A("L_qproj:")
    own_q("s55")
    C("workgroups without projection work clear the accumulators of one column tile each")
    A("s_sub_u32 s52, s2, 224")
    A("s_xor_b32 s29, s33, 3"); A("s_lshl_b32 s29, s29, 8"); A("s_or_b32 s51, s52, s29")
    A("s_cmp_lt_u32 s51, 28")
    A("s_cbranch_scc0 L_noinit")
    for i in range(4): A(f"v_mov_b32 v{28+i}, 0")
    A(f"s_mul_i32 s29, s52, {tstride}"); A(f"s_add_u32 s29, s29, {WS_ACC}")
    if fullinit == 1:
        A("v_lshrrev_b32 v19, 3, v2"); A("v_lshlrev_b32 v19, 8, v19"); A("v_lshlrev_b32 v12, 4, v8")
        A("v_add3_u32 v19, v19, v12, s29")
        gstore(28, 4, 19, "ws", 0, "sc1")
        A("s_mov_b32 exec_hi, 0")
        gstore(28, 4, 19, "ws", 2048, "sc1")
    elif fullinit == 2:
        A("v_lshl_add_u32 v19, v2, 4, s29")
        for i in range(3): gstore(28, 4, 19, "ws", 1024*i, "sc1")
    else:
        A("v_lshrrev_b32 v19, 2, v2"); A("v_lshlrev_b32 v19, 8, v19"); A("v_lshlrev_b32 v12, 4, v10")
        A("v_add3_u32 v19, v19, v12, s29")
        if not initlate:
            A("s_mov_b32 exec_hi, 0xffff")
            gstore(28, 4, 19, "ws", 0, "sc1")
    if not initlate: A("s_mov_b32 exec_hi, -1")
    A("L_noinit:")
    A("v_bfe_u32 v12, v2, 2, 2           ; n >> 2")
    A("v_lshlrev_b32 v5, 7, v12")
    A("v_lshl_add_u32 v5, v10, 3, v5")
    A("v_lshl_add_u32 v5, v11, 10, v5")
    A("v_add_u32 v5, m0, v5")
    A("v_lshlrev_b32 v7, 8, v10"); A("v_lshl_add_u32 v7, v12, 6, v7"); A("v_lshlrev_b32 v8, 4, v4")
    A("v_add3_u32 v7, v7, v8, s55")
    A("v_sub_u32 v8, v4, v11")
    A("v_lshl_add_u32 v12, v8, 2, v12")
    for t in range(4): A(f"v_cmp_eq_u32 s[{60+2*t}:{61+2*t}], {t}, v12")
    A("s_lshl_b32 s27, s33, 10")
    A("v_lshlrev_b32 v13, 4, v2")
    A("v_add_u32 v14, s27, v13")
    A("v_mov_b32 v15, 0"); A("v_mov_b32 v16, 1")
    A("v_mov_b32 v17, 0xfffffe00")
    XM = 40; WA = 56; QD = 20; QP = 72
    xcd_bits()
    if b1 >= 0:
        A(f"s_waitcnt vmcnt({b1})"); A("s_barrier                         ; B1")
    A("s_waitcnt lgkmcnt(0)")
    tags()
    A("s_cmp_lt_u32 s51, 28")
    if initlate:
        A("s_waitcnt vmcnt(0)")
        A("s_cbranch_scc0 L_wqin")
        A("s_mov_b32 exec_hi, 0xffff")
        gstore(28, 4, 19, "ws", 0, "sc1")
        A("s_mov_b32 exec_hi, -1")
        A("L_wqin:")
    else:
        A(f"s_waitcnt vmcnt({1 + fullinit})")
        A("s_cbranch_scc1 L_wqin")
        A("s_waitcnt vmcnt(0)")
        A("L_wqin:")
    stamp(9)
    for t in range(4):
        for e in range(2):
            A(f"ds_read_b64_tr_b16 {vr(WA+4*t+2*e,2)}, v5 offset:{512*e + 32*t}")
    C("x masked per column tile: the four tiles accumulate into different columns of one result")
    for t in range(4):
        for i in range(4): A(f"v_cndmask_b32 v{XM+4*t+i}, 0, v{XR+i}, s[{60+2*t}:{61+2*t}]")
    for t in range(4):
        A(f"s_waitcnt lgkmcnt({6-2*t})")
        mfma(QD, WA + 4*t, XM + 4*t, None if t == 0 else QD)
    A("s_nop 7")
    A(f"ds_write_b128 v14, {vr(QD,4)} offset:{L_RED}")
    A("s_mov_b64 exec, 1")
    A(f"ds_add_rtn_u32 v16, v15, v16 offset:{L_CNT+4}")
    A("s_mov_b64 exec, -1")
    A("s_waitcnt lgkmcnt(0)")
    A("v_readfirstlane_b32 s27, v16")
    A("s_cmp_eq_u32 s27, 3")
    A("s_cbranch_scc0 L_v")
    C("the last wave adds the four steps and publishes the record")
    for u in range(4): A(f"ds_read_b128 {vr(QP+4*u,4)}, v13 offset:{L_RED + 1024*u}")
    sum4(QP)
    for j in range(4): A(f"v_and_or_b32 v{QP+j}, v{QP+j}, v17, s{56+j}")
    gstore(QP, 4, 7, "ws")
    A("L_v:")
    stamp(2)
    VV = 100
    C("O store: slice u of the record, 8 bytes at 16n + 8*(g&1) from lanes 0..31" + ("" if kfill else "; first the all-ones fill"))
    A("s_lshl2_add_u32 s27, s21, s33"); A("s_lshl_b32 s27, s27, 8")
    A("s_add_u32 s27, s27, s50"); A(f"s_add_u32 s27, s27, {G_O}")
    A("v_lshlrev_b32 v9, 4, v3")
    A("v_lshlrev_b32 v11, 3, v4")
    A("v_add3_u32 v18, v9, v11, s27")
    if not kfill:
        A("v_mov_b32 v32, -1"); A("v_mov_b32 v33, -1")
        A("s_mov_b32 exec_hi, 0")
        gstore(32, 2, 18, "ws")
        A("s_mov_b32 exec_hi, -1")
    A("s_setprio 0")
    kvbase("s33")
    if kp["Y"] == kp["X"] + 1: A(f"v_lshlrev_b32 v11, {kp['X']}, v4")
    else:
        A("v_and_b32 v11, 1, v4"); A(f"v_lshl_add_u32 v9, v11, {kp['X']}, v9")
        A("v_and_b32 v11, 2, v4"); A(f"v_lshlrev_b32 v11, {kp['Y']-1}, v11")
    A("v_add3_u32 v9, v9, v11, s23")
    pick_masks(12, 16, 17)
    A("v_bfe_u32 v16, v2, 3, 1           ; head")
    A("v_lshlrev_b32 v25, 5, v16")
    A("s_lshl_b32 s27, s33, 3")
    A("v_add_u32 v26, s27, v25")
    A("s_lshl_b32 s27, s33, 11")
    A("v_lshl_add_u32 v27, v2, 4, s27")
    A("s_and_b32 s31, s33, 1"); A("s_lshl_b32 s27, s31, 10")
    A("s_lshr_b32 s29, s33, 1"); A("s_lshl_b32 s29, s29, 9"); A("s_add_u32 s27, s27, s29")
    A("v_lshl_add_u32 v16, v2, 4, s27")
    A("s_mov_b32 s35, 0x3db8aa3b")
    A("v_mov_b32 v5, 0")
    A("s_cmp_lt_u32 s51, 28")
    if not kfill: A("s_waitcnt vmcnt(0)")
    A("s_cbranch_scc0 L_noflag")
    if kfill: A("s_waitcnt vmcnt(0)")
    A("s_lshl_b32 s29, s52, 2")
    A("v_mov_b32 v19, s29"); A("v_mov_b32 v28, 1")
    A("s_mov_b64 exec, 1")
    gstore(28, 1, 19, "dbg", 0, "sc1")
    if outpt == 1:
        A("v_lshlrev_b32 v19, 5, v19")
        gload(6, 1, 19, "out")
    A("s_mov_b64 exec, -1")
    A("L_noflag:")
    stamp(1)
    rel = {}
    tot = 0
    for i, (kk, vv) in enumerate(steps):
        rel[tot] = i; tot += vv
    for idx in range(16):
        if idx in rel:
            A("s_barrier                         ; Bk")
            if idx == 0: stamp(3)
        if bv and idx == bv: A("s_barrier                         ; Bv")
        if idx >= max(dv, tot):
            if idx % vg == 0: A(f"s_waitcnt vmcnt({dv-vg})")
        elif idx == tot: A(f"s_waitcnt vmcnt({tot-1})")
        U, j = idx >> 2, idx & 3
        gload(VV + 4*idx, 4, 9, "v", (j & 1)*256 + ((j >> 1) << kp["R"]), "nt")
        if j == 3 and U < 3: ustep(9, U)
    stamp(4)
    if vprio: A(f"s_setprio {vprio}")
    A("s_barrier                         ; Bp")
    stamp(5)
    S = 28; TT = 24; ST = 40; VA = 56; ACC = 88
    A(f"ds_read_b32 v{ST+9}, v5 offset:{L_CNT}")
    A(f"ds_read_b128 {vr(ST,4)}, v25 offset:{L_STAT}")
    A(f"ds_read_b128 {vr(ST+4,4)}, v25 offset:{L_STAT+16}")
    A(f"ds_read_b32 v{ST+8}, v26 offset:{L_STAT}")
    A(f"ds_read_b128 {vr(S,4)}, v27 offset:{L_RED}")
    A(f"ds_read_b128 {vr(S+4,4)}, v27 offset:{L_RED+1024}")
    if bs: A("s_barrier                         ; Bs")
    A("s_waitcnt lgkmcnt(2)")
    A(f"v_readfirstlane_b32 s54, v{ST+9}")
    C("rescale from the wave's maximum to the workgroup's")
    A(f"v_max3_f32 v{TT}, v{ST}, v{ST+2}, v{ST+4}")
    A(f"v_max_f32 v{TT}, v{TT}, v{ST+6}")
    A(f"v_sub_f32 v{TT}, v{ST+8}, v{TT}")
    A(f"v_mul_f32 v{TT}, s35, v{TT}")
    A(f"v_exp_f32 v{TT}, v{TT}")
    A("s_waitcnt lgkmcnt(0)")
    for i in range(8): A(f"v_mul_f32 v{S+i}, v{S+i}, v{TT}")
    for i in range(8): A(f"v_cvt_pk_bf16_f32 v{S+i}, v{S+i}, v{S+i}")
    def amask(t):
        for j in range(4): A(f"v_and_b32 v{VA+4*t+j}, v{S+t}, v{12+j}")
    A("s_lshr_b32 s54, s54, 8")
    amask(0); amask(1)
    stamp(6)
    for i in range(16):
        t, h = i >> 1, i & 1
        if i >= 16 - dv: A(f"s_waitcnt vmcnt({15-i})")
        if i == 15: cstamp("vland")
        mfma(ACC + 4*h, VA + 4*t, VV + 4*i, None if t == 0 else ACC + 4*h)
        if i < 6: amask(i + 2)
    if fakeb:
        R = 40
        mfma(ACC, VA, VV, ACC)
        A("s_nop 7")
        for i in range(8): A(f"v_add_f32 v{R+(i&3)}, v{ACC+i}, v{ACC+i}")
        A("s_mov_b32 exec_hi, 0")
    else:
        A("s_nop 5")
        A(f"ds_write_b128 v27, {vr(ACC,4)} offset:{L_RED}")
        A("s_nop 0")
        A(f"ds_write_b128 v27, {vr(ACC+4,4)} offset:{L_RED+1024}")
        A("s_waitcnt lgkmcnt(0)")
        stamp(7)
        cstamp("b3a")
        A("s_barrier")
        cstamp("b3")
        A("s_mov_b32 exec_hi, 0")
        R = 40
        for i in range(4): A(f"ds_read_b128 {vr(R+4*i,4)}, v16 offset:{L_RED + 2048*i}")
        sum4(R)
    A(f"v_cvt_pk_bf16_f32 v{R}, v{R}, v{R+1}")
    A(f"v_cvt_pk_bf16_f32 v{R+1}, v{R+2}, v{R+3}")
    A(f"v_min_u32 v{R}, -2, v{R}")
    A(f"v_min_u32 v{R+1}, -2, v{R+1}")
    cstamp("o1st")
    publish(R, 2, 18, lambda: A("s_barrier                         ; B3b"))
    if vb >= 1: A("s_barrier                         ; Bt")
    if vb >= 2: A("s_barrier                         ; B4")
    stamp(8)
    finish()
    A("L_codeend:")

    nv = 172 if stamps else 164
    A('.section .rodata,"a"'); A(".p2align 6"); A(f".amdhsa_kernel {NAME}")
    A(f"  .amdhsa_next_free_vgpr {nv}"); A(f"  .amdhsa_next_free_sgpr {100 if safe else 68}"); A(f"  .amdhsa_accum_offset {nv}")
    A("  .amdhsa_group_segment_fixed_size 0"); A("  .amdhsa_kernarg_size 64"); A("  .amdhsa_user_sgpr_count 2")
    A("  .amdhsa_user_sgpr_kernarg_segment_ptr 1"); A("  .amdhsa_system_sgpr_workgroup_id_x 1")
    A("  .amdhsa_float_denorm_mode_32 3")
    A(".end_amdhsa_kernel")
    out = []
    for l in L:
        if l.endswith(":") or l.startswith(".") or l.startswith("; @") or l.startswith("  ."):
            out.append(l)
        else:
            out.append("    " + l.rstrip())
    return HEADER + "\n".join(out) + "\n"


if __name__ == "__main__":
    kw = {}
    for a in sys.argv[2:]:
        k, v = a.split("=")
        kw[k] = v if k == "jo" else eval(v) if v in ("True", "False") or v.isdigit() or v.startswith("0x") else v.replace("+", " ")
    open(sys.argv[1], "w").write(gen(**kw))
```
